```python
import torch

def _softmax(x, axis=-1):
    return torch.softmax(x, dim=axis)

def _gelu(x):
    return torch.nn.functional.gelu(x, approximate='tanh')

def _silu(x):
    return torch.nn.functional.silu(x)

def _sigmoid(x):
    return torch.sigmoid(x)

def _layernorm(x, axis=-1, eps=1e-05):
    m = x.mean(dim=axis, keepdim=True)
    v = x.var(dim=axis, keepdim=True, unbiased=False)
    return (x - m) / torch.sqrt(v + eps)

def _scatter_add(tgt, idx, src, axis=0):
    return tgt.clone().index_add_(axis, idx, src)

def _segment_sum(src, seg, n):
    out = torch.zeros((n,) + src.shape[1:], dtype=src.dtype)
    return out.index_add_(0, seg, src)

def _pad(x, pw):
    flat = tuple((v for pair in reversed(pw) for v in pair))
    return torch.nn.functional.pad(x, flat)
kernel_name = 'gated_mix__compressed_kv_cla__mixer_gmlp__prompt'

def setup_inputs():

    _w = lambda a: (lambda t: t.to(torch.bfloat16) if t.is_floating_point() else t)(torch.as_tensor(a))

    def _A_setup():
        B, H, Sq, Sk, D, M = (1, 16, 2048, 2048, 256, 448)
        Dc = 4 * D
        return {'x': _w((lambda *s: torch.randn(*s, dtype=torch.bfloat16) * 0.05)(B, Sq, M)), 'c_kv': _w((lambda *s: torch.randn(*s, dtype=torch.bfloat16) * 0.8)(B, Sk, Dc)), 'w_q': _w((lambda *s: torch.randn(*s, dtype=torch.bfloat16) * 6.4)(M, H, D) * M ** (-0.5)), 'w_uk': _w((lambda *s: torch.randn(*s, dtype=torch.bfloat16) * 6.4)(Dc, H, D) * Dc ** (-0.5)), 'w_uv': _w((lambda *s: torch.randn(*s, dtype=torch.bfloat16) * 0.8)(Dc, H, D) * Dc ** (-0.5)), 'w_o': _w((lambda *s: torch.randn(*s, dtype=torch.bfloat16) * 0.8)(H, D, M) * (H * D) ** (-0.5))}
    _A_in = _A_setup()

    def _B_setup():
        B, S, D, F = (1, 2048, 448, 1792)
        Fh = F // 2
        return {'x': _w((lambda *s: torch.randn(*s, dtype=torch.bfloat16) * 0.05)(B, S, D)), 'w_in': _w((lambda *s: torch.randn(*s, dtype=torch.bfloat16) * 0.4)(D, 2 * Fh)), 'w_sp': _w(0.01 * (lambda *s: torch.randn(*s, dtype=torch.bfloat16) * 0.4)(S, S)), 'b_sp': _w(1.0 + 0.01 * (lambda *s: torch.randn(*s, dtype=torch.bfloat16) * 0.05)(S)), 'w_out': _w((lambda *s: torch.randn(*s, dtype=torch.bfloat16) * 0.05)(Fh, D))}
    _B_in = _B_setup()
    return {'A_x': _A_in['x'], 'A_c_kv': _A_in['c_kv'], 'A_w_q': _A_in['w_q'], 'A_w_uk': _A_in['w_uk'], 'A_w_uv': _A_in['w_uv'], 'A_w_o': _A_in['w_o'], 'B_x': _B_in['x'], 'B_w_in': _B_in['w_in'], 'B_w_sp': _B_in['w_sp'], 'B_b_sp': _B_in['b_sp'], 'B_w_out': _B_in['w_out'], 'gate_w': _w((lambda *s: torch.randn(*s, dtype=torch.bfloat16) * 0.05)(448) * 16.0)}

def reference(A_x, A_c_kv, A_w_q, A_w_uk, A_w_uv, A_w_o, B_x, B_w_in, B_w_sp, B_b_sp, B_w_out, gate_w):

    def _A_ref(x, c_kv, w_q, w_uk, w_uv, w_o):
        B, Sq, M = (x.shape[0], x.shape[1], x.shape[2])
        Sk = c_kv.shape[1]
        H, D = (w_q.shape[1], w_q.shape[2])
        q = torch.einsum('bqm,mhd->bhqd', x, w_q)
        k = torch.einsum('bkc,chd->bhkd', c_kv, w_uk)
        v = torch.einsum('bkc,chd->bhkd', c_kv, w_uv)
        scores = torch.einsum('bhqd,bhkd->bhqk', q, k) * D ** (-0.5)
        off = Sk - Sq
        qi = torch.arange(Sq)[:, None]
        kj = torch.arange(Sk)[None, :]
        cmask = kj <= qi + off
        scores = torch.where(cmask[None, None], scores, -1000000000.0)
        p = _softmax(scores, axis=-1)
        ctx = torch.einsum('bhqk,bhkd->bhqd', p, v)
        return torch.einsum('bhqd,hdm->bqm', ctx, w_o)

    def _B_ref(x, w_in, w_sp, b_sp, w_out):
        B, S, D = x.shape
        F = w_in.shape[-1]
        Fh = F // 2
        z = _gelu(torch.einsum('bsd,df->bsf', x, w_in))
        z1 = z[..., :Fh].clone()
        z2 = _layernorm(z[..., Fh:], axis=-1)
        g = torch.einsum('ts,bsf->btf', w_sp, z2) + b_sp[None, :, None]
        return torch.einsum('bsf,fd->bsd', z1 * g, w_out)
    x = A_x
    g = _sigmoid((x * gate_w).sum(-1, keepdims=True))
    a = _A_ref(x, A_c_kv, A_w_q, A_w_uk, A_w_uv, A_w_o)
    b = _B_ref(x, B_w_in, B_w_sp, B_b_sp, B_w_out)
    return g * a + (1 - g) * b
```

```python
import re

TRANS = ('v_exp_f32', 'v_log_f32', 'v_rcp_f32', 'v_rsq_f32', 'v_sqrt_f32', 'v_sin_f32', 'v_cos_f32',
         'v_rcp_iflag_f32')
_REG = re.compile(r'^(-|abs\(|\|)?([vas])(\d+)\)?\|?$')
_RNG = re.compile(r'^(-|abs\(|\|)?([vas])\[(\d+):(\d+)\]\)?\|?$')


def regs_of(tok):
    tok = tok.strip()
    m = _REG.match(tok)
    if m:
        return [m.group(2) + m.group(3)]
    m = _RNG.match(tok)
    if m:
        return [m.group(2) + str(i) for i in range(int(m.group(3)), int(m.group(4)) + 1)]
    if tok in ('vcc', 'exec'):
        return [tok]
    if tok in ('vcc_lo', 'vcc_hi'):
        return ['vcc']
    if tok in ('exec_lo', 'exec_hi'):
        return ['exec']
    if tok == 'm0':
        return ['m0']
    return []


class Ins:
    __slots__ = ('text', 'op', 'wr', 'rd', 'kind', 'passes', 'ops', 'target', 'srcc', 'srcab', 'wide',
                 'vm', 'lgkm', 'dpp', 'cost', 'data')

    def __init__(self, text, tag=None, needs=None):
        self.text = text
        self.wr = set()
        self.rd = set()
        self.passes = 0
        self.target = None
        self.srcc = set()
        self.srcab = set()
        self.wide = False
        self.vm = None
        self.lgkm = None
        self.dpp = False
        self.data = set()
        t = text.split(';')[0].strip()
        if t.endswith(':'):
            self.kind = 'label'
            self.op = t[:-1]
            self.ops = []
            return
        if t == '' or t.startswith('.'):
            self.kind = 'dir'
            self.op = t
            self.ops = []
            if needs:
                self.kind = 'need'
                self.rd = set(needs)
            return
        parts = t.split(None, 1)
        op = parts[0]
        self.op = op
        rest = parts[1] if len(parts) > 1 else ''
        ops = []
        depth = 0
        cur = ''
        for ch in rest:
            if ch in '[(':
                depth += 1
            if ch in '])':
                depth -= 1
            if ch == ',' and depth == 0:
                ops.append(cur.strip())
                cur = ''
            else:
                cur += ch
        if cur.strip():
            ops.append(cur.strip())
        mods = []
        if ops:
            last = ops[-1].split()
            ops[-1] = last[0]
            mods = last[1:]
        self.ops = ops
        R = [regs_of(o) for o in ops]
        base = op
        for suf in ('_e32', '_e64', '_dpp', '_sdwa'):
            if base.endswith(suf):
                base = base[:-len(suf)]
        if op.endswith('_dpp') or any(m.startswith(('quad_perm', 'row_', 'wave_')) for m in mods):
            self.dpp = True
        if op.startswith('v_mfma'):
            self.kind = 'mfma'
            self.wr = set(R[0])
            self.srcab = set(R[1]) | set(R[2])
            self.srcc = set(R[3])
            self.rd = self.srcab | self.srcc
            self.passes = 8 if '32x32x16' in op else (4 if '16x16x32' in op else 16)
        elif op.startswith('ds_read') or op.startswith('ds_bpermute') or op.startswith('ds_swizzle') or op.startswith('ds_permute'):
            self.kind = 'dsr'
            self.wr = set(R[0])
            for r in R[1:]:
                self.rd |= set(r)
        elif op.startswith('ds_write') or op.startswith('ds_add') or op.startswith('ds_max'):
            self.kind = 'dsw'
            for r in R:
                self.rd |= set(r)
        elif op.startswith('buffer_load') or op.startswith('global_load'):
            if 'lds' in mods or op.startswith('global_load_lds'):
                self.kind = 'dma'
                for r in R:
                    self.rd |= set(r)
                self.rd.add('m0')
            else:
                self.kind = 'vld'
                self.wr = set(R[0])
                for r in R[1:]:
                    self.rd |= set(r)
        elif op.startswith('buffer_store') or op.startswith('global_store'):
            self.kind = 'vst'
            for r in R:
                self.rd |= set(r)
            d = R[0] if op.startswith('buffer') else R[1]
            self.data = set(d)
            self.wide = len(d) >= 3
        elif op.startswith('buffer_atomic') or op.startswith('global_atomic'):
            self.kind = 'vst'
            if 'sc0' in mods:
                self.kind = 'vld'
                self.wr = set(R[0])
                if op.startswith('buffer'):
                    for r in R:
                        self.rd |= set(r)
                else:
                    for r in R[1:]:
                        self.rd |= set(r)
            else:
                for r in R:
                    self.rd |= set(r)
        elif op in ('buffer_wbl2', 'buffer_inv'):
            self.kind = 'vst'
        elif op.startswith('s_load') or op.startswith('s_buffer_load') or op in ('s_memtime', 's_memrealtime') or op.startswith('s_atomic'):
            self.kind = 'smem'
            self.wr = set(R[0])
            for r in R[1:]:
                self.rd |= set(r)
            if op.startswith('s_atomic'):
                self.rd |= set(R[0])
        elif op == 's_waitcnt':
            self.kind = 'wait'
            m = re.search(r'vmcnt\((\d+)\)', t)
            self.vm = int(m.group(1)) if m else None
            m = re.search(r'lgkmcnt\((\d+)\)', t)
            self.lgkm = int(m.group(1)) if m else None
        elif op == 's_nop':
            self.kind = 'nop'
        elif op == 's_barrier':
            self.kind = 'barrier'
        elif op == 's_endpgm':
            self.kind = 'end'
        elif op == 's_branch' or op.startswith('s_cbranch'):
            self.kind = 'branch'
            self.target = ops[0]
            if 'vcc' in op:
                self.rd.add('vcc')
            if 'exec' in op:
                self.rd.add('exec')
            if 'scc' in op:
                self.rd.add('scc')
        elif op.startswith('s_'):
            self.kind = 'salu'
            if op.startswith('s_cmp') or op.startswith('s_bitcmp'):
                self.wr = {'scc'}
                for r in R:
                    self.rd |= set(r)
            elif op in ('s_setprio', 's_sleep', 's_setreg_imm32_b32', 's_setreg_b32', 's_sethalt'):
                pass
            else:
                if R:
                    self.wr = set(R[0])
                for r in R[1:]:
                    self.rd |= set(r)
                if 'saveexec' in op:
                    self.wr.add('exec')
                    self.rd.add('exec')
                if op in ('s_addk_i32', 's_mulk_i32', 's_cmov_b32', 's_cmov_b64'):
                    self.rd |= set(R[0])
                self.wr.add('scc')
        elif op.startswith('v_'):
            self.kind = 'trans' if base in TRANS else 'valu'
            self.wr = set(R[0])
            for r in R[1:]:
                self.rd |= set(r)
            if base.startswith('v_permlane') and 'swap' in base:
                self.wr |= set(R[1])
                self.rd |= set(R[0])
            if base in ('v_fmac_f32', 'v_dot2c_f32_bf16', 'v_pk_fmac_f16', 'v_writelane_b32') or self.dpp:
                self.rd |= set(R[0])
            if base in ('v_add_co_u32', 'v_sub_co_u32', 'v_addc_co_u32', 'v_subb_co_u32', 'v_subrev_co_u32',
                        'v_div_scale_f32', 'v_mad_u64_u32'):
                self.wr |= set(R[1])
                self.rd -= set(R[1]) if base not in ('v_addc_co_u32', 'v_subb_co_u32') else set()
            if base == 'v_div_fmas_f32':
                self.rd.add('vcc')
            if base.startswith('v_cmpx'):
                self.wr.add('exec')
        else:
            raise ValueError('unknown instruction: ' + text)
        if tag:
            self.wr |= {'tag:' + tag}
        if needs:
            self.rd |= set(needs)

    def is_valu(self):
        return self.kind in ('valu', 'trans')

    def states(self):
        if self.kind == 'nop':
            return int(self.ops[0], 0) + 1
        if self.kind in ('label', 'dir', 'need'):
            return 0
        return 1

    def __repr__(self):
        return self.text


def I(text, tag=None, needs=None):
    return Ins(text, tag, needs)


def need(*tags):
    return Ins('', needs=['tag:' + t for t in tags])


def _isv(r):
    return r[0] in 'va' and r[1:].isdigit()


def _iss(r):
    return (r[0] == 's' and r[1:].isdigit()) or r == 'vcc'


def req_states(p, c):
    n = 0
    pv = p.is_valu()
    cv = c.is_valu()
    if pv:
        wv = {r for r in p.wr if _isv(r)}
        ws = {r for r in p.wr if _iss(r)}
        if c.kind == 'mfma' and wv & c.rd:
            n = max(n, 2)
        if p.kind == 'trans' and cv and c.kind != 'trans' and (wv & c.rd):
            n = max(n, 1)
        if p.kind == 'trans' and (not cv) and (wv & c.rd):
            n = max(n, 1)
        if cv and ws & c.rd:
            n = max(n, 2)
            if c.op.startswith(('v_readlane', 'v_writelane', 'v_div_fmas')):
                n = max(n, 4)
        if c.kind in ('dma', 'vld', 'vst') and ws & c.rd:
            n = max(n, 5)
        if c.kind in ('salu', 'branch', 'smem') and ws & c.rd:
            n = max(n, 2)
        if cv and c.op.startswith(('v_readlane', 'v_readfirstlane')) and wv & c.rd:
            n = max(n, 1)
        if cv and c.dpp and wv & c.rd:
            n = max(n, 2)
        if cv and c.op.startswith('v_permlane') and wv & c.rd:
            n = max(n, 2)
        if 'exec' in p.wr:
            n = max(n, 5)
        if ('op_sel' in p.text or 'sdwa' in p.op or 'dst_sel' in p.text) and cv and (wv & (c.rd | c.wr)) and not p.op.startswith('v_pk_'):
            n = max(n, 1)
    if p.kind == 'salu' and 'm0' in p.wr and c.kind == 'dma':
        n = max(n, 1)
    if p.kind == 'salu' and 'exec' in p.wr and cv and c.dpp:
        n = max(n, 1)
    if p.kind == 'vst' and p.wide and (p.data & c.wr):
        n = max(n, 2)
    if p.kind == 'mfma':
        big = {2: 0, 4: 1, 8: 2, 16: 3}[p.passes]
        d = p.wr
        if c.kind == 'mfma':
            if d & c.srcc:
                if d == c.srcc and c.passes == p.passes:
                    n = max(n, (2, 0, 0, 0)[big])
                else:
                    n = max(n, (4, 6, 10, 18)[big])
            if d & c.srcab:
                n = max(n, (5, 8, 12, 20)[big])
            if (d & c.wr) and not (d & c.srcc):
                n = max(n, (4, 6, 10, 18)[big])
        else:
            if d & (c.rd | c.wr):
                n = max(n, (5, 8, 12, 20)[big])
            if cv and (p.srcc & c.wr):
                n = max(n, (1, 3, 7, 15)[big])
            if c.kind in ('dsr', 'vld') and (p.srcc & c.wr):
                n = max(n, (1, 3, 7, 15)[big])
    return n


MAXWIN = 20


def build_cfg(prog):
    labels = {ins.op: i for i, ins in enumerate(prog) if ins.kind == 'label'}
    succ = []
    for i, ins in enumerate(prog):
        s = []
        if ins.kind == 'end':
            pass
        elif ins.kind == 'branch':
            s.append(labels[ins.target])
            if ins.op != 's_branch' and i + 1 < len(prog):
                s.append(i + 1)
        elif i + 1 < len(prog):
            s.append(i + 1)
        succ.append(s)
    return labels, succ


VM_MAX = 63
LG_MAX = 15


def _merge(a, b):
    if a is None:
        return b, True
    ch = False
    out = []
    for x, y in ((a[0], b[0]), (a[1], b[1])):
        d = dict(x)
        for k, v in y.items():
            if k not in d or v < d[k]:
                d[k] = v
                ch = True
        out.append(d)
    sm = a[2] | b[2]
    if sm != a[2]:
        ch = True
    return (out[0], out[1], sm), ch


def _transfer(ins, st):
    vm, lg, sm = dict(st[0]), dict(st[1]), set(st[2])
    wv = wl = None
    touch = ins.rd | ins.wr
    if ins.kind in ('dsr', 'vld', 'dma', 'smem'):
        touch = ins.rd | {r for r in ins.wr if not r.startswith('tag:')}
    if ins.kind in ('vst', 'dsw'):
        touch = ins.rd
    for r in touch:
        if r in vm:
            wv = vm[r] if wv is None else min(wv, vm[r])
        if r in lg:
            wl = lg[r] if wl is None else min(wl, lg[r])
        if r in sm:
            wl = 0
    if wl is not None and sm:
        wl = 0
    if wv is not None:
        wv = min(wv, VM_MAX)
        vm = {k: v for k, v in vm.items() if v < wv}
    if wl is not None:
        wl = min(wl, LG_MAX)
        lg = {k: v for k, v in lg.items() if v < wl}
        if wl == 0:
            sm = set()
    if ins.kind == 'wait':
        if ins.vm is not None:
            vm = {k: v for k, v in vm.items() if v < ins.vm}
        if ins.lgkm is not None:
            if ins.lgkm == 0:
                lg = {}
                sm = set()
            elif not sm:
                lg = {k: v for k, v in lg.items() if v < ins.lgkm}
    if ins.kind in ('vld', 'vst', 'dma'):
        vm = {k: min(v + 1, 200) for k, v in vm.items()}
        for r in ins.wr:
            vm[r] = 0
    if ins.kind in ('dsr', 'dsw'):
        lg = {k: min(v + 1, 200) for k, v in lg.items()}
        for r in ins.wr:
            lg[r] = 0
    if ins.kind == 'smem':
        sm |= ins.wr
        sm.add('*smem*')
    return (vm, lg, sm), (wv, wl)


def insert_waits(prog):
    labels, succ = build_cfg(prog)
    n = len(prog)
    instate = [None] * n
    instate[0] = ({}, {}, set())
    work = [0]
    inwork = {0}
    while work:
        i = work.pop()
        inwork.discard(i)
        st = instate[i]
        while True:
            st, _ = _transfer(prog[i], st)
            ss = succ[i]
            if len(ss) == 1 and ss[0] == i + 1 and prog[i + 1].kind != 'label':
                i += 1
                instate[i] = st
                continue
            for s in ss:
                m, ch = _merge(instate[s], st)
                if ch:
                    instate[s] = m
                    if s not in inwork:
                        work.append(s)
                        inwork.add(s)
            break
    out = []
    for i, ins in enumerate(prog):
        if instate[i] is None:
            out.append(ins)
            continue
        _, (wv, wl) = _transfer(ins, instate[i])
        if wv is not None or wl is not None:
            t = 's_waitcnt'
            if wv is not None:
                t += ' vmcnt(%d)' % wv
            if wl is not None:
                t += ' lgkmcnt(%d)' % wl
            out.append(Ins(t))
        if ins.kind != 'need':
            out.append(ins)
    return out


def _preds(prog):
    labels, succ = build_cfg(prog)
    pred = [[] for _ in prog]
    for i, ss in enumerate(succ):
        for s in ss:
            pred[s].append(i)
    return pred


def fix_hazards(prog, verbose=False):
    total = 0
    changed = True
    while changed:
        changed = False
        pred = _preds(prog)
        out = []
        for i, c in enumerate(prog):
            if c.kind in ('label', 'dir', 'nop', 'wait', 'barrier', 'end'):
                out.append(c)
                continue
            needn = 0
            stack = [(p, 0) for p in pred[i]]
            seen = {}
            while stack:
                j, dist = stack.pop()
                if j in seen and seen[j] <= dist:
                    continue
                seen[j] = dist
                p = prog[j]
                r = req_states(p, c)
                if r > dist:
                    needn = max(needn, r - dist)
                nd = dist + p.states()
                if nd < MAXWIN:
                    for q in pred[j]:
                        stack.append((q, nd))
            if needn > 0:
                total += needn
                if verbose:
                    print('hazard pad %d before: %s' % (needn, c.text))
                while needn > 0:
                    k = min(needn, 16)
                    out.append(Ins('s_nop %d' % (k - 1)))
                    needn -= k
                changed = True
            out.append(c)
        prog = out
    return prog


def finalize(prog, verbose=False):
    prog = [p if isinstance(p, Ins) else Ins(p) for p in prog]
    prog = insert_waits(prog)
    prog = fix_hazards(prog, verbose)
    return prog


def render(prog):
    out = []
    for p in prog:
        if p.kind == 'label':
            out.append(p.text)
        elif p.kind == 'need':
            continue
        else:
            out.append('  ' + p.text)
    return '\n'.join(out) + '\n'


def interleave(spine, fillers, per_gap, start=0):
    out = []
    q = list(fillers)
    acc = 0.0
    for k, m in enumerate(spine):
        out.append(m)
        if k >= start:
            acc += per_gap
            while acc >= 1.0 - 1e-9 and q:
                f = q.pop(0)
                if isinstance(f, (list, tuple)):
                    out.extend(f)
                else:
                    out.append(f)
                acc -= 1.0
    for f in q:
        if isinstance(f, (list, tuple)):
            out.extend(f)
        else:
            out.append(f)
    return out


def kernel_text(name, prog, vgpr, agpr_off=None, sgpr=102, extra=''):
    s = '.text\n.globl %s\n.p2align 8\n.type %s,@function\n%s:\n' % (name, name, name)
    s += render(prog)
    return s


def kd_text(name, nfv, accum, sgpr=102):
    return ('.section .rodata,"a"\n.p2align 6\n.amdhsa_kernel %s\n  .amdhsa_next_free_vgpr %d\n'
            '  .amdhsa_next_free_sgpr %d\n  .amdhsa_accum_offset %d\n  .amdhsa_group_segment_fixed_size 0\n'
            '  .amdhsa_kernarg_size 120\n  .amdhsa_user_sgpr_count 2\n  .amdhsa_user_sgpr_kernarg_segment_ptr 1\n'
            '  .amdhsa_system_sgpr_workgroup_id_x 1\n  .amdhsa_float_denorm_mode_32 3\n'
            '.end_amdhsa_kernel\n') % (name, nfv, sgpr, accum)
```

```python
from asmlib import *
from engine import *
from jobs import *

NEG = f2u(-1.0e9 * LOG2E)
THR = f2u(8.0)

sK, sV, sQ, sPt = 8, 12, 16, 4
sKoff, sVoff, sKslot, sVslot, sVtrk, sVrd, sRem, sTile, sKn, sVn, t0, t1, t2, t3 = 20, 21, 22, 23, 24, 25, 26, 27, 29, 30, 31, 32, 33, 34
sWave = 35
sThr, sFloor, sDiag, sN = 36, 37, 38, 39
sH, sQI, sT0, sT1, sMode, sPair = 70, 71, 72, 73, 74, 75

VLDS = 65536
D_LEAD = 12
RING = 16

vDma, aK, aV = 2, 3, 4
NM = [8, 12]
L = [16, 17]
vT = list(range(18, 32))
Sreg = [32, 64]
Preg = 96
PART = 112
Oa, Qa, Fa = 0, 128, 192


def Sr(p, kb, qb):
    return Sreg[p] + (kb * 2 + qb) * 4


def Pr(ks, qb):
    return Preg + (ks * 2 + qb) * 4


def Or(db, qb):
    return Oa + (db * 2 + qb) * 4


def frag(j):
    b = Fa + (j % RING) * 4
    return 'a[%d:%d]' % (b, b + 3)


def kread(j, kslot):
    return I('ds_read_b128 %s, v%d offset:%d' % (frag(j), aK, kslot * 32768 + j * 1024))


def vread(j):
    return I('ds_read_b128 %s, v%d offset:%d' % (frag(32 + j), aV, j * 1024))


def qk_mfmas(pn):
    L_ = []
    for j in range(32):
        kb, ds = j // 8, j % 8
        for qb in range(2):
            d = 'v[%d:%d]' % (Sr(pn, kb, qb), Sr(pn, kb, qb) + 3)
            c = 'v[%d:%d]' % (NM[qb], NM[qb] + 3) if ds == 0 else d
            q = Qa + (qb * 8 + ds) * 4
            L_.append(I('%s %s, %s, a[%d:%d], %s' % (MF, d, frag(j), q, q + 3, c)))
    return L_


def pv_mfmas():
    L_ = []
    for j in range(32):
        ks, db = j // 16, j % 16
        for qb in range(2):
            o = 'a[%d:%d]' % (Or(db, qb), Or(db, qb) + 3)
            L_.append(I('%s %s, %s, v[%d:%d], %s' % (MF, o, frag(32 + j), Pr(ks, qb), Pr(ks, qb) + 3, o)))
    return L_


def softmax_items(pc):
    exps, plains = [], []
    for ks in range(2):
        for qb in range(2):
            for u in range(4):
                kb = 2 * ks + u // 2
                a = Sr(pc, kb, qb) + 2 * (u % 2)
                p = Pr(ks, qb) + u
                exps.append(I('v_exp_f32 v%d, v%d' % (a, a)))
                exps.append(I('v_exp_f32 v%d, v%d' % (a + 1, a + 1)))
                n = len(exps)
                plains.append((I('v_add_f32 v%d, v%d, v%d' % (L[qb], L[qb], a)), n - 2, ks))
                plains.append((I('v_cvt_pk_bf16_f32 v%d, v%d, v%d' % (p, a, a + 1)), n - 1, ks))
                plains.append((I('v_add_f32 v%d, v%d, v%d' % (L[qb], L[qb], a + 1)), n - 1, ks))
    return exps, plains


def softmax_stream(pc):
    exps, plains = softmax_items(pc)
    out = []
    for i in range(17):
        if i < 16:
            out += [(exps[2 * i], 2, i // 8), (exps[2 * i + 1], 2, i // 8)]
        if i > 0:
            out += [(x[0], 1, x[2]) for x in plains[3 * (i - 1):3 * i]]
    return out


def place_softmax(gaps, load, pc, g0, g1, cap, e0=0, p0=0):
    exps, plains = softmax_items(pc)
    epos = [-1] * e0
    ei = e0
    pi = p0
    done = {}
    for g in range(g0, g1):
        while True:
            if pi < len(plains) and plains[pi][1] < len(epos) and epos[plains[pi][1]] < g and load[g] + 1 <= cap and not (
                    ei < len(exps) and load[g] + 2 <= cap):
                gaps[g].append(plains[pi][0])
                load[g] += 1
                done[plains[pi][2]] = g
                pi += 1
            elif ei < len(exps) and load[g] + 2 <= cap:
                gaps[g].append(exps[ei])
                epos.append(g)
                load[g] += 2
                ei += 1
            else:
                break
    assert ei == len(exps) and pi == len(plains), (ei, pi)
    return done


def max_stream(pn):
    r = [Sreg[pn] + i for i in range(32)]
    m = vT[0]
    out = [I('v_max3_f32 v%d, v%d, v%d, v%d' % (m, r[0], r[1], r[2]))]
    for i in range(3, 31, 2):
        out.append(I('v_max3_f32 v%d, v%d, v%d, v%d' % (m, m, r[i], r[i + 1])))
    out.append(I('v_max_f32 v%d, v%d, v%d' % (m, m, r[31])))
    out.append(I('v_cmp_lt_f32 vcc, s%d, v%d' % (sThr, m)))
    return out


def dma_group(which, kslot=None):
    G = []
    if which == 'K':
        srd_, off, n = sK, sKoff, sKn
        G.append([I('s_cmp_lt_u32 s%d, s%d' % (n, sN)), I('s_cselect_b32 s%d, %d, 0' % (srd_ + 2, 16 * MB)),
                  I('s_add_u32 m0, s%d, %d' % (sKslot, kslot * 32768))])
        m2 = I('s_add_u32 m0, s%d, %d' % (sKslot, kslot * 32768 + 4096))
    else:
        srd_, off, n = sV, sVoff, sVn
        G.append([I('s_cmp_lt_u32 s%d, s%d' % (n, sN)), I('s_cselect_b32 s%d, %d, 0' % (srd_ + 2, 16 * MB)),
                  I('s_mov_b32 m0, s%d' % sVslot)])
        m2 = I('s_add_u32 m0, s%d, 4096' % sVslot)
    for j in range(8):
        if j == 4:
            G.append([m2, I('s_add_u32 s%d, s%d, 4096' % (off, off))])
        G.append([I('buffer_load_dwordx4 v%d, s[%d:%d], s%d offen offset:%d lds' % (vDma, srd_, srd_ + 3, off, (j % 4) * 1024), tag=which)])
    G.append([I('s_add_u32 s%d, s%d, %d' % (off, off, 32768 - 4096)), I('s_add_u32 s%d, s%d, 1' % (n, n))])
    if which == 'V':
        G.append([I('s_cmp_eq_u32 s%d, 2' % sVtrk), I('s_cselect_b32 s%d, -2, 1' % t3)])
        G.append([I('s_add_u32 s%d, s%d, s%d' % (sVtrk, sVtrk, t3)), I('s_lshl_b32 s%d, s%d, 15' % (t3, t3))])
        G.append([I('s_add_u32 s%d, s%d, s%d' % (sVslot, sVslot, t3))])
    return G


def flat(G):
    return [i for g in G for i in g]


def v_advance():
    return [[I('s_cmp_eq_u32 s%d, 2' % sVrd), I('s_cselect_b32 s%d, -2, 1' % t2)],
            [I('s_add_u32 s%d, s%d, s%d' % (sVrd, sVrd, t2)), I('s_lshl_b32 s%d, s%d, 15' % (t2, t2))],
            [I('v_add_u32 v%d, s%d, v%d' % (aV, t2, aV))]]


def mask_block(lab, pn, back):
    P = [I(lab + ':')]
    A = lambda x: P.append(I(x))
    A('s_lshl_b32 s%d, s%d, 7' % (t0, sQI))
    A('s_lshl_b32 s%d, s%d, 5' % (t1, sWave))
    A('s_add_u32 s%d, s%d, s%d' % (t0, t0, t1))
    A('s_lshl_b32 s%d, s%d, 6' % (t1, sTile))
    A('s_sub_u32 s%d, s%d, s%d' % (t0, t0, t1))
    u, ng = vT[1], vT[2]
    A('v_and_b32 v%d, 15, v0' % u)
    A('v_lshrrev_b32 v%d, 4, v0' % ng)
    A('v_lshlrev_b32 v%d, 2, v%d' % (ng, ng))
    A('v_sub_u32 v%d, v%d, v%d' % (u, u, ng))
    A('v_add_u32 v%d, s%d, v%d' % (u, t0, u))
    A('v_mov_b32 v%d, 0x%x' % (ng, NEG))
    items = []
    for kb in range(4):
        for qb in range(2):
            for r in range(4):
                items.append((16 * (kb - qb) + r, Sr(pn, kb, qb) + r))
    prs = [76, 78, 80, 82]
    for i in range(0, 32, 4):
        for k in range(4):
            c, reg = items[i + k]
            A('v_cmp_gt_i32 s[%d:%d], %d, v%d' % (prs[k], prs[k] + 1, c, u))
        for k in range(4):
            c, reg = items[i + k]
            A('v_cndmask_b32 v%d, v%d, v%d, s[%d:%d]' % (reg, reg, ng, prs[k], prs[k] + 1))
    A('s_branch %s' % back)
    return P


def rescale_block(lab, pn, back):
    P = [I(lab + ':')]
    A = lambda x: P.append(I(x))
    dl = [vT[1], vT[2]]
    al = [vT[3], vT[4]]
    for qb in range(2):
        r = [Sr(pn, kb, qb) + i for kb in range(4) for i in range(4)]
        m = dl[qb]
        A('v_max3_f32 v%d, v%d, v%d, v%d' % (m, r[0], r[1], r[2]))
        for i in range(3, 15, 2):
            A('v_max3_f32 v%d, v%d, v%d, v%d' % (m, m, r[i], r[i + 1]))
        A('v_max_f32 v%d, v%d, v%d' % (m, m, r[15]))
        P.extend(xlane_reduce(m, vT[5], 'v_max_f32'))
        A('v_max_f32 v%d, s%d, v%d' % (m, sFloor, m))
        for x in r:
            A('v_sub_f32 v%d, v%d, v%d' % (x, x, m))
        for i in range(4):
            A('v_sub_f32 v%d, v%d, v%d' % (NM[qb] + i, NM[qb] + i, m))
    A('s_cmp_eq_u32 s%d, 0' % sFloor)
    A('s_mov_b32 s%d, 0' % sFloor)
    A('s_mov_b32 s%d, 0x%x' % (sThr, THR))
    A('s_cbranch_scc0 %s' % back)
    for qb in range(2):
        A('v_exp_f32 v%d, -v%d' % (al[qb], dl[qb]))
    for qb in range(2):
        A('v_mul_f32 v%d, v%d, v%d' % (L[qb], L[qb], al[qb]))
    tm = vT[5:13]
    for db0 in range(0, 16):
        for qb in range(2):
            for r in range(4):
                A('v_accvgpr_read_b32 v%d, a%d' % (tm[qb * 4 + r], Or(db0, qb) + r))
        for qb in range(2):
            for r in range(4):
                A('v_mul_f32 v%d, v%d, v%d' % (tm[qb * 4 + r], tm[qb * 4 + r], al[qb]))
        for qb in range(2):
            for r in range(4):
                A('v_accvgpr_write_b32 a%d, v%d' % (Or(db0, qb) + r, tm[qb * 4 + r]))
    A('s_branch %s' % back)
    return P


def fill(gaps, load, stream, g0, g1, cap):
    q = list(stream)
    for g in range(g0, g1):
        while q and load[g] + q[0][1] <= cap + 1e-9:
            it = q.pop(0)
            gaps[g].extend(it[0] if isinstance(it[0], list) else [it[0]])
            load[g] += it[1]
    return q


def lg_waits(pre, n_pairs, first_idx, G=4):
    pass


def iteration(lab, p, cap=2.0):
    pn = 1 - p
    ms = qk_mfmas(pn) + pv_mfmas()
    NG = 128
    gaps = [[] for _ in range(NG)]
    pre = [[] for _ in range(NG)]
    load = [0.0] * NG
    for j in range(64):
        src = j + D_LEAD
        if src < 32:
            r = kread(src, pn)
        elif src < 64:
            r = vread(src - 32)
        else:
            r = kread(src - 64, p)
        gaps[2 * j].append(r)
        load[2 * j] += 1
    for j in range(0, 64, 8):
        g = (2 * j - 2) % NG
        gaps[g].append(I('s_waitcnt lgkmcnt(%d)' % (D_LEAD - 8)))
        load[g] += 1
    pre[64] = [I('s_waitcnt vmcnt(0)'), I('s_barrier'),
               I('s_cmp_ge_u32 s%d, s%d' % (sTile, sDiag)), I('s_cbranch_scc1 %s_mask' % lab), I('%s_mb:' % lab)]
    load[63] += 2
    dg = dma_group('K', pn) + dma_group('V')
    g = 67
    for grp in dg:
        isd = grp[0].kind == 'dma'
        gaps[g].extend(grp)
        load[g] += 1.0 if isd else len(grp)
        g += 2
    assert g < 128, g
    done = place_softmax(gaps, load, p, 0, 94, cap)
    assert done[0] < 63 and done[1] < 95, done
    left = fill(gaps, load, [(x, len(x)) for x in v_advance()], 104, 126, cap)
    assert not left
    left = fill(gaps, load, [(x, 1) for x in max_stream(pn)], 70, 127, cap)
    assert not left, left
    left = fill(gaps, load, [(I('s_add_u32 s%d, s%d, 1' % (sTile, sTile)), 1), (I('s_sub_u32 s%d, s%d, 1' % (sRem, sRem)), 1)], 70, 127, cap)
    assert not left
    out = []
    for g in range(NG):
        out.extend(pre[g])
        out.append(ms[g])
        out.extend(gaps[g])
    out.append(I('s_cbranch_vccnz %s_resc' % lab))
    out.append(I('%s_rb:' % lab))
    return out


def tail(lab, p):
    P = []
    exps, plains = softmax_items(p)
    sm = []
    for i in range(9):
        sm += exps[2 * i:2 * i + 2]
        if i > 0:
            sm += [x[0] for x in plains[3 * (i - 1):3 * i]]
    rd = [vread(j) for j in range(D_LEAD)]
    P.append(I('s_waitcnt lgkmcnt(0)'))
    P += interleave(sm, rd, 0.34)
    ms = pv_mfmas()
    gaps = [[] for _ in range(64)]
    pre = [[] for _ in range(64)]
    load = [0.0] * 64
    for j in range(32 - D_LEAD):
        gaps[2 * j].append(vread(j + D_LEAD))
        load[2 * j] += 1
    for j in range(0, 32, 8):
        issued = min(32, j + D_LEAD)
        pre[2 * j].append(I('s_waitcnt lgkmcnt(%d)' % max(0, issued - (j + 8))))
    done = place_softmax(gaps, load, p, 0, 31, 3.0, e0=18, p0=24)
    for g in range(64):
        P.extend(pre[g])
        P.append(ms[g])
        P.extend(gaps[g])
    return P


def segment(lab):
    P = []
    A = lambda x: P.append(I(x))
    A('s_sub_u32 s%d, s%d, s%d' % (sN, sT1, sT0))
    A('s_lshl_b32 s%d, s%d, 20' % (t0, sH))
    A('s_lshl_b32 s%d, s%d, 15' % (t1, sT0))
    A('s_add_u32 s%d, s%d, s%d' % (sKoff, t0, t1))
    A('s_mov_b32 s%d, s%d' % (sVoff, sKoff))
    A('s_lshl_b32 s%d, s%d, 13' % (sKslot, sWave))
    A('s_add_u32 s%d, s%d, %d' % (sVslot, sKslot, VLDS))
    for r in (sVtrk, sVrd, sKn, sVn):
        A('s_mov_b32 s%d, 0' % r)
    A('v_lshlrev_b32 v%d, 4, v0' % aK)
    A('v_add_u32 v%d, s%d, v%d' % (vDma, sKslot, aK))
    A('v_add_u32 v%d, %d, v%d' % (aV, VLDS, aK))
    P += flat(dma_group('K', 0))
    P += srd(sQ, P_WS, 16 * MB, off=WS_Q)
    A('s_lshl_b32 s%d, s%d, 16' % (t1, sQI))
    A('s_add_u32 s%d, s%d, s%d' % (t0, t0, t1))
    A('s_lshl_b32 s%d, s%d, 14' % (t1, sWave))
    A('s_add_u32 s%d, s%d, s%d' % (t0, t0, t1))
    for i in range(16):
        if i % 4 == 0 and i:
            A('s_add_u32 s%d, s%d, 4096' % (t0, t0))
        A('buffer_load_dwordx4 a[%d:%d], v%d, s[%d:%d], s%d offen offset:%d' % (Qa + 4 * i, Qa + 4 * i + 3, aK, sQ, sQ + 3, t0, (i % 4) * 1024))
    P += flat(dma_group('V'))
    P += flat(dma_group('K', 1))
    P += flat(dma_group('V'))
    for i in range(128):
        A('v_accvgpr_write_b32 a%d, 0' % (Oa + i))
    for qb in range(2):
        for i in range(4):
            A('v_mov_b32 v%d, 0' % (NM[qb] + i))
        A('v_mov_b32 v%d, 0' % L[qb])
    A('s_mov_b32 s%d, 0xff800000' % sThr)
    A('s_mov_b32 s%d, 0xff800000' % sFloor)
    A('s_mov_b32 s%d, s%d' % (sTile, sT0))
    A('s_lshl_b32 s%d, s%d, 1' % (sDiag, sQI))
    A('s_sub_u32 s%d, s%d, 1' % (sRem, sN))
    A('s_waitcnt vmcnt(24)')
    A('s_barrier')
    for j in range(D_LEAD):
        P.append(kread(j, 0))
    ms = qk_mfmas(0)
    for j in range(32):
        if j % 8 == 0:
            A('s_waitcnt lgkmcnt(%d)' % max(0, min(32, j + D_LEAD) - (j + 8)))
        P.append(ms[2 * j])
        if j + D_LEAD < 32:
            P.append(kread(j + D_LEAD, 0))
        P.append(ms[2 * j + 1])
    A('s_waitcnt vmcnt(8)')
    A('s_barrier')
    P += flat(dma_group('K', 0))
    for j in range(D_LEAD):
        P.append(kread(j, 1))
    A('s_cmp_ge_u32 s%d, s%d' % (sTile, sDiag))
    A('s_cbranch_scc1 %s_h_mask' % lab)
    A('%s_h_mb:' % lab)
    A('s_branch %s_h_resc' % lab)
    A('%s_h_rb:' % lab)
    A('s_add_u32 s%d, s%d, 1' % (sTile, sTile))
    A('s_cmp_eq_u32 s%d, 0' % sRem)
    A('s_cbranch_scc1 %s_tail0' % lab)
    A('s_waitcnt lgkmcnt(%d)' % (D_LEAD - 8))
    A('%s_loop:' % lab)
    P += iteration(lab + '_i0', 0)
    A('s_cmp_eq_u32 s%d, 0' % sRem)
    A('s_cbranch_scc1 %s_tail1' % lab)
    P += iteration(lab + '_i1', 1)
    A('s_cmp_lg_u32 s%d, 0' % sRem)
    A('s_cbranch_scc1 %s_loop' % lab)
    A('%s_tail0:' % lab)
    P.append(I('s_branch %s_pre0' % lab))
    A('%s_pb0:' % lab)
    P += tail(lab, 0)
    A('s_branch %s_end' % lab)
    A('%s_tail1:' % lab)
    P.append(I('s_branch %s_pre1' % lab))
    A('%s_pb1:' % lab)
    P += tail(lab, 1)
    A('s_branch %s_end' % lab)
    O = []
    O += mask_block(lab + '_h_mask', 0, lab + '_h_mb')
    O += mask_block(lab + '_i0_mask', 1, lab + '_i0_mb')
    O += mask_block(lab + '_i1_mask', 0, lab + '_i1_mb')
    O += rescale_block(lab + '_h_resc', 0, lab + '_h_rb')
    O += rescale_block(lab + '_i0_resc', 1, lab + '_i0_rb')
    O += rescale_block(lab + '_i1_resc', 0, lab + '_i1_rb')
    for p in range(2):
        O += pretail(lab + '_pre%d' % p, lab + '_pb%d' % p)
    P += O
    A('%s_end:' % lab)
    return P


def pretail(lab, back):
    P = [I(lab + ':')]
    A = lambda x: P.append(I(x))
    A('s_cmp_lg_u32 s%d, 2' % sMode)
    A('s_cbranch_scc1 %s' % back)
    v = vT[6]
    A('s_lshr_b32 s%d, s%d, 2' % (t0, sPair))
    A('s_lshl_b32 s%d, s%d, 2' % (t0, t0))
    A('v_mov_b32 v%d, s%d' % (v, t0))
    A('s_and_b32 s%d, s%d, 3' % (t1, sPair))
    A('s_lshl_b32 s%d, s%d, 3' % (t1, t1))
    A('%s_spin:' % lab)
    A('global_load_dword v%d, v%d, s[%d:%d] sc1' % (vT[7], v, P_DBG, P_DBG + 1))
    A('s_waitcnt vmcnt(0)')
    A('v_readfirstlane_b32 s%d, v%d' % (t2, vT[7]))
    A('s_lshr_b32 s%d, s%d, s%d' % (t2, t2, t1))
    A('s_and_b32 s%d, s%d, 255' % (t2, t2))
    A('s_cmp_eq_u32 s%d, 4' % t2)
    A('s_cbranch_scc1 %s_go' % lab)
    A('s_sleep 2')
    A('s_branch %s_spin' % lab)
    A('%s_go:' % lab)
    P += part_base()
    for i in range(17):
        if i % 4 == 0 and i:
            A('s_add_u32 s%d, s%d, 4096' % (t0, t0))
        A('buffer_load_dwordx4 v[%d:%d], v%d, s[%d:%d], s%d offen offset:%d sc1' % (PART + 4 * i, PART + 4 * i + 3, aK, sPt, sPt + 3, t0, (i % 4) * 1024))
    A('s_branch %s' % back)
    return P


def part_base():
    return [I('s_lshl_b32 s%d, s%d, 2' % (t0, sPair)), I('s_add_u32 s%d, s%d, s%d' % (t0, t0, sWave)),
            I('s_mul_i32 s%d, s%d, %d' % (t0, t0, 17 * 1024))]


def finish(lab):
    P = []
    A = lambda x: P.append(I(x))
    for qb in range(2):
        P.extend(xlane_reduce(L[qb], vT[0], 'v_add_f32'))
    f1 = [vT[1], vT[2]]
    f2 = [vT[3], vT[4]]
    A('s_cmp_eq_u32 s%d, 2' % sMode)
    A('s_cbranch_scc1 %s_comb' % lab)
    for qb in range(2):
        A('v_rcp_f32 v%d, v%d' % (f1[qb], L[qb]))
    A('s_cmp_eq_u32 s%d, 1' % sMode)
    A('s_cbranch_scc1 %s_part' % lab)

    def ctx_base():
        Q = srd(sQ, P_WS, 16 * MB, off=WS_CTX)
        Q += [I('s_lshl_b32 s%d, s%d, 2' % (t0, sQI)), I('s_add_u32 s%d, s%d, s%d' % (t0, t0, sWave)),
              I('s_lshl_b32 s%d, s%d, 18' % (t0, t0)), I('s_lshl_b32 s%d, s%d, 13' % (t1, sH)),
              I('s_add_u32 s%d, s%d, s%d' % (t0, t0, t1))]
        return Q

    def emit(srd_, offf, flags, comb):
        Q = []
        k = 0
        for qb in range(2):
            for pp in range(8):
                t = 32 + (k % 4) * 12
                for u in range(2):
                    for r in range(4):
                        Q.append(I('v_accvgpr_read_b32 v%d, a%d' % (t + 4 + 4 * u + r, Or(2 * pp + u, qb) + r)))
                for r in range(8):
                    Q.append(I('v_mul_f32 v%d, v%d, v%d' % (t + 4 + r, f1[qb], t + 4 + r)))
                if comb:
                    for r in range(4):
                        src = PART + 4 * k + r
                        Q.append(I('v_lshlrev_b32 v%d, 16, v%d' % (t + r, src)))
                        Q.append(I('v_and_b32 v%d, 0xffff0000, v%d' % (src, src)))
                    for r in range(4):
                        src = PART + 4 * k + r
                        Q.append(I('v_fmac_f32 v%d, v%d, v%d' % (t + 4 + 2 * r, f2[qb], t + r)))
                        Q.append(I('v_fmac_f32 v%d, v%d, v%d' % (t + 5 + 2 * r, f2[qb], src)))
                for r in range(4):
                    Q.append(I('v_cvt_pk_bf16_f32 v%d, v%d, v%d' % (t + r, t + 4 + 2 * r, t + 5 + 2 * r)))
                off = offf(qb, pp, k)
                hi, lo = off & ~4095, off & 4095
                if hi:
                    Q.append(I('s_add_u32 s%d, s%d, %d' % (t1, t0, hi)))
                Q.append(I('buffer_store_dwordx4 v[%d:%d], v%d, s[%d:%d], s%d offen offset:%d %s' % (
                    t, t + 3, aK, srd_, srd_ + 3, t1 if hi else t0, lo, flags)))
                k += 1
        return Q

    P += ctx_base()
    P += emit(sQ, lambda qb, pp, k: qb * 131072 + pp * 1024, '', False)
    A('s_branch %s_fin' % lab)
    A('%s_part:' % lab)
    P += part_base()
    P += emit(sPt, lambda qb, pp, k: k * 1024, 'sc1', False)
    st = 80
    A('v_mov_b32 v%d, v%d' % (st, NM[0]))
    A('v_mov_b32 v%d, v%d' % (st + 1, L[0]))
    A('v_mov_b32 v%d, v%d' % (st + 2, NM[1]))
    A('v_mov_b32 v%d, v%d' % (st + 3, L[1]))
    A('s_add_u32 s%d, s%d, 16384' % (t1, t0))
    A('buffer_store_dwordx4 v[%d:%d], v%d, s[%d:%d], s%d offen sc1' % (st, st + 3, aK, sPt, sPt + 3, t1))
    A('s_lshr_b32 s%d, s%d, 2' % (t0, sPair))
    A('s_lshl_b32 s%d, s%d, 2' % (t0, t0))
    A('v_mov_b32 v%d, s%d' % (vT[6], t0))
    A('s_and_b32 s%d, s%d, 3' % (t1, sPair))
    A('s_lshl_b32 s%d, s%d, 3' % (t1, t1))
    A('s_lshl_b32 s%d, 1, s%d' % (t1, t1))
    A('v_mov_b32 v%d, s%d' % (vT[7], t1))
    A('s_waitcnt vmcnt(0)')
    A('s_mov_b64 exec, 1')
    A('global_atomic_add v%d, v%d, s[%d:%d]' % (vT[6], vT[7], P_DBG, P_DBG + 1))
    A('s_mov_b64 exec, -1')
    A('s_branch %s_fin' % lab)
    A('%s_comb:' % lab)
    stt = PART + 64
    for qb in range(2):
        nm2, l2 = stt + 2 * qb, stt + 2 * qb + 1
        mn = vT[5]
        A('v_min_f32 v%d, v%d, v%d' % (mn, NM[qb], nm2))
        A('v_sub_f32 v%d, v%d, v%d' % (f1[qb], mn, NM[qb]))
        A('v_sub_f32 v%d, v%d, v%d' % (f2[qb], mn, nm2))
        A('v_exp_f32 v%d, v%d' % (f1[qb], f1[qb]))
        A('v_exp_f32 v%d, v%d' % (f2[qb], f2[qb]))
        A('v_mul_f32 v%d, v%d, v%d' % (f2[qb], f2[qb], l2))
        A('v_fma_f32 v%d, v%d, v%d, v%d' % (mn, f1[qb], L[qb], f2[qb]))
        A('v_rcp_f32 v%d, v%d' % (mn, mn))
        A('v_mul_f32 v%d, v%d, v%d' % (f1[qb], f1[qb], mn))
        A('v_mul_f32 v%d, v%d, v%d' % (f2[qb], f2[qb], mn))
    P += ctx_base()
    P += emit(sQ, lambda qb, pp, k: qb * 131072 + pp * 1024, '', True)
    A('%s_fin:' % lab)
    return P


def attn_kernel(name):
    P = entry(256, 'L_end_' + name)
    A = lambda x: P.append(I(x))
    A('s_and_b32 s3, s2, 7')
    A('s_lshr_b32 s%d, s2, 3' % t0)
    A('s_and_b32 s%d, s%d, 1' % (t1, t0))
    A('s_lshl_b32 s3, s3, 1')
    A('s_add_u32 s%d, s3, s%d' % (sH, t1))
    A('s_lshr_b32 s%d, s%d, 1' % (t0, t0))
    A('s_and_b32 s86, s%d, 7' % t0)
    A('s_lshr_b32 s87, s%d, 3' % t0)
    A('s_lshl_b32 s%d, s%d, 3' % (sPair, sH))
    A('s_add_u32 s%d, s%d, s86' % (sPair, sPair))
    A('s_sub_u32 s%d, 15, s86' % sQI)
    A('s_waitcnt lgkmcnt(0)')
    P += srd(sK, P_WS, 16 * MB, off=WS_K)
    P += srd(sV, P_WS, 16 * MB, off=WS_V)
    P += srd(sPt, P_WS, 128 * 4 * 17 * 1024, off=WS_PART)
    A('s_cmp_eq_u32 s87, 1')
    A('s_cselect_b32 s%d, 2, 1' % sMode)
    A('s_cselect_b32 s%d, 0, 17' % sT0)
    A('s_lshl_b32 s%d, s86, 1' % t0)
    A('s_sub_u32 s%d, 32, s%d' % (t0, t0))
    A('s_cmp_eq_u32 s87, 1')
    A('s_cselect_b32 s%d, 17, s%d' % (sT1, t0))
    A('L_seg_%s:' % name)
    P += segment('a')
    P += finish('f')
    A('s_cmp_lg_u32 s%d, 1' % sMode)
    A('s_cbranch_scc1 L_end_%s' % name)
    A('s_mov_b32 s%d, 0' % sMode)
    A('s_mov_b32 s%d, s86' % sQI)
    A('s_mov_b32 s%d, 0' % sT0)
    A('s_lshl_b32 s%d, s86, 1' % sT1)
    A('s_add_u32 s%d, s%d, 2' % (sT1, sT1))
    A('s_waitcnt vmcnt(0) lgkmcnt(0)')
    A('s_barrier')
    A('s_branch L_seg_%s' % name)
    A('L_end_%s:' % name)
    A('s_endpgm')
    return P, 163840
```

```python
from asmlib import *

MF = 'v_mfma_f32_16x16x32_bf16'


def rng(kind, b, n):
    return '%s[%d:%d]' % (kind, b, b + n - 1) if n > 1 else '%s%d' % (kind, b)


class Reg:
    def __init__(self, kind, base):
        self.kind, self.base = kind, base

    def r(self, i=0, n=1):
        return rng(self.kind, self.base + i, n)


def uni(idx):
    return Reg('v', idx) if idx < 256 else Reg('a', idx - 256)


def log2(x):
    n = x.bit_length() - 1
    assert 1 << n == x
    return n


class Gemm:
    def __init__(self, name, TX, TW, WX, WW, T, xtype, x_stride, w_stride, swap, nX, nW, s, vbase, acc_regs,
                 frag_regs, BK=64, kperm=False, lds0=0, dma_span=0.72, rd_span=0.75, x_kstep=None):
        self.__dict__.update(locals())
        del self.self
        assert WX * WW == 4
        self.nxb = TX // WX // 16
        self.nwb = TW // WW // 16
        self.KS = BK // 32
        self.xrow = BK * 2
        self.xsz = TX * BK * 2
        self.wrow = TW * 2
        self.wsz = BK * TW * 2
        self.ndx = self.xsz // 1024 // 4
        assert self.xsz % 4096 == 0 or self.xsz == 4096 * self.ndx
        self.nwi = self.wsz // 1024
        assert self.nwi % 4 == 0
        self.ndw = self.nwi // 4
        self.xbase = lds0
        self.wbase = lds0 + nX * self.xsz
        self.lds_end = self.wbase + nW * self.wsz
        assert self.lds_end <= 163840, self.lds_end
        self.nm = self.nxb * self.nwb
        v = vbase
        self.vX = list(range(v, v + (self.ndx if xtype == 'rowk' else 1)))
        v += len(self.vX)
        self.vW = list(range(v, v + self.ndw))
        v += self.ndw
        self.aX = list(range(v, v + (self.KS if xtype == 'rowk' else 1)))
        v += len(self.aX)
        self.aW = list(range(v, v + self.nwb))
        v += self.nwb
        self.vend = v
        nf = self.nxb + self.nwb
        assert len(frag_regs) >= 2 * nf
        self.fX = [[uni(frag_regs[st * nf + b]) for b in range(self.nxb)] for st in range(2)]
        self.fW = [[uni(frag_regs[st * nf + self.nxb + b]) for b in range(self.nwb)] for st in range(2)]
        assert len(acc_regs) >= self.nm
        self.acc = [[uni(acc_regs[x * self.nwb + w]) for w in range(self.nwb)] for x in range(self.nxb)]

    def wswz_bits(self):
        lowbits = [0, 1, 2] if self.kperm else [0, 1, 3]
        if self.wrow % 256 == 0:
            return list(zip(lowbits, [0, 1, 2]))
        if self.wrow == 128:
            return list(zip(lowbits[1:], [0, 1]))
        raise ValueError(self.wrow)

    def setup(self, t=(1, 2, 3, 4, 5, 6)):
        s = self.s
        P = []
        A = lambda x: P.append(I(x))
        t1, t2, t3, t4, t5, t6 = ['v%d' % i for i in t]
        st0, st1 = 's%d' % s['t0'], 's%d' % s['t1']
        wave = 's%d' % s['wave']
        if self.WX == 1:
            A('s_mov_b32 s%d, 0' % s['wx'])
            A('s_mov_b32 s%d, %s' % (s['ww'], wave))
        elif self.WX == 2:
            A('s_and_b32 s%d, %s, 1' % (s['wx'], wave))
            A('s_lshr_b32 s%d, %s, 1' % (s['ww'], wave))
        else:
            A('s_mov_b32 s%d, %s' % (s['wx'], wave))
            A('s_mov_b32 s%d, 0' % s['ww'])
        if self.xtype == 'rowk':
            cpr = self.xrow // 16
            rpi = 64 // cpr
            lc = log2(cpr)
            A('v_lshrrev_b32 %s, %d, v0' % (t1, lc))
            A('s_mul_i32 %s, %s, %d' % (st0, wave, self.ndx * rpi))
            A('v_add_u32 %s, %s, %s' % (t1, st0, t1))
            A('v_and_b32 %s, %d, v0' % (t3, cpr - 1))
            for j in range(self.ndx):
                A('v_add_u32 %s, %d, %s' % (t2, j * rpi, t1))
                if self.BK == 64:
                    A('v_bfe_u32 %s, %s, 1, 3' % (t4, t2))
                else:
                    A('v_lshrrev_b32 %s, 2, %s' % (t4, t2))
                    A('v_sub_u32 %s, 0, %s' % (t4, t4))
                    A('v_and_b32 %s, 3, %s' % (t4, t4))
                A('v_xor_b32 %s, %s, %s' % (t4, t4, t3))
                A('v_lshlrev_b32 %s, 4, %s' % (t4, t4))
                A('s_mov_b32 %s, %d' % (st0, self.x_stride))
                A('v_mad_u32_u24 v%d, %s, %s, %s' % (self.vX[j], t2, st0, t4))
        else:
            A('v_lshlrev_b32 %s, 4, v0' % t1)
            assert self.ndx % self.KS == 0
            A('s_mul_i32 %s, %s, %d' % (st0, wave, (self.ndx // self.KS) * self.x_stride))
            A('v_add_u32 v%d, %s, %s' % (self.vX[0], st0, t1))
        cw = self.wrow // 16
        bits = self.wswz_bits()
        A('s_mul_i32 %s, %s, %d' % (st0, wave, self.ndw * 64))
        A('v_add_u32 %s, %s, v0' % (t1, st0))
        for j in range(self.ndw):
            A('v_add_u32 %s, %d, %s' % (t2, j * 64, t1))
            if cw & (cw - 1) == 0:
                A('v_lshrrev_b32 %s, %d, %s' % (t3, log2(cw), t2))
                A('v_and_b32 %s, %d, %s' % (t4, cw - 1, t2))
            else:
                magic = (1 << 20) // cw + 1
                for p in range(self.nwi * 64):
                    assert (p * magic) >> 20 == p // cw
                A('s_mov_b32 %s, %d' % (st0, magic))
                A('v_mul_lo_u32 %s, %s, %s' % (t3, t2, st0))
                A('v_lshrrev_b32 %s, 20, %s' % (t3, t3))
                A('v_mul_u32_u24 %s, %d, %s' % (t4, cw, t3))
                A('v_sub_u32 %s, %s, %s' % (t4, t2, t4))
            for kb, sb in bits:
                A('v_bfe_u32 %s, %s, %d, 1' % (t5, t3, kb))
                A('v_lshlrev_b32 %s, %d, %s' % (t5, sb + 1, t5))
                A('v_xor_b32 %s, %s, %s' % (t4, t4, t5))
            A('v_lshlrev_b32 %s, 4, %s' % (t4, t4))
            A('s_mov_b32 %s, %d' % (st0, self.w_stride))
            A('v_mad_u32_u24 v%d, %s, %s, %s' % (self.vW[j], t3, st0, t4))
        A('s_mul_i32 s%d, %s, %d' % (s['xslot'], wave, self.ndx * 1024))
        if self.xbase:
            A('s_add_u32 s%d, s%d, %d' % (s['xslot'], s['xslot'], self.xbase))
        A('s_mul_i32 s%d, %s, %d' % (s['wslot'], wave, self.ndw * 1024))
        A('s_add_u32 s%d, s%d, %d' % (s['wslot'], s['wslot'], self.wbase))
        for k in ('xtrk', 'wtrk', 'xrd', 'wrd', 'xn', 'wn', 'cnt'):
            A('s_mov_b32 s%d, 0' % s[k])
        return P

    def setup_read(self, t=(1, 2, 3, 4, 5, 6)):
        s = self.s
        P = []
        A = lambda x: P.append(I(x))
        t1, t2, t3, t4, t5, t6 = ['v%d' % i for i in t]
        st0, st1 = 's%d' % s['t0'], 's%d' % s['t1']
        if self.xtype == 'rowk':
            A('v_and_b32 %s, 15, v0' % t1)
            A('s_mul_i32 %s, s%d, %d' % (st0, s['wx'], self.nxb * 16 * self.xrow))
            if self.xbase:
                A('s_add_u32 %s, %s, %d' % (st0, st0, self.xbase))
            A('v_lshlrev_b32 %s, %d, %s' % (t1, log2(self.xrow), t1))
            A('v_add_u32 %s, %s, %s' % (t1, st0, t1))
            A('v_lshrrev_b32 %s, 4, v0' % t2)
            if self.BK == 64:
                A('v_bfe_u32 %s, v0, 1, 3' % t3)
            else:
                A('v_bfe_u32 %s, v0, 2, 2' % t3)
                A('v_sub_u32 %s, 0, %s' % (t3, t3))
                A('v_and_b32 %s, 3, %s' % (t3, t3))
            A('v_xor_b32 %s, %s, %s' % (t2, t2, t3))
            A('v_lshlrev_b32 %s, 4, %s' % (t2, t2))
            for kk in range(self.KS):
                A('v_xor_b32 %s, %d, %s' % (t3, kk * 64, t2))
                A('v_add_u32 v%d, %s, %s' % (self.aX[kk], t1, t3))
        else:
            A('v_lshlrev_b32 %s, 4, v0' % t1)
            A('s_mul_i32 %s, s%d, %d' % (st0, s['wx'], self.nxb * self.KS * 1024))
            if self.xbase:
                A('s_add_u32 %s, %s, %d' % (st0, st0, self.xbase))
            A('v_add_u32 v%d, %s, %s' % (self.aX[0], st0, t1))
        A('v_bfe_u32 %s, v0, 2, 2' % t1)
        A('v_lshrrev_b32 %s, 4, v0' % t2)
        A('v_lshlrev_b32 %s, %d, %s' % (t2, 2 if self.kperm else 3, t2))
        A('v_add_u32 %s, %s, %s' % (t2, t2, t1))
        A('v_mov_b32 %s, 0' % t4)
        for kb, sb in self.wswz_bits():
            A('v_bfe_u32 %s, %s, %d, 1' % (t5, t2, kb))
            A('v_lshl_or_b32 %s, %s, %d, %s' % (t4, t5, sb, t4))
        A('v_mul_u32_u24 %s, %d, %s' % (t2, self.wrow, t2))
        A('v_and_b32 %s, 3, v0' % t3)
        A('v_lshlrev_b32 %s, 3, %s' % (t3, t3))
        A('v_add_u32 %s, %s, %s' % (t2, t2, t3))
        A('v_add_u32 %s, %d, %s' % (t2, self.wbase, t2))
        A('s_mul_i32 %s, s%d, %d' % (st0, s['ww'], self.nwb))
        for wb in range(self.nwb):
            A('s_add_u32 %s, %s, %d' % (st1, st0, wb))
            A('v_xor_b32 %s, %s, %s' % (t3, st1, t4))
            A('v_lshl_add_u32 v%d, %s, 5, %s' % (self.aW[wb], t3, t2))
        return P

    def dma_group(self, which, tag=None):
        s = self.s
        if which == 'X':
            srd, off, slot, n, sz, trk, nd, slotsz, ns = s['xsrd'], s['xoff'], s['xslot'], s['xn'], s['szx'], s['xtrk'], self.ndx, self.xsz, self.nX
            step = self.x_kstep if self.x_kstep is not None else (self.BK * 2 if self.xtype == 'rowk' else self.KS * 1024)
        else:
            srd, off, slot, n, sz, trk, nd, slotsz, ns = s['wsrd'], s['woff'], s['wslot'], s['wn'], s['szw'], s['wtrk'], self.ndw, self.wsz, self.nW
            step = self.BK * self.w_stride
        pre = [I('s_cmp_lt_u32 s%d, %d' % (n, self.T)), I('s_cselect_b32 s%d, s%d, 0' % (srd + 2, sz))]
        body = []
        for j in range(nd):
            m = [I('s_add_u32 m0, s%d, %d' % (slot, j * 1024))]
            if which == 'X' and self.xtype == 'frag':
                go = (j // self.KS) * self.x_stride + (j % self.KS) * 1024
                if go:
                    m.append(I('s_add_u32 s%d, s%d, %d' % (s['t2'], off, go)))
                    so = s['t2']
                else:
                    so = off
                d = I('buffer_load_dwordx4 v%d, s[%d:%d], s%d offen lds' % (self.vX[0], srd, srd + 3, so), tag=tag or which)
            else:
                vv = self.vX if which == 'X' else self.vW
                d = I('buffer_load_dwordx4 v%d, s[%d:%d], s%d offen lds' % (vv[j], srd, srd + 3, off), tag=tag or which)
            body.append((m, d))
        post = [[I('s_add_u32 s%d, s%d, %d' % (off, off, step)), I('s_add_u32 s%d, s%d, 1' % (n, n))],
                [I('s_cmp_eq_u32 s%d, %d' % (trk, ns - 1)),
                 I('s_cselect_b32 s%d, %d, %d' % (s['t3'], -(ns - 1), 1))],
                [I('s_add_u32 s%d, s%d, s%d' % (trk, trk, s['t3'])),
                 I('s_mul_i32 s%d, s%d, %d' % (s['t3'], s['t3'], slotsz))],
                [I('s_add_u32 s%d, s%d, s%d' % (slot, slot, s['t3']))]]
        return pre, body, post

    def emit_group(self, which):
        pre, body, post = self.dma_group(which)
        P = list(pre)
        for m, d in body:
            P += m + [d]
        for p in post:
            P += p
        return P

    def reads(self, kk, st):
        if self.xtype == 'rowk':
            rx = [I('ds_read_b128 %s, v%d offset:%d' % (self.fX[st][b].r(0, 4), self.aX[kk], b * 16 * self.xrow)) for b in range(self.nxb)]
        else:
            rx = [I('ds_read_b128 %s, v%d offset:%d' % (self.fX[st][b].r(0, 4), self.aX[0], (b * self.KS + kk) * 1024)) for b in range(self.nxb)]
        rw = []
        for b in range(self.nwb):
            for h in range(2):
                ro = 32 * kk + (16 if self.kperm else 4) * h
                rw.append(I('ds_read_b64_tr_b16 %s, v%d offset:%d' % (self.fW[st][b].r(2 * h, 2), self.aW[b], ro * self.wrow)))
        return [rx[0]] + rw + rx[1:]

    def mfmas(self, st, zero=False):
        L = []
        for x in range(self.nxb):
            for w in range(self.nwb):
                xa, wa = self.fX[st][x].r(0, 4), self.fW[st][w].r(0, 4)
                a, b = (wa, xa) if self.swap else (xa, wa)
                c = self.acc[x][w].r(0, 4)
                L.append(I('%s %s, %s, %s, %s' % (MF, c, a, b, '0' if zero else c)))
        return L

    def order(self):
        return ['W', 'X'] if self.nX >= self.nW else ['X', 'W']

    def vm_at_barrier(self):
        seq = []
        for it in range(-8, 0):
            for wch in self.order():
                seq.append((wch, it + (self.nX if wch == 'X' else self.nW)))
        last = max(i for i, (wch, off) in enumerate(seq) if off <= 1)
        n = 0
        for wch, off in seq[last + 1:]:
            n += self.ndx if wch == 'X' else self.ndw
        return n

    def body(self, lab):
        s = self.s
        nm, KS = self.nm, self.KS
        reps = 2 if KS == 1 else 1
        assert KS == 1 or KS % 2 == 0
        out = [I(lab + ':')]
        n3 = None
        nrd = len(self.reads(0, 0))
        span = max(1, int(nm * self.rd_span))
        lastrd = min(nm - 1, (nrd - 1) * span // nrd)
        for rep in range(reps):
            NG = KS * nm
            head = [[] for _ in range(NG)]
            gaps = [[] for _ in range(NG)]
            pre_gap = [[] for _ in range(NG)]
            bar = (KS - 1) * nm
            for stp in range(KS):
                cur = (stp + rep) % 2
                rl = self.reads((stp + 1) % KS, 1 - cur)
                for i, r in enumerate(rl):
                    gaps[stp * nm + min(nm - 1, i * span // nrd)].append(r)
                pre_gap[stp * nm].append(I('s_waitcnt lgkmcnt(0)'))
            upd = [[I('s_cmp_eq_u32 s%d, %d' % (s['xrd'], self.nX - 1)), I('s_cselect_b32 s%d, %d, %d' % (s['t0'], -(self.nX - 1), 1))],
                   [I('s_add_u32 s%d, s%d, s%d' % (s['xrd'], s['xrd'], s['t0'])), I('s_mul_i32 s%d, s%d, %d' % (s['t0'], s['t0'], self.xsz))],
                   [I('s_cmp_eq_u32 s%d, %d' % (s['wrd'], self.nW - 1)), I('s_cselect_b32 s%d, %d, %d' % (s['t1'], -(self.nW - 1), 1))],
                   [I('s_add_u32 s%d, s%d, s%d' % (s['wrd'], s['wrd'], s['t1'])), I('s_mul_i32 s%d, s%d, %d' % (s['t1'], s['t1'], self.wsz))]]
            updv = [I('v_add_u32 v%d, s%d, v%d' % (a, s['t0'], a)) for a in self.aX]
            updv += [I('v_add_u32 v%d, s%d, v%d' % (a, s['t1'], a)) for a in self.aW]
            ub = max(0, KS - 2) * nm
            for i, u in enumerate(upd):
                gaps[ub + min(nm - 1, (1 + 2 * i) if nm > 8 else i)].extend(u)
            room = nm - 1 - lastrd
            for i, u in enumerate(updv):
                g = lastrd + 1 + (i * room // len(updv)) if room > 0 else nm - 1
                gaps[ub + min(max(g, 7 if nm > 8 else 3), nm - 1)].append(u)
            pre_gap[bar] = [I('s_waitcnt vmcnt(%d) lgkmcnt(0)' % min(63, self.vm_at_barrier())), I('s_barrier')]
            seq = self.dma_seq()
            tot = int(NG * self.dma_span)
            cnt3 = 0
            prev = -1
            for i, (m, d, post) in enumerate(seq):
                gi = bar + i * tot // len(seq)
                gg = gi % NG
                if gi < NG:
                    cnt3 += 1
                if gi > bar and gg != 0 and gi > prev:
                    gaps[gg - 1].extend(m)
                    head[gg].append(d)
                else:
                    head[gg].extend(m + [d])
                prev = gi
                nxt = (bar + (i + 1) * tot // len(seq)) if i + 1 < len(seq) else gi + 6
                lim = min(nxt - 1, (NG - 1) if gi < NG else NG + bar)
                for q, pp in enumerate(post):
                    gq = min(gi + 1 + q, lim - 1)
                    if gq <= gi:
                        head[gg].extend(pp)
                    else:
                        gaps[gq % NG].extend(pp)
            n3 = cnt3
            ms = []
            for stp in range(KS):
                ms += self.mfmas((stp + rep) % 2)
            gaps[NG - 1].append(I('s_add_u32 s%d, s%d, 1' % (s['cnt'], s['cnt'])))
            gaps[NG - 1].append(I('s_cmp_lt_u32 s%d, %d' % (s['cnt'], self.T)))
            if rep == reps - 1:
                gaps[NG - 1].append(I('s_cbranch_scc1 %s' % lab))
            else:
                gaps[NG - 1].append(I('s_cbranch_scc0 %s_x' % lab))
            for g in range(NG):
                out.extend(pre_gap[g])
                out.append(ms[g])
                out.extend(head[g])
                out.extend(gaps[g])
        if reps == 2:
            out.append(I(lab + '_x:'))
        self.n3 = n3
        return out

    def dma_seq(self):
        seq = []
        for which in self.order():
            pre, body, post = self.dma_group(which)
            for j, (m, d) in enumerate(body):
                seq.append(((pre if j == 0 else []) + m, d, post if j == len(body) - 1 else []))
        return seq

    def prologue_dma(self):
        self.body('dummy')
        P = []
        cnt_after = 0
        P += self.emit_group('X')
        P += self.emit_group('W')
        nx, nw = 1, 1
        while nx < self.nX - 1 or nw < self.nW - 1:
            if nx < self.nX - 1:
                P += self.emit_group('X')
                nx += 1
                cnt_after += self.ndx
            if nw < self.nW - 1:
                P += self.emit_group('W')
                nw += 1
                cnt_after += self.ndw
        for (m, d, post) in self.dma_seq()[:self.n3]:
            P += m + [d]
            for pp in post:
                P += pp
            cnt_after += 1
        return P, cnt_after

    def zero_acc(self):
        P = []
        for x in range(self.nxb):
            for w in range(self.nwb):
                a = self.acc[x][w]
                for r in range(4):
                    P.append(I(('v_accvgpr_write_b32 %s, 0' if a.kind == 'a' else 'v_mov_b32 %s, 0') % a.r(r)))
        return P

    def run(self, lab, between=None):
        P = self.setup()
        pd, vm = self.prologue_dma()
        P += pd
        P += self.setup_read()
        P += self.zero_acc()
        if between:
            P += between
            vm += sum(1 for b in between if b.kind in ('vld', 'vst', 'dma'))
        P.append(I('s_waitcnt vmcnt(%d)' % min(vm, 63)))
        P.append(I('s_barrier'))
        P += self.reads(0, 0)
        if self.KS == 1:
            s = self.s
            P.append(I('s_mov_b32 s%d, 1' % s['xrd']))
            P.append(I('s_mov_b32 s%d, 1' % s['wrd']))
            for a in self.aX:
                P.append(I('v_add_u32 v%d, %d, v%d' % (a, self.xsz, a)))
            for a in self.aW:
                P.append(I('v_add_u32 v%d, %d, v%d' % (a, self.wsz, a)))
        P += self.body(lab)
        return P
```

```python
from asmlib import *
from engine import *

MB = 1 << 20
WS_K, WS_V, WS_Q, WS_CTX, WS_Z2N, WS_H, WS_PART = 0, 16 * MB, 32 * MB, 48 * MB, 64 * MB, 68 * MB, 72 * MB
P_X, P_CKV, P_WQ, P_WUK, P_WUV, P_WO, P_BX, P_WIN, P_WSP, P_BSP, P_WOUT, P_GATE, P_OUT, P_DBG, P_WS = [40 + 2 * i for i in range(15)]

S = dict(xsrd=8, wsrd=12, osrd=16, xoff=20, woff=21, xslot=22, wslot=23, xtrk=24, wtrk=25, xrd=26, wrd=27, cnt=28,
         xn=29, wn=30, t0=31, t1=32, t2=33, t3=34, wave=35, wx=36, ww=37, szx=38, szw=39)
J0 = 70

LOG2E = 1.4426950408889634


def f2u(x):
    import struct
    return struct.unpack('<I', struct.pack('<f', x))[0]


def entry(nwg, endlab):
    P = []
    A = lambda x: P.append(I(x))
    A('s_cmp_ge_u32 s2, %d' % nwg)
    A('s_cbranch_scc1 %s' % endlab)
    A('s_load_dwordx16 s[40:55], s[0:1], 0')
    A('s_load_dwordx8 s[56:63], s[0:1], 64')
    A('s_load_dwordx4 s[64:67], s[0:1], 96')
    A('s_load_dwordx2 s[68:69], s[0:1], 112')
    A('v_lshrrev_b32 v1, 6, v0')
    A('v_readfirstlane_b32 s%d, v1' % S['wave'])
    A('v_and_b32 v0, 63, v0')
    return P


def srd(dst, ptr, size, off=0, szreg=None):
    P = []
    if off:
        P.append(I('s_add_u32 s%d, s%d, %d' % (dst, ptr, off)))
        P.append(I('s_addc_u32 s%d, s%d, 0' % (dst + 1, ptr + 1)))
    else:
        P.append(I('s_mov_b32 s%d, s%d' % (dst, ptr)))
        P.append(I('s_mov_b32 s%d, s%d' % (dst + 1, ptr + 1)))
    P.append(I('s_mov_b32 s%d, %d' % (dst + 2, size)))
    P.append(I('s_mov_b32 s%d, 0x20000' % (dst + 3)))
    if szreg is not None:
        P.append(I('s_mov_b32 s%d, %d' % (szreg, size)))
    return P


def alloc(nacc, nfrag, vstart=40):
    vfree = list(range(vstart, 256, 4))
    afree = list(range(256, 512, 4))
    frags = []
    for i in range(nfrag):
        frags.append(afree.pop(0))
    accs = []
    for i in range(nacc):
        accs.append(vfree.pop(0) if vfree else afree.pop(0))
    return accs, frags


class Packer:
    def __init__(self, temps):
        self.temps = temps
        self.k = 0

    def pack(self, ta, tb, scale=None):
        P = []
        src = []
        tmp = None
        if ta.kind == 'a' or tb.kind == 'a':
            tmp = self.temps[self.k % len(self.temps)]
            self.k += 1
        for u, t in enumerate((ta, tb)):
            if t.kind == 'a':
                for r in range(4):
                    P.append(I('v_accvgpr_read_b32 v%d, %s' % (tmp + 4 + 4 * u + r, t.r(r))))
                src += [tmp + 4 + 4 * u + r for r in range(4)]
            else:
                src += [t.base + r for r in range(4)]
        if scale is not None:
            for r in src:
                P.append(I('v_mul_f32 v%d, %s, v%d' % (r, scale, r)))
        dst = ta.base if ta.kind == 'v' else tmp
        for r in range(4):
            P.append(I('v_cvt_pk_bf16_f32 v%d, v%d, v%d' % (dst + r, src[2 * r], src[2 * r + 1])))
        return P, dst


def store4(dst, va, soff_reg, base_reg, off, flags=''):
    P = []
    hi, lo = off & ~4095, off & 4095
    if hi:
        P.append(I('s_add_u32 s%d, s%d, %d' % (soff_reg, base_reg, hi)))
        so = soff_reg
    else:
        so = base_reg
    P.append(I('buffer_store_dwordx4 v[%d:%d], v%d, s[%d:%d], s%d offen offset:%d %s' % (
        dst, dst + 3, va, S['osrd'], S['osrd'] + 3, so, lo, flags)))
    return P


def job_kv(lab, sSB, sH, sKV, stflags=''):
    P = []
    A = lambda x: P.append(I(x))
    accs, frags = alloc(64, 32)
    gK = Gemm('k', 256, 256, 2, 2, 16, 'rowk', 2048, 8192, True, 3, 2, S, 8, accs, frags)
    gV = Gemm('v', 256, 256, 2, 2, 16, 'rowk', 2048, 8192, False, 3, 2, S, 8, accs, frags)
    P += srd(S['xsrd'], P_CKV, 4 * MB, szreg=S['szx'])
    A('s_cmp_eq_u32 s%d, 0' % sKV)
    A('s_cselect_b32 s%d, s%d, s%d' % (S['wsrd'], P_WUK, P_WUV))
    A('s_cselect_b32 s%d, s%d, s%d' % (S['wsrd'] + 1, P_WUK + 1, P_WUV + 1))
    A('s_mov_b32 s%d, %d' % (S['wsrd'] + 2, 8 * MB))
    A('s_mov_b32 s%d, 0x20000' % (S['wsrd'] + 3))
    A('s_mov_b32 s%d, %d' % (S['szw'], 8 * MB))
    A('s_lshl_b32 s%d, s%d, 19' % (S['xoff'], sSB))
    A('s_lshl_b32 s%d, s%d, 9' % (S['woff'], sH))
    full = gK.run(lab + '_k')
    body = gK.body(lab + '_k')
    P += full[:len(full) - len(body)]
    P += srd(S['osrd'], P_WS, 32 * MB)
    A('s_cmp_eq_u32 s%d, 1' % sKV)
    A('s_cbranch_scc1 %s_V' % lab)
    t0, t1, tb = S['t0'], S['t1'], S['t2']
    P += body
    A('v_lshlrev_b32 v1, 4, v0')
    A('s_lshl_b32 s%d, s%d, 4' % (t0, sSB))
    A('s_lshl_b32 s%d, s%d, 3' % (t1, S['wx']))
    A('s_add_u32 s%d, s%d, s%d' % (t0, t0, t1))
    A('s_lshl_b32 s%d, s%d, 13' % (t0, t0))
    A('s_lshl_b32 s%d, s%d, 12' % (t1, S['ww']))
    A('s_add_u32 s%d, s%d, s%d' % (t0, t0, t1))
    A('s_lshl_b32 s%d, s%d, 20' % (t1, sH))
    A('s_add_u32 s%d, s%d, s%d' % (tb, t0, t1))
    pk = Packer([8, 20])
    for x in range(8):
        for p in range(4):
            ins, d = pk.pack(gK.acc[x][2 * p], gK.acc[x][2 * p + 1])
            P += ins + store4(d, 1, t0, tb, x * 8192 + p * 1024, stflags)
    A('s_branch %s_done' % lab)
    A('%s_V:' % lab)
    P += gV.body(lab + '_v')
    A('v_lshlrev_b32 v1, 4, v0')
    A('s_lshl_b32 s%d, s%d, 3' % (t0, sSB))
    A('s_lshl_b32 s%d, s%d, 2' % (t1, S['wx']))
    A('s_add_u32 s%d, s%d, s%d' % (t0, t0, t1))
    A('s_lshl_b32 s%d, s%d, 14' % (t0, t0))
    A('s_lshl_b32 s%d, s%d, 13' % (t1, S['ww']))
    A('s_add_u32 s%d, s%d, s%d' % (t0, t0, t1))
    A('s_lshl_b32 s%d, s%d, 20' % (t1, sH))
    A('s_add_u32 s%d, s%d, s%d' % (t0, t0, t1))
    A('s_add_u32 s%d, s%d, %d' % (tb, t0, WS_V))
    for p in range(4):
        for w in range(8):
            ins, d = pk.pack(gV.acc[2 * p][w], gV.acc[2 * p + 1][w])
            P += ins + store4(d, 1, t0, tb, p * 16384 + w * 1024, stflags)
    A('%s_done:' % lab)
    return P, gK.lds_end


def job_q(lab, sQB, sH, stflags=''):
    P = []
    A = lambda x: P.append(I(x))
    accs, frags = alloc(32, 24)
    g = Gemm('q', 128, 256, 2, 2, 7, 'rowk', 896, 8192, True, 4, 3, S, 8, accs, frags)
    P += srd(S['xsrd'], P_X, 2048 * 896, szreg=S['szx'])
    P += srd(S['wsrd'], P_WQ, 448 * 8192, szreg=S['szw'])
    A('s_mul_i32 s%d, s%d, %d' % (S['xoff'], sQB, 128 * 896))
    A('s_lshl_b32 s%d, s%d, 9' % (S['woff'], sH))
    P += g.run(lab + '_q')
    P += srd(S['osrd'], P_WS, 16 * MB, off=WS_Q)
    t0, t1, tb = S['t0'], S['t1'], S['t2']
    A('v_lshlrev_b32 v1, 4, v0')
    A('s_lshl_b32 s%d, s%d, 3' % (t0, sQB))
    A('s_lshl_b32 s%d, s%d, 2' % (t1, S['wx']))
    A('s_add_u32 s%d, s%d, s%d' % (t0, t0, t1))
    A('s_lshl_b32 s%d, s%d, 13' % (t0, t0))
    A('s_lshl_b32 s%d, s%d, 12' % (t1, S['ww']))
    A('s_add_u32 s%d, s%d, s%d' % (t0, t0, t1))
    A('s_lshl_b32 s%d, s%d, 20' % (t1, sH))
    A('s_add_u32 s%d, s%d, s%d' % (tb, t0, t1))
    A('s_mov_b32 s%d, 0x%x' % (t1, f2u(LOG2E / 16)))
    pk = Packer([8, 20])
    for x in range(4):
        for p in range(4):
            ins, d = pk.pack(g.acc[x][2 * p], g.acc[x][2 * p + 1], scale='s%d' % t1)
            P += ins + store4(d, 1, t0, tb, x * 8192 + p * 1024, stflags)
    return P, g.lds_end


GC0 = -2.0 * LOG2E * 0.7978845608028654
GC1 = GC0 * 0.044715


def gelu_regs(regs, sC0, sC1, tmps):
    P = []
    n = len(tmps)
    for i0 in range(0, len(regs), n):
        grp = list(zip(regs[i0:i0 + n], tmps))
        for x, t in grp:
            P.append(I('v_mul_f32 v%d, v%d, v%d' % (t, x, x)))
        for x, t in grp:
            P.append(I('v_mul_f32 v%d, s%d, v%d' % (t, sC1, t)))
        for x, t in grp:
            P.append(I('v_add_f32 v%d, s%d, v%d' % (t, sC0, t)))
        for x, t in grp:
            P.append(I('v_mul_f32 v%d, v%d, v%d' % (t, t, x)))
        for x, t in grp:
            P.append(I('v_exp_f32 v%d, v%d' % (t, t)))
        for x, t in grp:
            P.append(I('v_add_f32 v%d, 1.0, v%d' % (t, t)))
        for x, t in grp:
            P.append(I('v_rcp_f32 v%d, v%d' % (t, t)))
        for x, t in grp:
            P.append(I('v_mul_f32 v%d, v%d, v%d' % (x, x, t)))
    return P


def xlane_reduce(reg, tmp, op):
    return [I('v_mov_b32 v%d, v%d' % (tmp, reg)), I('v_permlane32_swap_b32 v%d, v%d' % (reg, tmp)),
            I('%s v%d, v%d, v%d' % (op, reg, reg, tmp)),
            I('v_mov_b32 v%d, v%d' % (tmp, reg)), I('v_permlane16_swap_b32 v%d, v%d' % (reg, tmp)),
            I('%s v%d, v%d, v%d' % (op, reg, reg, tmp))]


def job_z2(lab, sRB, stflags=''):
    P = []
    A = lambda x: P.append(I(x))
    accs, frags = alloc(56, 36)
    g = Gemm('z', 64, 896, 1, 4, 14, 'rowk', 896, 3584, True, 4, 2, S, 8, accs, frags, BK=32)
    assert g.vend <= 40
    P += srd(S['xsrd'], P_X, 2048 * 896, szreg=S['szx'])
    P += srd(S['wsrd'], P_WIN, 448 * 3584, szreg=S['szw'])
    A('s_mul_i32 s%d, s%d, %d' % (S['xoff'], sRB, 64 * 896))
    A('s_mov_b32 s%d, 1792' % S['woff'])
    P += g.run(lab + '_z')
    P += srd(S['osrd'], P_WS, 2048 * 1792, off=WS_Z2N)
    t0, t1, t2, t3 = S['t0'], S['t1'], S['t2'], S['t3']
    tiles = {}
    free = [8, 12]
    for x in range(4):
        for w in range(14):
            t = g.acc[x][w]
            if t.kind == 'a':
                b = free.pop(0)
                for r in range(4):
                    A('v_accvgpr_read_b32 v%d, %s' % (b + r, t.r(r)))
                tiles[x, w] = b
            else:
                tiles[x, w] = t.base
    A('s_mov_b32 s%d, 0x%x' % (t0, f2u(GC0)))
    A('s_mov_b32 s%d, 0x%x' % (t1, f2u(GC1)))
    tm = [16, 17, 18, 19, 20, 21, 22, 23]
    rows = {x: [tiles[x, w] + r for w in range(14) for r in range(4)] for x in range(4)}
    mean, rstd = [24, 25, 26, 27], [28, 29, 30, 31]

    def wg_reduce(regs4, ldsoff):
        Q = []
        for x in range(4):
            Q += xlane_reduce(regs4[x], 16 + x, 'v_add_f32')
        Q.append(I('v_and_b32 v2, 15, v0'))
        Q.append(I('v_lshlrev_b32 v2, 2, v2'))
        Q.append(I('s_lshl_b32 s%d, s%d, 8' % (t2, S['wave'])))
        Q.append(I('v_add_u32 v3, s%d, v2' % t2))
        for x in range(4):
            Q.append(I('ds_write_b32 v3, v%d offset:%d' % (regs4[x], ldsoff + x * 64)))
        Q.append(I('s_waitcnt lgkmcnt(0)'))
        Q.append(I('s_barrier'))
        for x in range(4):
            for w in range(4):
                Q.append(I('ds_read_b32 v%d, v2 offset:%d' % (32 + w, ldsoff + w * 256 + x * 64)))
            Q.append(I('v_add_f32 v32, v32, v33'))
            Q.append(I('v_add_f32 v34, v34, v35'))
            Q.append(I('v_add_f32 v%d, v32, v34' % regs4[x]))
        return Q

    A('s_waitcnt vmcnt(0) lgkmcnt(0)')
    A('s_barrier')
    for x in range(4):
        P += gelu_regs(rows[x], t0, t1, tm)
        A('v_add_f32 v%d, v%d, v%d' % (mean[x], rows[x][0], rows[x][1]))
        for r in rows[x][2:]:
            A('v_add_f32 v%d, v%d, v%d' % (mean[x], mean[x], r))
    P += wg_reduce(mean, 0)
    A('s_mov_b32 s%d, 0x%x' % (t0, f2u(1.0 / 896)))
    for x in range(4):
        A('v_mul_f32 v%d, s%d, v%d' % (mean[x], t0, mean[x]))
    for x in range(4):
        for r in rows[x]:
            A('v_sub_f32 v%d, v%d, v%d' % (r, r, mean[x]))
        A('v_mul_f32 v%d, v%d, v%d' % (rstd[x], rows[x][0], rows[x][0]))
        for r in rows[x][1:]:
            A('v_fmac_f32 v%d, v%d, v%d' % (rstd[x], r, r))
    P += wg_reduce(rstd, 2048)
    A('s_mov_b32 s%d, 0x%x' % (t1, f2u(1e-5)))
    for x in range(4):
        A('v_mov_b32 v16, s%d' % t1)
        A('v_fmac_f32 v16, s%d, v%d' % (t0, rstd[x]))
        A('v_rsq_f32 v%d, v16' % rstd[x])
    A('v_and_b32 v2, 15, v0')
    A('v_mul_u32_u24 v2, 1792, v2')
    A('v_bfe_u32 v3, v0, 4, 1')
    A('v_lshl_add_u32 v2, v3, 5, v2')
    A('v_lshrrev_b32 v3, 5, v0')
    A('v_lshl_add_u32 v1, v3, 4, v2')
    A('s_mul_i32 s%d, s%d, %d' % (t2, sRB, 64 * 1792))
    A('s_mul_i32 s%d, s%d, 448' % (t3, S['wave']))
    A('s_add_u32 s%d, s%d, s%d' % (t2, t2, t3))
    for x in range(4):
        for p in range(7):
            a, b = tiles[x, 2 * p], tiles[x, 2 * p + 1]
            d = 32 + 4 * ((x * 7 + p) % 2)
            for r in range(4):
                A('v_mul_f32 v%d, v%d, v%d' % (a + r, rstd[x], a + r))
                A('v_mul_f32 v%d, v%d, v%d' % (b + r, rstd[x], b + r))
            A('v_cvt_pk_bf16_f32 v%d, v%d, v%d' % (a, a, a + 1))
            A('v_cvt_pk_bf16_f32 v%d, v%d, v%d' % (a + 1, a + 2, a + 3))
            A('v_cvt_pk_bf16_f32 v%d, v%d, v%d' % (a + 2, b, b + 1))
            A('v_cvt_pk_bf16_f32 v%d, v%d, v%d' % (a + 3, b + 2, b + 3))
            A('v_permlane16_swap_b32 v%d, v%d' % (a, a + 2))
            A('v_permlane16_swap_b32 v%d, v%d' % (a + 1, a + 3))
            P += store4(a, 1, t3, t2, x * 16 * 1792 + p * 64, stflags)
    return P, g.lds_end


def job_gh(lab, sTB, sFB, stflags='', wait_z2=None):
    P = []
    A = lambda x: P.append(I(x))
    accs, frags = alloc(16, 12)
    g1 = Gemm('z1', 128, 64, 2, 2, 7, 'rowk', 896, 3584, True, 6, 6, S, 8, accs[:8], frags)
    g2 = Gemm('g', 128, 64, 2, 2, 32, 'rowk', 4096, 1792, True, 6, 6, S, 8, accs[8:], frags)
    P += srd(S['xsrd'], P_X, 2048 * 896, szreg=S['szx'])
    P += srd(S['wsrd'], P_WIN, 448 * 3584, szreg=S['szw'])
    A('s_mul_i32 s%d, s%d, %d' % (S['xoff'], sTB, 128 * 896))
    A('s_lshl_b32 s%d, s%d, 7' % (S['woff'], sFB))
    P += g1.run(lab + '_z1')
    A('s_waitcnt vmcnt(0) lgkmcnt(0)')
    A('s_barrier')
    if wait_z2:
        P += wait_z2
    P += srd(S['xsrd'], P_WSP, 8 * MB, szreg=S['szx'])
    P += srd(S['wsrd'], P_WS, 2048 * 1792, off=WS_Z2N, szreg=S['szw'])
    A('s_lshl_b32 s%d, s%d, 19' % (S['xoff'], sTB))
    A('s_lshl_b32 s%d, s%d, 7' % (S['woff'], sFB))
    B = []
    t0, t1, t2, t3 = S['t0'], S['t1'], S['t2'], S['t3']
    B += srd(S['osrd'], P_BSP, 4096)
    B.append(I('v_and_b32 v1, 15, v0'))
    B.append(I('s_lshl_b32 s%d, s%d, 7' % (t0, sTB)))
    B.append(I('s_lshl_b32 s%d, s%d, 6' % (t1, S['wx'])))
    B.append(I('s_add_u32 s%d, s%d, s%d' % (t0, t0, t1)))
    B.append(I('v_add_lshl_u32 v1, s%d, v1, 1' % t0))
    bias = [120, 121, 122, 123]
    for x in range(4):
        B.append(I('buffer_load_ushort v%d, v1, s[%d:%d], 0 offen offset:%d' % (bias[x], S['osrd'], S['osrd'] + 3, x * 32)))
    B.append(I('s_mov_b32 s%d, 0x%x' % (t0, f2u(GC0))))
    B.append(I('s_mov_b32 s%d, 0x%x' % (t1, f2u(GC1))))
    z1 = [g1.acc[x][w].base + r for x in range(4) for w in range(2) for r in range(4)]
    B += gelu_regs(z1, t0, t1, list(range(124, 132)))
    P += g2.run(lab + '_g', between=B)
    for x in range(4):
        A('v_lshlrev_b32 v%d, 16, v%d' % (bias[x], bias[x]))
    P += srd(S['osrd'], P_WS, 128 * 28 * 1024, off=WS_H)
    A('v_lshlrev_b32 v1, 4, v0')
    A('s_lshl_b32 s%d, s%d, 3' % (t0, sTB))
    A('s_lshl_b32 s%d, s%d, 2' % (t1, S['wx']))
    A('s_add_u32 s%d, s%d, s%d' % (t0, t0, t1))
    A('s_mul_i32 s%d, s%d, 28' % (t0, t0))
    A('s_lshl_b32 s%d, s%d, 1' % (t1, sFB))
    A('s_add_u32 s%d, s%d, s%d' % (t0, t0, t1))
    A('s_add_u32 s%d, s%d, s%d' % (t0, t0, S['ww']))
    A('s_lshl_b32 s%d, s%d, 10' % (t2, t0))
    pk = Packer([8, 20])
    for x in range(4):
        for w in range(2):
            for r in range(4):
                a = g2.acc[x][w].base + r
                A('v_add_f32 v%d, v%d, v%d' % (a, bias[x], a))
                A('v_mul_f32 v%d, v%d, v%d' % (a, g1.acc[x][w].base + r, a))
        ins, d = pk.pack(g2.acc[x][0], g2.acc[x][1])
        P += ins + store4(d, 1, t0, t2, x * 28 * 1024, stflags)
    return P, g2.lds_end


def job_fin(lab, sTB, sMB):
    P = []
    A = lambda x: P.append(I(x))
    accs, frags = alloc(8, 8)
    g1 = Gemm('fa', 64, 64, 2, 2, 32, 'frag', 128 * 1024, 896, True, 5, 5, S, 8, accs[:4], frags, BK=128, kperm=True)
    g2 = Gemm('fb', 64, 64, 2, 2, 7, 'frag', 28 * 1024, 896, True, 5, 5, S, 8, accs[4:], frags, BK=128, kperm=True)
    t0, t1, t2, t3 = S['t0'], S['t1'], S['t2'], S['t3']
    P += srd(S['xsrd'], P_WS, 128 * 28 * 1024, off=WS_H, szreg=S['szx'])
    P += srd(S['wsrd'], P_WOUT, 896 * 896, szreg=S['szw'])
    A('s_mul_i32 s%d, s%d, %d' % (S['xoff'], sTB, 4 * 28 * 1024))
    A('s_lshl_b32 s%d, s%d, 7' % (S['woff'], sMB))
    B = []
    b = lambda x: B.append(I(x))
    B += srd(S['osrd'], P_X, 2048 * 896)
    B += srd(4, P_GATE, 896)
    b('v_and_b32 v1, 15, v0')
    b('s_lshl_b32 s%d, s%d, 6' % (t0, sTB))
    b('s_lshl_b32 s%d, s%d, 5' % (t1, S['wx']))
    b('s_add_u32 s%d, s%d, s%d' % (t0, t0, t1))
    b('v_add_u32 v1, s%d, v1' % t0)
    b('v_mul_u32_u24 v1, 896, v1')
    b('v_lshrrev_b32 v2, 4, v0')
    b('v_mul_u32_u24 v2, 224, v2')
    b('v_add_u32 v1, v1, v2')
    b('v_add_u32 v3, %d, v1' % (16 * 896))
    GW, X0, X1 = 80, 136, 192
    for i in range(14):
        b('buffer_load_dwordx4 v[%d:%d], v2, s[4:7], 0 offen offset:%d' % (GW + 4 * i, GW + 4 * i + 3, 16 * i))
    for i in range(14):
        b('buffer_load_dwordx4 v[%d:%d], v1, s[%d:%d], 0 offen offset:%d' % (X0 + 4 * i, X0 + 4 * i + 3, S['osrd'], S['osrd'] + 3, 16 * i))
        b('buffer_load_dwordx4 v[%d:%d], v3, s[%d:%d], 0 offen offset:%d' % (X1 + 4 * i, X1 + 4 * i + 3, S['osrd'], S['osrd'] + 3, 16 * i))
    gate = [76, 77]
    P += g2.run(lab + '_b', between=B)
    A('s_waitcnt vmcnt(0) lgkmcnt(0)')
    A('s_barrier')
    P += srd(S['xsrd'], P_WS, 16 * MB, off=WS_CTX, szreg=S['szx'])
    P += srd(S['wsrd'], P_WO, 4096 * 896, szreg=S['szw'])
    A('s_lshl_b32 s%d, s%d, 19' % (S['xoff'], sTB))
    A('s_lshl_b32 s%d, s%d, 7' % (S['woff'], sMB))
    B = []
    for x, X in enumerate((X0, X1)):
        b('v_mov_b32 v%d, 0' % gate[x])
        for i in range(56):
            b('v_dot2c_f32_bf16 v%d, v%d, v%d' % (gate[x], X + i, GW + i))
    b('s_nop 3')
    for x in range(2):
        B += xlane_reduce(gate[x], 78, 'v_add_f32')
        b('v_mul_f32 v%d, 0x%x, v%d' % (gate[x], f2u(-LOG2E), gate[x]))
        b('v_exp_f32 v%d, v%d' % (gate[x], gate[x]))
        b('v_add_f32 v%d, 1.0, v%d' % (gate[x], gate[x]))
        b('v_rcp_f32 v%d, v%d' % (gate[x], gate[x]))
        b('v_sub_f32 v%d, 1.0, v%d' % (72 + x, gate[x]))
    P += g1.run(lab + '_a', between=B)
    P += srd(S['osrd'], P_OUT, 2048 * 896)
    A('v_and_b32 v2, 15, v0')
    A('v_mul_u32_u24 v2, 896, v2')
    A('v_bfe_u32 v3, v0, 4, 1')
    A('v_lshl_add_u32 v2, v3, 5, v2')
    A('v_lshrrev_b32 v3, 5, v0')
    A('v_lshl_add_u32 v1, v3, 4, v2')
    A('s_lshl_b32 s%d, s%d, 6' % (t0, sTB))
    A('s_lshl_b32 s%d, s%d, 5' % (t1, S['wx']))
    A('s_add_u32 s%d, s%d, s%d' % (t0, t0, t1))
    A('s_mul_i32 s%d, s%d, 896' % (t0, t0))
    A('s_lshl_b32 s%d, s%d, 7' % (t1, sMB))
    A('s_add_u32 s%d, s%d, s%d' % (t0, t0, t1))
    A('s_lshl_b32 s%d, s%d, 6' % (t1, S['ww']))
    A('s_add_u32 s%d, s%d, s%d' % (t2, t0, t1))
    for x in range(2):
        for w in range(2):
            for r in range(4):
                a, bb = g1.acc[x][w].base + r, g2.acc[x][w].base + r
                A('v_mul_f32 v%d, v%d, v%d' % (a, gate[x], a))
                A('v_fmac_f32 v%d, v%d, v%d' % (a, 72 + x, bb))
        a, bb = g1.acc[x][0].base, g1.acc[x][1].base
        A('v_cvt_pk_bf16_f32 v%d, v%d, v%d' % (a, a, a + 1))
        A('v_cvt_pk_bf16_f32 v%d, v%d, v%d' % (a + 1, a + 2, a + 3))
        A('v_cvt_pk_bf16_f32 v%d, v%d, v%d' % (a + 2, bb, bb + 1))
        A('v_cvt_pk_bf16_f32 v%d, v%d, v%d' % (a + 3, bb + 2, bb + 3))
        A('v_permlane16_swap_b32 v%d, v%d' % (a, a + 2))
        A('v_permlane16_swap_b32 v%d, v%d' % (a + 1, a + 3))
        P += store4(a, 1, t0, t2, x * 16 * 896)
    return P, g1.lds_end
```

```python
import sys
from asmlib import *
from engine import *
from jobs import *
import attn

HDR = open('gated_mix__compressed_kv_cla__mixer_gmlp__prompt.s.ref').read().split('; Override')[0]


def k_kv(name):
    P = entry(256, 'L_end_' + name)
    A = lambda x: P.append(I(x))
    A('s_and_b32 s3, s2, 7')
    A('s_lshr_b32 s6, s2, 3')
    A('s_and_b32 s70, s6, 7')
    A('s_lshr_b32 s6, s6, 3')
    A('s_and_b32 s72, s6, 1')
    A('s_lshr_b32 s6, s6, 1')
    A('s_lshl_b32 s3, s3, 1')
    A('s_add_u32 s71, s3, s6')
    A('s_waitcnt lgkmcnt(0)')
    J, lds = job_kv('kv', 70, 71, 72)
    P += J
    A('L_end_%s:' % name)
    A('s_endpgm')
    return P, lds


def k_q(name):
    P = entry(256, 'L_end_' + name)
    A = lambda x: P.append(I(x))
    A('s_and_b32 s3, s2, 7')
    A('s_lshr_b32 s6, s2, 3')
    A('s_and_b32 s70, s6, 15')
    A('s_lshr_b32 s6, s6, 4')
    A('s_lshl_b32 s3, s3, 1')
    A('s_add_u32 s71, s3, s6')
    A('s_waitcnt lgkmcnt(0)')
    J, lds = job_q('q', 70, 71)
    P += J
    A('L_end_%s:' % name)
    A('s_endpgm')
    return P, lds


def k_z2(name):
    P = entry(32, 'L_end_' + name)
    A = lambda x: P.append(I(x))
    A('s_mov_b32 s70, s2')
    A('s_waitcnt lgkmcnt(0)')
    J, lds = job_z2('z2', 70)
    P += J
    A('L_end_%s:' % name)
    A('s_endpgm')
    return P, lds


def k_28(name, job):
    P = entry(224, 'L_end_' + name)
    A = lambda x: P.append(I(x))
    A('s_and_b32 s3, s2, 7')
    A('s_lshr_b32 s6, s2, 3')
    if job == 'gh':
        A('s_and_b32 s70, s6, 1')
        A('s_lshl_b32 s3, s3, 1')
        A('s_add_u32 s70, s70, s3')
        A('s_lshr_b32 s71, s6, 1')
        A('s_waitcnt lgkmcnt(0)')
        J, lds = job_gh('gh', 70, 71)
    else:
        A('s_and_b32 s70, s6, 3')
        A('s_lshl_b32 s3, s3, 2')
        A('s_add_u32 s70, s70, s3')
        A('s_lshr_b32 s71, s6, 2')
        A('s_waitcnt lgkmcnt(0)')
        J, lds = job_fin('fin', 70, 71)
    P += J
    A('L_end_%s:' % name)
    A('s_endpgm')
    return P, lds


def build(kernels):
    txt = HDR
    body = ''
    kds = ''
    for name, grid, fn in kernels:
        P, lds = fn(name)
        prog = finalize(P)
        txt += '; @launch kernel=%s grid=(%d,1,1) block=(256,1,1) lds=%d\n' % (name, grid, lds)
        body += kernel_text(name, prog, 512)
        kds += kd_text(name, 512, 256)
    return txt + '.amdgcn_target "amdgcn-amd-amdhsa--gfx950"\n' + body + kds


if __name__ == '__main__':
    ks = [('z2_kernel', 32, k_z2), ('kv_kernel', 256, k_kv), ('q_kernel', 256, k_q),
          ('gh_kernel', 224, lambda n: k_28(n, 'gh')), ('attn_kernel', 256, attn.attn_kernel),
          ('fin_kernel', 224, lambda n: k_28(n, 'fin'))]
    open(sys.argv[1], 'w').write(build(ks))
```

```python
import re

TRANS = ('v_exp_f32', 'v_log_f32', 'v_rcp_f32', 'v_rsq_f32', 'v_sqrt_f32', 'v_sin_f32', 'v_cos_f32',
         'v_rcp_iflag_f32')
_REG = re.compile(r'^(-|abs\(|\|)?([vas])(\d+)\)?\|?$')
_RNG = re.compile(r'^(-|abs\(|\|)?([vas])\[(\d+):(\d+)\]\)?\|?$')


def regs_of(tok):
    tok = tok.strip()
    m = _REG.match(tok)
    if m:
        return [m.group(2) + m.group(3)]
    m = _RNG.match(tok)
    if m:
        return [m.group(2) + str(i) for i in range(int(m.group(3)), int(m.group(4)) + 1)]
    if tok in ('vcc', 'exec'):
        return [tok]
    if tok in ('vcc_lo', 'vcc_hi'):
        return ['vcc']
    if tok in ('exec_lo', 'exec_hi'):
        return ['exec']
    if tok == 'm0':
        return ['m0']
    return []


class Ins:
    __slots__ = ('text', 'op', 'wr', 'rd', 'kind', 'passes', 'ops', 'target', 'srcc', 'srcab', 'wide',
                 'vm', 'lgkm', 'dpp', 'cost', 'data')

    def __init__(self, text, tag=None, needs=None):
        self.text = text
        self.wr = set()
        self.rd = set()
        self.passes = 0
        self.target = None
        self.srcc = set()
        self.srcab = set()
        self.wide = False
        self.vm = None
        self.lgkm = None
        self.dpp = False
        self.data = set()
        t = text.split(';')[0].strip()
        if t.endswith(':'):
            self.kind = 'label'
            self.op = t[:-1]
            self.ops = []
            return
        if t == '' or t.startswith('.'):
            self.kind = 'dir'
            self.op = t
            self.ops = []
            if needs:
                self.kind = 'need'
                self.rd = set(needs)
            return
        parts = t.split(None, 1)
        op = parts[0]
        self.op = op
        rest = parts[1] if len(parts) > 1 else ''
        ops = []
        depth = 0
        cur = ''
        for ch in rest:
            if ch in '[(':
                depth += 1
            if ch in '])':
                depth -= 1
            if ch == ',' and depth == 0:
                ops.append(cur.strip())
                cur = ''
            else:
                cur += ch
        if cur.strip():
            ops.append(cur.strip())
        mods = []
        if ops:
            last = ops[-1].split()
            ops[-1] = last[0]
            mods = last[1:]
        self.ops = ops
        R = [regs_of(o) for o in ops]
        base = op
        for suf in ('_e32', '_e64', '_dpp', '_sdwa'):
            if base.endswith(suf):
                base = base[:-len(suf)]
        if op.endswith('_dpp') or any(m.startswith(('quad_perm', 'row_', 'wave_')) for m in mods):
            self.dpp = True
        if op.startswith('v_mfma'):
            self.kind = 'mfma'
            self.wr = set(R[0])
            self.srcab = set(R[1]) | set(R[2])
            self.srcc = set(R[3])
            self.rd = self.srcab | self.srcc
            self.passes = 8 if '32x32x16' in op else (4 if '16x16x32' in op else 16)
        elif op.startswith('ds_read') or op.startswith('ds_bpermute') or op.startswith('ds_swizzle') or op.startswith('ds_permute'):
            self.kind = 'dsr'
            self.wr = set(R[0])
            for r in R[1:]:
                self.rd |= set(r)
        elif op.startswith('ds_write') or op.startswith('ds_add') or op.startswith('ds_max'):
            self.kind = 'dsw'
            for r in R:
                self.rd |= set(r)
        elif op.startswith('buffer_load') or op.startswith('global_load'):
            if 'lds' in mods or op.startswith('global_load_lds'):
                self.kind = 'dma'
                for r in R:
                    self.rd |= set(r)
                self.rd.add('m0')
            else:
                self.kind = 'vld'
                self.wr = set(R[0])
                for r in R[1:]:
                    self.rd |= set(r)
        elif op.startswith('buffer_store') or op.startswith('global_store'):
            self.kind = 'vst'
            for r in R:
                self.rd |= set(r)
            d = R[0] if op.startswith('buffer') else R[1]
            self.data = set(d)
            self.wide = len(d) >= 3
        elif op.startswith('buffer_atomic') or op.startswith('global_atomic'):
            self.kind = 'vst'
            if 'sc0' in mods:
                self.kind = 'vld'
                self.wr = set(R[0])
                if op.startswith('buffer'):
                    for r in R:
                        self.rd |= set(r)
                else:
                    for r in R[1:]:
                        self.rd |= set(r)
            else:
                for r in R:
                    self.rd |= set(r)
        elif op in ('buffer_wbl2', 'buffer_inv'):
            self.kind = 'vst'
        elif op.startswith('s_load') or op.startswith('s_buffer_load') or op in ('s_memtime', 's_memrealtime') or op.startswith('s_atomic'):
            self.kind = 'smem'
            self.wr = set(R[0])
            for r in R[1:]:
                self.rd |= set(r)
            if op.startswith('s_atomic'):
                self.rd |= set(R[0])
        elif op == 's_waitcnt':
            self.kind = 'wait'
            m = re.search(r'vmcnt\((\d+)\)', t)
            self.vm = int(m.group(1)) if m else None
            m = re.search(r'lgkmcnt\((\d+)\)', t)
            self.lgkm = int(m.group(1)) if m else None
        elif op == 's_nop':
            self.kind = 'nop'
        elif op == 's_barrier':
            self.kind = 'barrier'
        elif op == 's_endpgm':
            self.kind = 'end'
        elif op == 's_branch' or op.startswith('s_cbranch'):
            self.kind = 'branch'
            self.target = ops[0]
            if 'vcc' in op:
                self.rd.add('vcc')
            if 'exec' in op:
                self.rd.add('exec')
            if 'scc' in op:
                self.rd.add('scc')
        elif op.startswith('s_'):
            self.kind = 'salu'
            if op.startswith('s_cmp') or op.startswith('s_bitcmp'):
                self.wr = {'scc'}
                for r in R:
                    self.rd |= set(r)
            elif op in ('s_setprio', 's_sleep', 's_setreg_imm32_b32', 's_setreg_b32', 's_sethalt'):
                pass
            else:
                if R:
                    self.wr = set(R[0])
                for r in R[1:]:
                    self.rd |= set(r)
                if 'saveexec' in op:
                    self.wr.add('exec')
                    self.rd.add('exec')
                if op in ('s_addk_i32', 's_mulk_i32', 's_cmov_b32', 's_cmov_b64'):
                    self.rd |= set(R[0])
                self.wr.add('scc')
        elif op.startswith('v_'):
            self.kind = 'trans' if base in TRANS else 'valu'
            self.wr = set(R[0])
            for r in R[1:]:
                self.rd |= set(r)
            if base.startswith('v_permlane') and 'swap' in base:
                self.wr |= set(R[1])
                self.rd |= set(R[0])
            if base in ('v_fmac_f32', 'v_dot2c_f32_bf16', 'v_pk_fmac_f16', 'v_writelane_b32') or self.dpp:
                self.rd |= set(R[0])
            if base in ('v_add_co_u32', 'v_sub_co_u32', 'v_addc_co_u32', 'v_subb_co_u32', 'v_subrev_co_u32',
                        'v_div_scale_f32', 'v_mad_u64_u32'):
                self.wr |= set(R[1])
                self.rd -= set(R[1]) if base not in ('v_addc_co_u32', 'v_subb_co_u32') else set()
            if base == 'v_div_fmas_f32':
                self.rd.add('vcc')
            if base.startswith('v_cmpx'):
                self.wr.add('exec')
        else:
            raise ValueError('unknown instruction: ' + text)
        if tag:
            self.wr |= {'tag:' + tag}
        if needs:
            self.rd |= set(needs)

    def is_valu(self):
        return self.kind in ('valu', 'trans')

    def states(self):
        if self.kind == 'nop':
            return int(self.ops[0], 0) + 1
        if self.kind in ('label', 'dir', 'need'):
            return 0
        return 1

    def __repr__(self):
        return self.text


def I(text, tag=None, needs=None):
    return Ins(text, tag, needs)


def need(*tags):
    return Ins('', needs=['tag:' + t for t in tags])


def _isv(r):
    return r[0] in 'va' and r[1:].isdigit()


def _iss(r):
    return (r[0] == 's' and r[1:].isdigit()) or r == 'vcc'


def req_states(p, c):
    n = 0
    pv = p.is_valu()
    cv = c.is_valu()
    if pv:
        wv = {r for r in p.wr if _isv(r)}
        ws = {r for r in p.wr if _iss(r)}
        if c.kind == 'mfma' and wv & c.rd:
            n = max(n, 2)
        if p.kind == 'trans' and cv and c.kind != 'trans' and (wv & c.rd):
            n = max(n, 1)
        if p.kind == 'trans' and (not cv) and (wv & c.rd):
            n = max(n, 1)
        if cv and ws & c.rd:
            n = max(n, 2)
            if c.op.startswith(('v_readlane', 'v_writelane', 'v_div_fmas')):
                n = max(n, 4)
        if c.kind in ('dma', 'vld', 'vst') and ws & c.rd:
            n = max(n, 5)
        if c.kind in ('salu', 'branch', 'smem') and ws & c.rd:
            n = max(n, 2)
        if cv and c.op.startswith(('v_readlane', 'v_readfirstlane')) and wv & c.rd:
            n = max(n, 1)
        if cv and c.dpp and wv & c.rd:
            n = max(n, 2)
        if cv and c.op.startswith('v_permlane') and wv & c.rd:
            n = max(n, 2)
        if 'exec' in p.wr:
            n = max(n, 5)
        if ('op_sel' in p.text or 'sdwa' in p.op or 'dst_sel' in p.text) and cv and (wv & (c.rd | c.wr)) and not p.op.startswith('v_pk_'):
            n = max(n, 1)
    if p.kind == 'salu' and 'm0' in p.wr and c.kind == 'dma':
        n = max(n, 1)
    if p.kind == 'salu' and 'exec' in p.wr and cv and c.dpp:
        n = max(n, 1)
    if p.kind == 'vst' and p.wide and (p.data & c.wr):
        n = max(n, 2)
    if p.kind == 'mfma':
        big = {2: 0, 4: 1, 8: 2, 16: 3}[p.passes]
        d = p.wr
        if c.kind == 'mfma':
            if d & c.srcc:
                if d == c.srcc and c.passes == p.passes:
                    n = max(n, (2, 0, 0, 0)[big])
                else:
                    n = max(n, (4, 6, 10, 18)[big])
            if d & c.srcab:
                n = max(n, (5, 8, 12, 20)[big])
            if (d & c.wr) and not (d & c.srcc):
                n = max(n, (4, 6, 10, 18)[big])
        else:
            if d & (c.rd | c.wr):
                n = max(n, (5, 8, 12, 20)[big])
            if cv and (p.srcc & c.wr):
                n = max(n, (1, 3, 7, 15)[big])
            if c.kind in ('dsr', 'vld') and (p.srcc & c.wr):
                n = max(n, (1, 3, 7, 15)[big])
    return n


MAXWIN = 20


def build_cfg(prog):
    labels = {ins.op: i for i, ins in enumerate(prog) if ins.kind == 'label'}
    succ = []
    for i, ins in enumerate(prog):
        s = []
        if ins.kind == 'end':
            pass
        elif ins.kind == 'branch':
            s.append(labels[ins.target])
            if ins.op != 's_branch' and i + 1 < len(prog):
                s.append(i + 1)
        elif i + 1 < len(prog):
            s.append(i + 1)
        succ.append(s)
    return labels, succ


VM_MAX = 63
LG_MAX = 15


def _merge(a, b):
    if a is None:
        return b, True
    ch = False
    out = []
    for x, y in ((a[0], b[0]), (a[1], b[1])):
        d = dict(x)
        for k, v in y.items():
            if k not in d or v < d[k]:
                d[k] = v
                ch = True
        out.append(d)
    sm = a[2] | b[2]
    if sm != a[2]:
        ch = True
    return (out[0], out[1], sm), ch


def _transfer(ins, st):
    vm, lg, sm = dict(st[0]), dict(st[1]), set(st[2])
    wv = wl = None
    touch = ins.rd | ins.wr
    if ins.kind in ('dsr', 'vld', 'dma', 'smem'):
        touch = ins.rd | {r for r in ins.wr if not r.startswith('tag:')}
    if ins.kind in ('vst', 'dsw'):
        touch = ins.rd
    for r in touch:
        if r in vm:
            wv = vm[r] if wv is None else min(wv, vm[r])
        if r in lg:
            wl = lg[r] if wl is None else min(wl, lg[r])
        if r in sm:
            wl = 0
    if wl is not None and sm:
        wl = 0
    if wv is not None:
        wv = min(wv, VM_MAX)
        vm = {k: v for k, v in vm.items() if v < wv}
    if wl is not None:
        wl = min(wl, LG_MAX)
        lg = {k: v for k, v in lg.items() if v < wl}
        if wl == 0:
            sm = set()
    if ins.kind == 'wait':
        if ins.vm is not None:
            vm = {k: v for k, v in vm.items() if v < ins.vm}
        if ins.lgkm is not None:
            if ins.lgkm == 0:
                lg = {}
                sm = set()
            elif not sm:
                lg = {k: v for k, v in lg.items() if v < ins.lgkm}
    if ins.kind in ('vld', 'vst', 'dma'):
        vm = {k: min(v + 1, 200) for k, v in vm.items()}
        for r in ins.wr:
            vm[r] = 0
    if ins.kind in ('dsr', 'dsw'):
        lg = {k: min(v + 1, 200) for k, v in lg.items()}
        for r in ins.wr:
            lg[r] = 0
    if ins.kind == 'smem':
        sm |= ins.wr
        sm.add('*smem*')
    return (vm, lg, sm), (wv, wl)


def insert_waits(prog):
    labels, succ = build_cfg(prog)
    n = len(prog)
    instate = [None] * n
    instate[0] = ({}, {}, set())
    work = [0]
    inwork = {0}
    while work:
        i = work.pop()
        inwork.discard(i)
        st = instate[i]
        while True:
            st, _ = _transfer(prog[i], st)
            ss = succ[i]
            if len(ss) == 1 and ss[0] == i + 1 and prog[i + 1].kind != 'label':
                i += 1
                instate[i] = st
                continue
            for s in ss:
                m, ch = _merge(instate[s], st)
                if ch:
                    instate[s] = m
                    if s not in inwork:
                        work.append(s)
                        inwork.add(s)
            break
    out = []
    for i, ins in enumerate(prog):
        if instate[i] is None:
            out.append(ins)
            continue
        _, (wv, wl) = _transfer(ins, instate[i])
        if wv is not None or wl is not None:
            t = 's_waitcnt'
            if wv is not None:
                t += ' vmcnt(%d)' % wv
            if wl is not None:
                t += ' lgkmcnt(%d)' % wl
            out.append(Ins(t))
        if ins.kind != 'need':
            out.append(ins)
    return out


def _preds(prog):
    labels, succ = build_cfg(prog)
    pred = [[] for _ in prog]
    for i, ss in enumerate(succ):
        for s in ss:
            pred[s].append(i)
    return pred


def fix_hazards(prog, verbose=False):
    total = 0
    changed = True
    while changed:
        changed = False
        pred = _preds(prog)
        out = []
        for i, c in enumerate(prog):
            if c.kind in ('label', 'dir', 'nop', 'wait', 'barrier', 'end'):
                out.append(c)
                continue
            needn = 0
            stack = [(p, 0) for p in pred[i]]
            seen = {}
            while stack:
                j, dist = stack.pop()
                if j in seen and seen[j] <= dist:
                    continue
                seen[j] = dist
                p = prog[j]
                r = req_states(p, c)
                if r > dist:
                    needn = max(needn, r - dist)
                nd = dist + p.states()
                if nd < MAXWIN:
                    for q in pred[j]:
                        stack.append((q, nd))
            if needn > 0:
                total += needn
                if verbose:
                    print('hazard pad %d before: %s' % (needn, c.text))
                while needn > 0:
                    k = min(needn, 16)
                    out.append(Ins('s_nop %d' % (k - 1)))
                    needn -= k
                changed = True
            out.append(c)
        prog = out
    return prog


def finalize(prog, verbose=False):
    prog = [p if isinstance(p, Ins) else Ins(p) for p in prog]
    prog = insert_waits(prog)
    prog = fix_hazards(prog, verbose)
    return prog


def render(prog):
    out = []
    for p in prog:
        if p.kind == 'label':
            out.append(p.text)
        elif p.kind == 'need':
            continue
        else:
            out.append(' ' + p.text.replace(' offset:0 ', ' ').replace(' offset:0', '').replace(', ', ',').rstrip())
    return '\n'.join(out) + '\n'


def interleave(spine, fillers, per_gap, start=0):
    out = []
    q = list(fillers)
    acc = 0.0
    for k, m in enumerate(spine):
        out.append(m)
        if k >= start:
            acc += per_gap
            while acc >= 1.0 - 1e-9 and q:
                f = q.pop(0)
                if isinstance(f, (list, tuple)):
                    out.extend(f)
                else:
                    out.append(f)
                acc -= 1.0
    for f in q:
        if isinstance(f, (list, tuple)):
            out.extend(f)
        else:
            out.append(f)
    return out


def kernel_text(name, prog, vgpr, agpr_off=None, sgpr=102, extra=''):
    s = '.text\n.globl %s\n.p2align 8\n.type %s,@function\n%s:\n' % (name, name, name)
    s += render(prog)
    return s


def kd_text(name, nfv, accum, sgpr=102):
    return ('.section .rodata,"a"\n.p2align 6\n.amdhsa_kernel %s\n  .amdhsa_next_free_vgpr %d\n'
            '  .amdhsa_next_free_sgpr %d\n  .amdhsa_accum_offset %d\n  .amdhsa_group_segment_fixed_size 0\n'
            '  .amdhsa_kernarg_size 120\n  .amdhsa_user_sgpr_count 2\n  .amdhsa_user_sgpr_kernarg_segment_ptr 1\n'
            '  .amdhsa_system_sgpr_workgroup_id_x 1\n  .amdhsa_float_denorm_mode_32 3\n'
            '.end_amdhsa_kernel\n') % (name, nfv, sgpr, accum)


def STAMP(k):
    x = Ins('.stamp')
    x.ops = [k]
    return x
```

```python
from asmlib import *
from engine import *
from jobs import *

NEG = f2u(-1.0e9 * LOG2E)
THR = f2u(8.0)
SPLIT = 18
LDS_DROP = 0x30000

sK, sV, sQ, sPt = 8, 12, 16, 4
sKoff, sVoff, sKslot, sVslot, sEnd, sRing, sTile, t0, t1, t2, t3 = 20, 21, 22, 23, 24, 25, 27, 31, 32, 33, 34
sWave = 35
sThr, sPend, sDiag, sEvt, sPOff = 36, 37, 38, 39, 26
sH, sQI, sT0, sT1, sMode, sPair, sI, sW8, sOwn = 74, 75, 76, 77, 78, 79, 80, 81, 86
CMP = [88, 90, 92, 94]
sNext = 3

EXP = dict(nodma=False, nobar=False, nosm=False, noread=False, cap=2.0)
D_LEAD = 12
RING = 16
RINGB = 5 * 32768

vDma, aK, aV, vL16, vDma2 = 2, 3, 4, VL16, 1
NM = [8, 12]
Lr = [16, 17]
vT = list(range(18, 32))
Sreg = [32, 64]
Preg = 96
Gv = [112, 113]
Ov = 128
Qa, Fa, PART = 152, 0, 64


def Sr(p, kb, qb):
    return Sreg[p] + (kb * 2 + qb) * 4


def Pr(ks, qb):
    return Preg + (ks * 2 + qb) * 4


def Or(db, qb):
    return Ov + (db * 2 + qb) * 4


def frag(j):
    b = Fa + (j % RING) * 4
    return 'a[%d:%d]' % (b, b + 3)


def kread(j):
    return I('ds_read_b128 %s, v%d offset:%d' % (frag(j), aK, j * 1024))


def vread(j):
    return I('ds_read_b128 %s, v%d offset:%d' % (frag(32 + j), aV, j * 1024))


def qk_mfmas(pn):
    R = []
    for j in range(32):
        kb, ds = j // 8, j % 8
        for qb in range(2):
            d = 'v[%d:%d]' % (Sr(pn, kb, qb), Sr(pn, kb, qb) + 3)
            c = 'v[%d:%d]' % (NM[qb], NM[qb] + 3) if ds == 0 else d
            q = Qa + (qb * 8 + ds) * 4
            R.append(I('%s %s, %s, a[%d:%d], %s' % (MF, d, frag(j), q, q + 3, c)))
    return R


def pv_mfmas():
    R = []
    for j in range(32):
        ks, db = j // 16, j % 16
        for qb in range(2):
            o = 'v[%d:%d]' % (Or(db, qb), Or(db, qb) + 3)
            R.append(I('%s %s, %s, v[%d:%d], %s' % (MF, o, frag(32 + j), Pr(ks, qb), Pr(ks, qb) + 3, o)))
    return R


def softmax_items(pc):
    exps, plains = [], []
    for ks in range(2):
        for qb in range(2):
            for u in range(4):
                kb = 2 * ks + u // 2
                a = Sr(pc, kb, qb) + 2 * (u % 2)
                p = Pr(ks, qb) + u
                exps.append(I('v_exp_f32 v%d, v%d' % (a, a)))
                exps.append(I('v_exp_f32 v%d, v%d' % (a + 1, a + 1)))
                n = len(exps)
                plains.append((I('v_add_f32 v%d, v%d, v%d' % (Lr[qb], Lr[qb], a)), n - 2, ks))
                plains.append((I('v_cvt_pk_bf16_f32 v%d, v%d, v%d' % (p, a, a + 1)), n - 1, ks))
                plains.append((I('v_add_f32 v%d, v%d, v%d' % (Lr[qb], Lr[qb], a + 1)), n - 1, ks))
    return exps, plains


def place_softmax(gaps, load, pc, g0, g1, cap, e0=0, p0=0, gsum=None, mid=None, addstop=None):
    exps, plains = softmax_items(pc)
    plains = plains[p0:]
    cv = [x for x in plains if 'cvt' in x[0].op]
    ad = [x for x in plains if 'cvt' not in x[0].op]
    epos = [-1] * e0
    ei = e0
    done = {}
    gsum = gsum or g1
    for g in range(g0, max(g1, gsum)):
        while True:
            if ei < len(exps) and load[g] + 2 <= cap:
                gaps[g].append(exps[ei])
                epos.append(g)
                load[g] += 2
                ei += 1
            elif cv and cv[0][1] < len(epos) and epos[cv[0][1]] < g and load[g] + 1 <= cap:
                x = cv.pop(0)
                gaps[g].append(x[0])
                load[g] += 1
                done[x[2]] = g
            elif ad and ad[0][1] < len(epos) and epos[ad[0][1]] < g and load[g] + 1 <= cap and (addstop is None or g < addstop):
                x = ad.pop(0)
                gaps[g].append(x[0])
                load[g] += 1
            else:
                break
    if mid:
        mid()
        for c2 in (cap, cap + 1):
            for g in range(addstop, gsum):
                while ad and epos[ad[0][1]] < g and load[g] + 1 <= c2 and (c2 == cap or load[g] == cap):
                    gaps[g].append(ad.pop(0)[0])
                    load[g] += 1
                    if c2 > cap:
                        break
    assert ei == len(exps) and not cv and not ad, (ei, len(cv), len(ad))
    return done


def max_stream(pn):
    r = [Sreg[pn] + i for i in range(32)]
    m = vT[0]
    out = [I('v_max3_f32 v%d, v%d, v%d, v%d' % (m, r[0], r[1], r[2]))]
    for i in range(3, 31, 2):
        out.append(I('v_max3_f32 v%d, v%d, v%d, v%d' % (m, m, r[i], r[i + 1])))
    out.append(I('v_max_f32 v%d, v%d, v%d' % (m, m, r[31])))
    out.append(I('v_cmp_lt_f32 vcc, s%d, v%d' % (sThr, m)))
    return out


def adv(reg, step, tmp):
    return [[I('s_add_u32 s%d, s%d, %d' % (reg, reg, step * 32768))],
            [I('s_sub_u32 s%d, s%d, %d' % (tmp, reg, RINGB)), I('s_min_u32 s%d, s%d, s%d' % (reg, reg, tmp))]]


def dma_group(which, step=2, tag=None):
    srd_, off, end, slot = (sK, sKoff, sEnd, sKslot) if which == 'K' else (sV, sVoff, sEnd, sVslot)
    G = [[I('s_cmp_lt_u32 s%d, s%d' % (off, end)), I('s_cselect_b32 s%d, %d, 0' % (srd_ + 2, 16 * MB)),
          I('s_cselect_b32 m0, s%d, %d' % (slot, LDS_DROP))]]
    for j in range(8):
        if j == 4:
            G.append([I('s_add_u32 m0, m0, 4096')])
        G.append([I('buffer_load_dwordx4 v%d, s[%d:%d], s%d offen offset:%d %s lds' % (vDma if j < 4 else vDma2, srd_, srd_ + 3, off, (j % 4) * 1024, EXP.get('ldflags', '')), tag=tag)])
    G.append([I('s_add_u32 s%d, s%d, 32768' % (off, off))])
    G += adv(slot, step, t3)
    return G


def rd_advance(which, step=2):
    a = aK if which == 'K' else aV
    return [[I('v_add_u32 v%d, %d, v%d' % (a, step * 32768, a))], [I('v_subrev_u32 v%d, s%d, v%d' % (vT[13], sRing, a))],
            [I('v_min_u32 v%d, v%d, v%d' % (a, a, vT[13]))]]


HEAD_EXTRA = []
LATE_CHECK = []
LATE_TILE = 24


def mask_block(lab, pn, back):
    P = [I(lab + ':')]
    A = lambda x: P.append(I(x))
    A('s_cmp_eq_u32 s%d, s%d' % (sEvt, sDiag))
    A('s_cbranch_scc1 %s_m' % lab)
    P += [I(x.text.replace('@', lab)) for x in LATE_CHECK]
    A('s_mov_b32 s%d, s%d' % (sEvt, sDiag))
    A('s_cmp_lt_u32 s%d, s%d' % (sTile, sDiag))
    A('s_cbranch_scc1 %s' % back)
    A('%s_m:' % lab)
    A('s_lshl_b32 s%d, s%d, 7' % (t0, sQI))
    A('s_lshl_b32 s%d, s%d, 5' % (t1, sWave))
    A('s_add_u32 s%d, s%d, s%d' % (t0, t0, t1))
    A('s_lshl_b32 s%d, s%d, 6' % (t1, sTile))
    A('s_sub_u32 s%d, s%d, s%d' % (t0, t0, t1))
    u, ng = vT[1], vT[2]
    A('v_and_b32 v%d, 15, v0' % u)
    A('v_lshrrev_b32 v%d, 4, v0' % ng)
    A('v_lshlrev_b32 v%d, 2, v%d' % (ng, ng))
    A('v_sub_u32 v%d, v%d, v%d' % (u, u, ng))
    A('v_add_u32 v%d, s%d, v%d' % (u, t0, u))
    A('v_mov_b32 v%d, 0x%x' % (ng, NEG))
    items = [(16 * (kb - qb) + r, Sr(pn, kb, qb) + r) for kb in range(4) for qb in range(2) for r in range(4)]
    for i in range(0, 32, 4):
        for k in range(4):
            A('v_cmp_gt_i32 s[%d:%d], %d, v%d' % (CMP[k], CMP[k] + 1, items[i + k][0], u))
        for k in range(4):
            reg = items[i + k][1]
            A('v_cndmask_b32 v%d, v%d, v%d, s[%d:%d]' % (reg, reg, ng, CMP[k], CMP[k] + 1))
    A('s_branch %s' % back)
    return P


def rescale_block(lab, pn, back, first=False):
    P = [I(lab + ':')] if lab else []
    A = lambda x: P.append(I(x))
    dl = [vT[1], vT[2]]
    al = [vT[4], vT[6]]
    pr = lambda r: 'v[%d:%d]' % (r, r + 1)
    for qb in range(2):
        r = [Sr(pn, kb, qb) + i for kb in range(4) for i in range(4)]
        m = dl[qb]
        A('v_max3_f32 v%d, v%d, v%d, v%d' % (m, r[0], r[1], r[2]))
        for i in range(3, 15, 2):
            A('v_max3_f32 v%d, v%d, v%d, v%d' % (m, m, r[i], r[i + 1]))
        A('v_max_f32 v%d, v%d, v%d' % (m, m, r[15]))
    x0, x1 = xlane_reduce(dl[0], vT[8], 'v_max_f32'), xlane_reduce(dl[1], vT[9], 'v_max_f32')
    for a, b in zip(x0, x1):
        P.extend([a, b])
    for qb in range(2):
        r = [Sr(pn, kb, qb) + i for kb in range(4) for i in range(4)]
        m = dl[qb]
        if not first:
            A('v_max_f32 v%d, 0, v%d' % (m, m))
        for x in r:
            A('v_sub_f32 v%d, v%d, v%d' % (x, x, m))
        for i in range(4):
            A('v_sub_f32 v%d, v%d, v%d' % (NM[qb] + i, NM[qb] + i, m))
    if not first:
        for qb in range(2):
            A('v_exp_f32 v%d, -v%d' % (al[qb], dl[qb]))
        for qb in range(2):
            A('v_mul_f32 v%d, v%d, v%d' % (Lr[qb], Lr[qb], al[qb]))
        for db in range(16):
            for qb in range(2):
                for r in (0, 2):
                    A('v_pk_mul_f32 %s, %s, %s op_sel_hi:[1,0]' % (pr(Or(db, qb) + r), pr(Or(db, qb) + r), pr(al[qb])))
        A('s_branch %s' % back)
    return P


def fill(gaps, load, stream, g0, g1, cap, stride=1):
    q = list(stream)
    g = g0
    while g < g1 and q:
        if load[g] + q[0][1] <= cap + 1e-9:
            it = q.pop(0)
            gaps[g].extend(it[0] if isinstance(it[0], list) else [it[0]])
            load[g] += it[1]
            if stride > 1:
                g += stride
        else:
            g += 1
    return q


def iteration(lab, p):
    cap = EXP['cap']
    pn = 1 - p
    ms = qk_mfmas(pn) + pv_mfmas()
    NG = 128
    gaps = [[] for _ in range(NG)]
    pre = [[] for _ in range(NG)]
    load = [0.0] * NG
    for j in range(64):
        src = j + D_LEAD
        r = kread(src) if src < 32 else (vread(src - 32) if src < 64 else kread(src - 64))
        gaps[2 * j].append(r)
        load[2 * j] += 1
    for j in range(0, 64, 8):
        g = (2 * j - 2) % NG
        gaps[g].append(I('s_waitcnt lgkmcnt(%d)' % (D_LEAD - 8)))
        load[g] += 1
    pre[64] = [I('s_waitcnt vmcnt(16)'), I('s_barrier'),
               I('s_cmp_ge_u32 s%d, s%d' % (sTile, sEvt)), I('s_cbranch_scc1 %s_mask' % lab), I('%s_mb:' % lab)]
    load[63] += 2
    load[127] += 2
    def place_dma(grps, dg):
        ins = flat(grps)
        idx = [i for i, x in enumerate(ins) if x.kind == 'dma']
        for k, i in enumerate(idx):
            gaps[dg[k]].append(ins[i])
            load[dg[k]] += 2
        pre_ = ins[:idx[0]]
        g = dg[0] - 1
        spots = []
        for x in pre_:
            while load[g] + 1 > cap:
                g -= 1
            load[g] += 1
            spots.append(g)
        for x, g in zip(pre_, sorted(spots)):
            gaps[g].append(x)
        for k, i in enumerate(idx):
            nxt = idx[k + 1] if k + 1 < len(idx) else len(ins)
            g = dg[k] + 1
            for x in ins[i + 1:nxt]:
                while load[g] + 1 > cap:
                    g += 1
                assert k + 1 == len(idx) or g < dg[k + 1]
                gaps[g].append(x)
                load[g] += 1
    place_dma(dma_group('K'), EXP.get('kg', [5, 11, 19, 25, 33, 39, 47, 53]))
    place_dma(dma_group('V'), EXP.get('vg', [93, 97, 101, 105, 109, 113, 117, 121]))
    left = fill(gaps, load, [(x, len(x)) for x in rd_advance('K')], 84, 103, cap)
    assert not left
    left = fill(gaps, load, [(x, len(x)) for x in rd_advance('V')], 104, 127, cap)
    assert not left
    def mid():
        left = fill(gaps, load, [(I('s_add_u32 s%d, s%d, 1' % (sTile, sTile)), 1)], 66, 90, cap)
        assert not left
        left = fill(gaps, load, [(x, 1) for x in max_stream(pn)], 72, 126, cap)
        assert not left, left
    done = place_softmax(gaps, load, p, 0, 94, cap, gsum=127, mid=mid, addstop=66)
    assert done[0] < 63 and done[1] < 95, done
    if EXP.get('show'):
        print('loads', ''.join(str(int(x)) for x in load), done)
    out = []
    for g in range(NG):
        out.extend(pre[g])
        out.append(ms[g])
        out.extend(gaps[g])
    out += L('s_waitcnt vmcnt(16)', 's_barrier')
    if EXP['nodma']:
        out = [x for x in out if x.kind != 'dma']
    if EXP['nobar']:
        out = [x for x in out if x.kind != 'barrier' and not (x.kind == 'wait' and x.vm is not None)]
    if EXP['nosm']:
        out = [x for x in out if not x.op.startswith(('v_exp', 'v_add_f32', 'v_cvt', 'v_max'))]
    if EXP['noread']:
        out = [x for x in out if x.kind != 'dsr']
    if EXP['nosm'] or EXP['noread'] or EXP['nodma'] or EXP['nobar']:
        out.append(I('s_mov_b64 vcc, 0'))
    out.append(I('s_cbranch_vccnz %s_resc' % lab))
    out.append(I('%s_rb:' % lab))
    return out


def tail(p):
    P = []
    exps, plains = softmax_items(p)
    sm = []
    for i in range(9):
        sm += exps[2 * i:2 * i + 2]
        if i > 0:
            sm += [x[0] for x in plains[3 * (i - 1):3 * i]]
    rd = [vread(j) for j in range(D_LEAD)]
    P.append(I('s_waitcnt lgkmcnt(0)'))
    P += interleave(sm, rd, 0.34)
    ms = pv_mfmas()
    gaps = [[] for _ in range(64)]
    pre = [[] for _ in range(64)]
    load = [0.0] * 64
    for j in range(32 - D_LEAD):
        gaps[2 * j].append(vread(j + D_LEAD))
        load[2 * j] += 1
    for j in range(0, 32, 8):
        pre[2 * j].append(I('s_waitcnt lgkmcnt(%d)' % max(0, min(32, j + D_LEAD) - (j + 8))))
    done = place_softmax(gaps, load, p, 0, 31, 2.0, e0=18, p0=24, gsum=60)
    assert done[1] < 31
    for g in range(64):
        P.extend(pre[g])
        P.append(ms[g])
        P.extend(gaps[g])
    return P


def seg_loads(loadq):
    P = L('s_lshl_b32 s%d, s%d, 20' % (t0, sH), 's_lshl_b32 s%d, s%d, 15' % (t1, sT0),
          's_add_u32 s%d, s%d, s%d' % (sKoff, t0, t1), 's_mov_b32 s%d, s%d' % (sVoff, sKoff),
          's_lshl_b32 s%d, s%d, 15' % (t1, sT1), 's_add_u32 s%d, s%d, s%d' % (sEnd, t0, t1),
          's_add_u32 s%d, s%d, s%d' % (sKslot, sNext, sW8), 's_mov_b32 s%d, s%d' % (sVslot, sKslot))
    P += flat(adv(sVslot, 2, t3))
    K0 = dma_group('K', 1, tag='aK0')
    K0[0] = P + K0[0]
    Q = []
    if loadq:
        pre = srd(sQ, P_WS, 16 * MB, off=WS_Q) + L(*loadq) + L('s_cselect_b32 s%d, %d, 0' % (sQ + 2, 16 * MB))
        pre += L('s_lshl_b32 s%d, s%d, 20' % (t0, sH), 's_lshl_b32 s%d, s%d, 16' % (t1, sQI), 's_add_u32 s%d, s%d, s%d' % (t0, t0, t1),
                 's_lshl_b32 s%d, s%d, 14' % (t1, sWave), 's_add_u32 s%d, s%d, s%d' % (t0, t0, t1))
        for i in range(16):
            g = pre if i == 0 else []
            if i % 4 == 0 and i:
                g = L('s_add_u32 s%d, s%d, 4096' % (t0, t0))
            if g:
                Q.append(g)
            Q.append([I('buffer_load_dwordx4 a[%d:%d], v%d, s[%d:%d], s%d offen offset:%d %s' % (
                Qa + 4 * i, Qa + 4 * i + 3, vL16, sQ, sQ + 3, t0, (i % 4) * 1024, EXP.get('ldflags', '')))])
    return [K0, Q, dma_group('K'), dma_group('V'), dma_group('K'), dma_group('V')]


def as_items(groups, lds):
    R = []
    pre = []
    for g in groups:
        if len(g) == 1 and g[0].kind in ('dma', 'vld'):
            R.append(Item(pre, g[0], [], lds))
            pre = []
        else:
            pre = pre + g
    if pre:
        R[-1].post = [pre]
    return R


def kernel_setup(slot0=0):
    P = srd(sK, P_WS, 16 * MB, off=WS_K) + srd(sV, P_WS, 16 * MB, off=WS_V)
    P += L('s_lshl_b32 s%d, s%d, 13' % (sW8, sWave),
           'v_add_u32 v%d, s%d, v%d' % (vDma, sW8, vL16), 'v_add_u32 v%d, 4096, v%d' % (vDma2, vDma),
           's_mov_b32 s%d, %d' % (sNext, slot0 * 32768), 's_mov_b32 s%d, %d' % (sRing, RINGB), 's_mov_b32 s%d, 0' % sPend)
    return P


def segment(lab, vm0):
    P = []
    A = lambda x: P.append(I(x))
    A('v_add_u32 v%d, s%d, v%d' % (aK, sNext, vL16))
    A('v_mov_b32 v%d, v%d' % (aV, aK))
    P += flat(rd_advance('V'))
    for qb in range(2):
        for i in range(4):
            A('v_mov_b32 v%d, 0' % (NM[qb] + i))
        A('v_mov_b32 v%d, 0' % Lr[qb])
    A('s_mov_b32 s%d, 0x%x' % (sThr, THR))
    A('s_mov_b32 s%d, s%d' % (sTile, sT0))
    A('s_lshl_b32 s%d, s%d, 1' % (sDiag, sQI))
    A('s_cmp_gt_u32 s%d, 28' % sT1)
    A('s_cselect_b32 s%d, %d, s%d' % (sEvt, LATE_TILE, sDiag))
    A('s_waitcnt vmcnt(%d)' % vm0)
    A('s_barrier')
    P.append(STAMP(4))
    for j in range(D_LEAD):
        P.append(kread(j))
    ms = qk_mfmas(0)
    z = [I('v_mov_b32 v%d, 0' % (Ov + i)) for i in range(128)]
    for j in range(32):
        if j % 8 == 0:
            A('s_waitcnt lgkmcnt(%d)' % max(0, min(32, j + D_LEAD) - (j + 8)))
        P.append(ms[2 * j])
        if j + D_LEAD < 32:
            P.append(kread(j + D_LEAD))
        P += z[4 * j:4 * j + 2]
        P.append(ms[2 * j + 1])
        P += z[4 * j + 2:4 * j + 4]
    P += flat(rd_advance('K', 1))
    A('s_cmp_eq_u32 s%d, 0' % sPend)
    A('s_cbranch_scc1 %s_nopend' % lab)
    P += L('v_mov_b32 v%d, s%d' % (vT[10], sPOff), 'v_mov_b32 v%d, s%d' % (vT[11], sPend), 's_waitcnt vmcnt(8)',
           's_mov_b64 exec, 1', 'global_atomic_add v%d, v%d, s[%d:%d]' % (vT[10], vT[11], P_DBG, P_DBG + 1), 's_mov_b64 exec, -1',
           '%s_nopend:' % lab)
    A('s_waitcnt vmcnt(16)')
    A('s_barrier')
    for j in range(D_LEAD):
        P.append(kread(j))
    P += HEAD_EXTRA
    A('s_cmp_ge_u32 s%d, s%d' % (sTile, sEvt))
    A('s_cbranch_scc1 %s_h_mask' % lab)
    A('%s_h_mb:' % lab)
    P += rescale_block(None, 0, None, first=True)
    A('s_add_u32 s%d, s%d, 1' % (sTile, sTile))
    P.append(STAMP(5))
    A('s_cmp_eq_u32 s%d, s%d' % (sTile, sT1))
    A('s_cbranch_scc1 %s_tail0' % lab)
    A('s_waitcnt lgkmcnt(%d)' % (D_LEAD - 8))
    A('%s_loop:' % lab)
    P += iteration(lab + '_i0', 0)
    A('s_cmp_eq_u32 s%d, s%d' % (sTile, sT1))
    A('s_cbranch_scc1 %s_tail1' % lab)
    P += iteration(lab + '_i1', 1)
    A('s_cmp_lg_u32 s%d, s%d' % (sTile, sT1))
    A('s_cbranch_scc1 %s_loop' % lab)
    for p in range(2):
        A('%s_tail%d:' % (lab, p))
        A('s_branch %s_pre%d' % (lab, p))
        A('%s_pb%d:' % (lab, p))
        P += tail(p)
        A('s_branch %s_end' % lab)
    O = []
    O += mask_block(lab + '_h_mask', 0, lab + '_h_mb')
    O += mask_block(lab + '_i0_mask', 1, lab + '_i0_mb')
    O += mask_block(lab + '_i1_mask', 0, lab + '_i1_mb')
    O += rescale_block(lab + '_i0_resc', 1, lab + '_i0_rb')
    O += rescale_block(lab + '_i1_resc', 0, lab + '_i1_rb')
    for p in range(2):
        O += pretail(lab + '_pre%d' % p, lab + '_pb%d' % p)
    P += O
    A('%s_end:' % lab)
    return P


def spin(lab, load, ok_cond, maxit=200000):
    P = L('s_mov_b32 s%d, 0' % t3, lab + '_spin:') + load + ok_cond
    P += L('s_cbranch_scc1 %s_go' % lab, 's_add_u32 s%d, s%d, 1' % (t3, t3), 's_cmp_ge_u32 s%d, %d' % (t3, maxit),
           's_cbranch_scc1 %s_go' % lab, 's_sleep 2', 's_branch %s_spin' % lab, lab + '_go:')
    return P


def pair_flag_addr():
    return L('s_lshr_b32 s%d, s%d, 2' % (t0, sPair), 's_lshl_b32 s%d, s%d, 2' % (t0, t0), 's_add_u32 s%d, s%d, 128' % (t0, t0),
             'v_mov_b32 v%d, s%d' % (vT[10], t0),
             's_and_b32 s%d, s%d, 3' % (t1, sPair), 's_lshl_b32 s%d, s%d, 3' % (t1, t1))


def part_base():
    return srd(sPt, P_WS, 128 * 4 * 17 * 1024, off=WS_PART) + L(
        's_lshl_b32 s%d, s%d, 2' % (t0, sPair), 's_add_u32 s%d, s%d, s%d' % (t0, t0, sWave),
        's_mul_i32 s%d, s%d, %d' % (t0, t0, 17 * 1024))


def gate_load(sblk, dst):
    P = srd(sPt, P_WS, 8192, off=WS_G)
    P += L('s_lshl_b32 s%d, s%d, 2' % (t0, sblk), 's_add_u32 s%d, s%d, s%d' % (t0, t0, sWave), 's_lshl_b32 s%d, s%d, 7' % (t0, t0),
           'v_and_b32 v5, 15, v0', 'v_lshlrev_b32 v5, 2, v5')
    for qb in range(2):
        P.append(I('buffer_load_dword v%d, v5, s[%d:%d], s%d offen offset:%d %s' % (dst + qb, sPt, sPt + 3, t0, qb * 64, EXP.get('ldflags', ''))))
    return P


def pretail(lab, back):
    P = [I(lab + ':'), STAMP(6)]
    A = lambda x: P.append(I(x))
    A('s_cmp_eq_u32 s%d, 1' % sMode)
    A('s_cbranch_scc1 %s_next' % lab)
    A('s_cmp_lg_u32 s%d, 2' % sMode)
    A('s_cbranch_scc1 %s' % back)
    P += pair_flag_addr()
    P += spin(lab, L('global_load_dword v%d, v%d, s[%d:%d] sc1' % (vT[11], vT[10], P_DBG, P_DBG + 1), 's_waitcnt vmcnt(0)',
                     'v_readfirstlane_b32 s%d, v%d' % (t2, vT[11])),
              L('s_lshr_b32 s%d, s%d, s%d' % (t2, t2, t1), 's_and_b32 s%d, s%d, 255' % (t2, t2), 's_cmp_eq_u32 s%d, 4' % t2))
    P += part_base()
    for i in range(17):
        if i % 4 == 0 and i:
            A('s_add_u32 s%d, s%d, 4096' % (t0, t0))
        A('buffer_load_dwordx4 a[%d:%d], v%d, s[%d:%d], s%d offen offset:%d sc1' % (PART + 4 * i, PART + 4 * i + 3, vL16, sPt, sPt + 3, t0, (i % 4) * 1024))
    A('s_branch %s' % back)
    A('%s_next:' % lab)
    A('v_readfirstlane_b32 s%d, v%d' % (sNext, aV))
    P += flat(adv(sNext, 1, t3))
    P += L('s_mov_b32 s%d, s%d' % (sQI, sI), 's_mov_b32 s%d, 0' % sT0, 's_lshl_b32 s%d, s%d, 1' % (sT1, sI),
           's_add_u32 s%d, s%d, 2' % (sT1, sT1))
    G = seg_loads(None)
    P += flat(G[0] + G[2] + G[3] + G[4])
    P += [I('v_accvgpr_mov_b32 a%d, a%d' % (Qa + i, PART + i)) for i in range(64)]
    A('s_branch %s' % back)
    return P


def finish(lab, stflags=''):
    P = []
    A = lambda x: P.append(I(x))
    pr = lambda r: 'v[%d:%d]' % (r, r + 1)
    x0, x1 = xlane_reduce(Lr[0], vT[0], 'v_add_f32'), xlane_reduce(Lr[1], vT[1], 'v_add_f32')
    for a, b in zip(x0, x1):
        P.extend([a, b])
    f1 = [vT[2], vT[4]]
    f2 = [vT[6], vT[8]]
    A('s_cmp_eq_u32 s%d, 2' % sMode)
    A('s_cbranch_scc1 %s_comb' % lab)
    for qb in range(2):
        A('v_rcp_f32 v%d, v%d' % (f1[qb], Lr[qb]))
    A('s_cmp_eq_u32 s%d, 1' % sMode)
    A('s_cbranch_scc1 %s_part' % lab)

    def ctx_base():
        Q = srd(sQ, P_WS, HC_SIZE, off=WS_HC)
        Q += L('s_lshl_b32 s%d, s%d, 2' % (t0, sQI), 's_add_u32 s%d, s%d, s%d' % (t0, t0, sWave),
               's_mul_i32 s%d, s%d, %d' % (t0, t0, 2 * HC_RB), 's_lshl_b32 s%d, s%d, 13' % (t1, sH),
               's_add_u32 s%d, s%d, s%d' % (t0, t0, t1), 's_add_u32 s%d, s%d, %d' % (t0, t0, 28 * 1024))
        return Q

    def emit(srd_, offf, flags, comb):
        Q = []
        k = 0
        for qb in range(2):
            for pp in range(8):
                a, b = Or(2 * pp, qb), Or(2 * pp + 1, qb)
                for r in (a, a + 2, b, b + 2):
                    Q.append(I('v_pk_mul_f32 %s, %s, %s op_sel_hi:[1,0]' % (pr(r), pr(r), pr(f1[qb]))))
                if comb:
                    t = 32 + (k % 4) * 12
                    for r in range(4):
                        Q.append(I('v_accvgpr_read_b32 v%d, a%d' % (t + 8 + r, PART + 4 * k + r)))
                    for r in range(4):
                        Q.append(I('v_lshlrev_b32 v%d, 16, v%d' % (t + 2 * r, t + 8 + r)))
                        Q.append(I('v_and_b32 v%d, 0xffff0000, v%d' % (t + 2 * r + 1, t + 8 + r)))
                    for r, o in enumerate((a, a + 2, b, b + 2)):
                        Q.append(I('v_pk_fma_f32 %s, %s, %s, %s op_sel_hi:[1,0,1]' % (pr(o), pr(t + 2 * r), pr(f2[qb]), pr(o))))
                for r, o in enumerate((a, a + 2, b, b + 2)):
                    Q.append(I('v_cvt_pk_bf16_f32 v%d, v%d, v%d' % (a + r, o, o + 1)))
                Q += store4(a, vL16, offf(qb, pp, k), flags, soff=t1, base=t0, srd_=srd_)
                k += 1
        return Q

    for qb in range(2):
        A('v_mul_f32 v%d, v%d, v%d' % (f1[qb], f1[qb], Gv[qb]))
    P += ctx_base()
    P += emit(sQ, lambda qb, pp, k: qb * HC_RB + pp * 1024, stflags, False)
    A('s_branch %s_fin' % lab)
    A('%s_part:' % lab)
    P += part_base()
    P += emit(sPt, lambda qb, pp, k: k * 1024, 'sc1', False)
    st = 80
    P += L('v_mov_b32 v%d, v%d' % (st, NM[0]), 'v_mov_b32 v%d, v%d' % (st + 1, Lr[0]),
           'v_mov_b32 v%d, v%d' % (st + 2, NM[1]), 'v_mov_b32 v%d, v%d' % (st + 3, Lr[1]))
    P += store4(st, vL16, 16384, 'sc1', soff=t1, base=t0, srd_=sPt)
    A('s_branch %s_fin' % lab)
    A('%s_comb:' % lab)
    for i in range(4):
        A('v_accvgpr_read_b32 v%d, a%d' % (80 + i, PART + 64 + i))
    for qb in range(2):
        nm2, l2 = 80 + 2 * qb, 81 + 2 * qb
        mn = vT[10]
        A('v_min_f32 v%d, v%d, v%d' % (mn, NM[qb], nm2))
        A('v_sub_f32 v%d, v%d, v%d' % (f1[qb], mn, NM[qb]))
        A('v_sub_f32 v%d, v%d, v%d' % (f2[qb], mn, nm2))
        A('v_exp_f32 v%d, v%d' % (f1[qb], f1[qb]))
        A('v_exp_f32 v%d, v%d' % (f2[qb], f2[qb]))
        A('v_mul_f32 v%d, v%d, v%d' % (f2[qb], f2[qb], l2))
        A('v_fma_f32 v%d, v%d, v%d, v%d' % (mn, f1[qb], Lr[qb], f2[qb]))
        A('v_rcp_f32 v%d, v%d' % (mn, mn))
        A('v_mul_f32 v%d, v%d, v%d' % (mn, mn, Gv[qb]))
        A('v_mul_f32 v%d, v%d, v%d' % (f1[qb], f1[qb], mn))
        A('v_mul_f32 v%d, v%d, v%d' % (f2[qb], f2[qb], mn))
    P += ctx_base()
    P += emit(sQ, lambda qb, pp, k: qb * HC_RB + pp * 1024, stflags, True)
    A('%s_fin:' % lab)
    return P


def decode():
    P = L('s_and_b32 s%d, s2, 7' % t2, 's_lshr_b32 s%d, s2, 3' % t0, 's_and_b32 s%d, s%d, 1' % (t1, t0),
          's_lshl_b32 s%d, s%d, 1' % (t2, t2), 's_add_u32 s%d, s%d, s%d' % (sH, t2, t1),
          's_lshr_b32 s%d, s%d, 2' % (sI, t0), 's_bfe_u32 s%d, s%d, 0x10001' % (t2, t0),
          's_lshl_b32 s%d, s%d, 3' % (sPair, sH), 's_add_u32 s%d, s%d, s%d' % (sPair, sPair, sI),
          's_sub_u32 s%d, 15, s%d' % (sQI, sI),
          's_lshl_b32 s%d, s%d, 1' % (t0, sI), 's_sub_u32 s%d, 32, s%d' % (t0, t0),
          's_cmp_eq_u32 s%d, 1' % t2,
          's_cselect_b32 s%d, s%d, s%d' % (sOwn, sQI, sI),
          's_cselect_b32 s%d, 2, 1' % sMode, 's_cselect_b32 s%d, 0, %d' % (sT0, SPLIT), 's_cselect_b32 s%d, %d, s%d' % (sT1, SPLIT, t0),
          's_cmp_gt_u32 s%d, %d' % (t0, SPLIT), 's_cbranch_scc1 L_dec_ok',
          's_mov_b32 s%d, 0' % sMode, 's_mov_b32 s%d, 0' % sT0, 's_mov_b32 s%d, s%d' % (sQI, sOwn),
          's_lshl_b32 s%d, s%d, 1' % (sT1, sQI), 's_add_u32 s%d, s%d, 2' % (sT1, sT1),
          'L_dec_ok:')
    return P


def own_q(src):
    P = L('s_cmp_eq_u32 s%d, 1' % sMode, 's_cbranch_scc1 @_park')
    P += [I('v_accvgpr_write_b32 a%d, v%d' % (Qa + i, src + i)) for i in range(64)]
    P += L('s_branch @_qd', '@_park:')
    P += [I('v_accvgpr_write_b32 a%d, v%d' % (PART + i, src + i)) for i in range(64)]
    P += L('@_qd:')
    return P


def run(endlab, stflags=''):
    P = L('L_seg:')
    P += segment('a', 63)
    P.append(STAMP(7))
    P += finish('f', stflags)
    P.append(STAMP(8))
    P += L('s_cmp_lg_u32 s%d, 1' % sMode, 's_cbranch_scc1 %s' % endlab, 's_mov_b32 s%d, 0' % sMode)
    P += pair_flag_addr() + L('s_mov_b32 s%d, s%d' % (sPOff, t0), 's_lshl_b32 s%d, 1, s%d' % (sPend, t1), 's_barrier')
    P += flat(seg_loads(None)[5])
    P += L('s_waitcnt vmcnt(49)', 's_branch L_seg')
    return P
```

```python
from asmlib import *

MF = 'v_mfma_f32_16x16x32_bf16'
WAVE = 35
T0, T1, T2, T3, U0, U1 = 31, 32, 33, 34, 26, 27


def rng(kind, b, n):
    return '%s[%d:%d]' % (kind, b, b + n - 1) if n > 1 else '%s%d' % (kind, b)


class Reg:
    def __init__(self, kind, base):
        self.kind, self.base = kind, base

    def r(self, i=0, n=1):
        return rng(self.kind, self.base + i, n)


def uni(idx):
    return Reg('v', idx) if idx < 256 else Reg('a', idx - 256)


def log2(x):
    n = x.bit_length() - 1
    assert 1 << n == x
    return n


def flat(G):
    return [i for g in G for i in g]


def L(*lines):
    return [I(x) for x in lines]


def nvm(P):
    return sum(1 for b in P if b.kind in ('vld', 'vst', 'dma'))


class Item:
    def __init__(self, pre, d, post, lds):
        self.pre, self.d, self.post, self.lds = pre, d, post, lds

    def all(self):
        return self.pre + [self.d] + flat(self.post)


class Gemm:
    def __init__(self, name, TX, TW, WX, WW, T, xtype, x_stride, w_stride, swap, nX, nW, s, vbase, acc_regs,
                 frag_regs, BK=64, kperm=False, xbase=0, wbase=None, rdpg=1.0, mode='step',
                 xfl='', wfl='', static=False, x0=0, w0=0, xres=False, wmajor=False):
        self.__dict__.update(locals())
        del self.self
        assert WX * WW == 4
        self.nxb = TX // WX // 16
        self.nwb = TW // WW // 16
        self.KS = BK // 32
        self.xrow = BK * 2
        self.xsz = TX * BK * 2
        self.wrow = TW * 2
        self.wsz = BK * TW * 2
        self.ndx = self.xsz // 4096
        assert self.xsz % 4096 == 0 and self.wsz % 4096 == 0
        self.ndw = self.wsz // 4096
        if wbase is None:
            self.wbase = xbase + nX * self.xsz
        self.lds_end = max(self.wbase + nW * self.wsz, xbase + nX * self.xsz)
        assert self.lds_end <= 163840, self.lds_end
        self.nm = self.nxb * self.nwb
        v = vbase
        self.vX = list(range(v, v + (self.ndx if xtype == 'rowk' else 1)))
        v += len(self.vX)
        self.vW = list(range(v, v + self.ndw))
        v += self.ndw
        self.xwin = -(-nX * self.xsz // 65536) if static else 1
        self.wwin = -(-nW * self.wsz // 65536) if static else 1
        na = self.KS if xtype == 'rowk' else 1
        self.aX = [list(range(v + k * na, v + (k + 1) * na)) for k in range(self.xwin)]
        v += na * self.xwin
        self.naw = min(self.nwb, 1 << len(self.wswz_bits()))
        self.aW = [list(range(v + k * self.naw, v + (k + 1) * self.naw)) for k in range(self.wwin)]
        v += self.naw * self.wwin
        self.vend = v
        self.FS = self.KS if mode == 'tile' else 1
        it = iter(frag_regs)
        if not xres:
            self.fX = [[[uni(next(it)) for b in range(self.nxb)] for k in range(self.FS)] for st in range(2)]
        self.fW = [[[uni(next(it)) for b in range(self.nwb)] for k in range(self.FS)] for st in range(2)]
        self.set_acc(acc_regs)

    def set_acc(self, acc_regs):
        assert len(acc_regs) >= self.nm
        self.acc = [[uni(acc_regs[x * self.nwb + w]) for w in range(self.nwb)] for x in range(self.nxb)]

    def wx_expr(self, dst):
        return L({1: 's_mov_b32 s%d, 0' % dst, 2: 's_and_b32 s%d, s%d, 1' % (dst, WAVE), 4: 's_mov_b32 s%d, s%d' % (dst, WAVE)}[self.WX])

    def ww_expr(self, dst):
        return L({1: 's_mov_b32 s%d, s%d' % (dst, WAVE), 2: 's_lshr_b32 s%d, s%d, 1' % (dst, WAVE), 4: 's_mov_b32 s%d, 0' % dst}[self.WX])

    def wswz_bits(self):
        lowbits = [0, 1, 2] if self.kperm else [0, 1, 3]
        if self.wrow % 256 == 0:
            return list(zip(lowbits, [0, 1, 2]))
        if self.wrow % 256 == 128:
            return list(zip(lowbits[1:], [0, 1]))
        raise ValueError(self.wrow)

    def fk(self, k):
        f = 0
        for kb, sb in self.wswz_bits():
            f |= ((k >> kb) & 1) << sb
        return f

    def voff_x(self, dst, stride, t=(1, 2), st0=U0):
        P = []
        A = lambda x: P.append(I(x))
        t1, t2 = ['v%d' % i for i in t]
        if self.xtype == 'rowk':
            cpr = self.xrow // 16
            rpi = 64 // cpr
            assert self.BK == 64 and self.ndx % 2 == 0 and stride % 128 == 0
            A('v_lshrrev_b32 %s, %d, v0' % (t1, log2(cpr)))
            A('s_mul_i32 s%d, s%d, %d' % (st0, WAVE, self.ndx * rpi * stride))
            A('v_mul_u32_u24 %s, %d, %s' % (t1, stride, t1))
            A('v_lshrrev_b32 %s, 4, v0' % t2)
            A('v_xor_b32 %s, %s, v0' % (t2, t2))
            A('v_and_b32 %s, %d, %s' % (t2, cpr - 1, t2))
            A('v_lshl_add_u32 %s, %s, 4, %s' % (t1, t2, t1))
            A('v_add_u32 v%d, s%d, %s' % (dst[0], st0, t1))
            A('v_xor_b32 %s, 64, v%d' % (t2, dst[0]))
            A('v_add_u32 v%d, %d, %s' % (dst[1], rpi * stride, t2))
            for j in range(2, self.ndx):
                A('v_add_u32 v%d, %d, v%d' % (dst[j], (j - j % 2) * rpi * stride, dst[j % 2]))
        else:
            assert self.ndx == self.KS <= 4
            A('s_mul_i32 s%d, s%d, %d' % (st0, WAVE, stride))
            A('v_lshl_add_u32 v%d, v0, 4, s%d' % (dst[0], st0))
        return P

    def voff_w(self, dst, stride, t=(1, 2, 3), st0=U0):
        P = []
        A = lambda x: P.append(I(x))
        t1, t2, t3 = ['v%d' % i for i in t]
        cw = self.wrow // 16
        rpi = 64 // cw
        assert cw & (cw - 1) == 0
        assert all(self.fk(w * self.ndw * rpi) == 0 for w in range(4))
        A('v_lshrrev_b32 %s, %d, v0' % (t1, log2(cw)))
        A('v_and_b32 %s, %d, v0' % (t2, cw - 1))
        for kb, sb in self.wswz_bits():
            if (1 << kb) < rpi:
                A('v_bfe_u32 %s, %s, %d, 1' % (t3, t1, kb))
                A('v_lshlrev_b32 %s, %d, %s' % (t3, sb + 1, t3))
                A('v_xor_b32 %s, %s, %s' % (t2, t2, t3))
        A('v_lshlrev_b32 %s, 4, %s' % (t2, t2))
        A('s_mul_i32 s%d, s%d, %d' % (st0, WAVE, self.ndw * rpi * stride))
        A('v_mul_u32_u24 %s, %d, %s' % (t1, stride, t1))
        A('v_add_u32 %s, s%d, %s' % (t1, st0, t1))
        done = {}
        for j in range(self.ndw):
            f = self.fk(j * rpi)
            if f in done:
                A('v_add_u32 v%d, %d, v%d' % (dst[j], (j - done[f]) * rpi * stride, dst[done[f]]))
            else:
                done[f] = j
                if f:
                    A('v_xor_b32 %s, %d, %s' % (t3, f * 32, t2))
                    A('v_add_u32 v%d, %s, %s' % (dst[j], t3, t1))
                else:
                    A('v_add_u32 v%d, %s, %s' % (dst[j], t2, t1))
                if j:
                    A('v_add_u32 v%d, %d, v%d' % (dst[j], j * rpi * stride, dst[j]))
        return P

    def setup_x(self):
        s = self.s
        P = self.voff_x(self.vX, self.x_stride)
        P += L('s_mul_i32 s%d, s%d, %d' % (s['xslot'], WAVE, self.ndx * 1024))
        if not self.static:
            assert self.xbase == 0 and self.x0 == 0
        return P

    def setup_w(self):
        s = self.s
        P = self.voff_w(self.vW, self.w_stride)
        P += L('s_mul_i32 s%d, s%d, %d' % (s['wslot'], WAVE, self.ndw * 1024))
        return P

    def setup_read(self, t=(1, 2, 3, 4, 5), st0=U0, st1=U1):
        s = self.s
        P = []
        A = lambda x: P.append(I(x))
        t1, t2, t3, t4, t5 = ['v%d' % i for i in t]
        P += self.wx_expr(st0)
        a0 = self.aX[0]
        if self.xtype == 'rowk':
            A('v_and_b32 %s, 15, v0' % t1)
            A('s_mul_i32 s%d, s%d, %d' % (st0, st0, self.nxb * 16 * self.xrow))
            if self.xbase:
                A('s_add_u32 s%d, s%d, %d' % (st0, st0, self.xbase))
            A('v_lshl_add_u32 %s, %s, %d, s%d' % (t1, t1, log2(self.xrow), st0))
            A('v_lshrrev_b32 %s, 4, v0' % t2)
            A('v_bfe_u32 %s, v0, 1, 3' % t3)
            A('v_xor_b32 %s, %s, %s' % (t2, t2, t3))
            A('v_lshl_add_u32 v%d, %s, 4, %s' % (a0[0], t2, t1))
            for kk in range(1, self.KS):
                A('v_xor_b32 v%d, %d, v%d' % (a0[kk], kk * 64, a0[0]))
        else:
            A('s_mul_i32 s%d, s%d, %d' % (st0, st0, self.nxb * self.KS * 1024))
            if self.xbase:
                A('s_add_u32 s%d, s%d, %d' % (st0, st0, self.xbase))
            A('v_lshl_add_u32 v%d, v0, 4, s%d' % (a0[0], st0))
        for k in range(1, self.xwin):
            for a, b in zip(self.aX[k], a0):
                A('v_add_u32 v%d, %d, v%d' % (a, 65536 * k, b))
        A('v_bfe_u32 %s, v0, 2, 2' % t1)
        A('v_lshrrev_b32 %s, 4, v0' % t2)
        A('v_lshl_add_u32 %s, %s, %d, %s' % (t2, t2, 2 if self.kperm else 3, t1))
        for i, (kb, sb) in enumerate(self.wswz_bits()):
            if i == 0:
                A('v_bfe_u32 %s, %s, %d, 1' % (t4, t2, kb))
            else:
                A('v_bfe_u32 %s, %s, %d, 1' % (t5, t2, kb))
                A('v_lshl_or_b32 %s, %s, %d, %s' % (t4, t5, sb, t4))
        A('v_mul_u32_u24 %s, %d, %s' % (t2, self.wrow, t2))
        A('v_and_b32 %s, 3, v0' % t3)
        A('v_lshl_add_u32 %s, %s, 3, %s' % (t2, t3, t2))
        A('v_add_u32 %s, %d, %s' % (t2, self.wbase, t2))
        P += self.ww_expr(st0)
        A('s_mul_i32 s%d, s%d, %d' % (st0, st0, self.nwb))
        A('v_xor_b32 %s, s%d, %s' % (t4, st0, t4))
        assert self.WW == 1 or (self.nwb & (self.nwb - 1)) == 0
        for wb in range(self.naw):
            A('v_xor_b32 %s, %d, %s' % (t3, wb, t4))
            A('v_lshl_add_u32 v%d, %s, 5, %s' % (self.aW[0][wb], t3, t2))
        for k in range(1, self.wwin):
            for a, b in zip(self.aW[k], self.aW[0]):
                A('v_add_u32 v%d, %d, v%d' % (a, 65536 * k, b))
        if not self.static:
            P += L('s_mov_b32 s%d, 0' % s['xrd'], 's_mov_b32 s%d, 0' % s['wrd'])
        return P

    def wfrag(self, t):
        return False

    def xslot_of(self, t):
        return (t + self.x0) % self.nX

    def wslot_of(self, t):
        return (t + self.w0) % self.nW

    def tag(self, which, t):
        if self.static:
            return '%s%s%d' % (self.name, which, self.xslot_of(t) if which == 'X' else self.wslot_of(t))
        return self.name + which

    def group(self, which, t, vregs=None, wstep=None, pre=None, tag=None):
        s = self.s
        X = which == 'X'
        srd, off, slot = (s['xsrd'], s['xoff'], s['xslot']) if X else (s['wsrd'], s['woff'], s['wslot'])
        nd, sz, ns, base = (self.ndx, self.xsz, self.nX, self.xbase) if X else (self.ndw, self.wsz, self.nW, self.wbase)
        sl = self.xslot_of(t) if X else self.wslot_of(t)
        step = (self.BK * 2 if self.xtype == 'rowk' else self.KS * 1024) if X else (wstep or self.BK * self.w_stride)
        fl = self.xfl if X else self.wfl
        cst = base + (sl * sz if self.static else 0)
        lds = (base + sl * sz, base + (sl + 1) * sz)
        vv = vregs or (self.vX if X else self.vW)
        items = []
        for j in range(nd):
            m = list(pre or []) if j == 0 else []
            if (X and self.xtype == 'frag') or (not X and self.wfrag(t)):
                if j == 0:
                    m.append(I('s_add_u32 m0, s%d, %d' % (slot, cst)))
                d = I('buffer_load_dwordx4 v%d, s[%d:%d], s%d offen offset:%d %s lds' % (vv[0], srd, srd + 3, off, j * 1024, fl), tag=tag or self.tag(which, t))
            else:
                m.append(I('s_add_u32 m0, s%d, %d' % (slot, cst + j * 1024)))
                d = I('buffer_load_dwordx4 v%d, s[%d:%d], s%d offen %s lds' % (vv[j], srd, srd + 3, off, fl), tag=tag or self.tag(which, t))
            post = []
            if j == nd - 1:
                post = [L('s_add_u32 s%d, s%d, %d' % (off, off, step))]
                if not self.static:
                    post += [L('s_add_u32 s%d, s%d, %d' % (slot, slot, sz)),
                             L('s_sub_u32 s%d, s%d, %d' % (T3, slot, ns * sz), 's_min_u32 s%d, s%d, s%d' % (slot, slot, T3))]
            items.append(Item(m, d, post, lds))
        return items

    def order(self):
        return ['W', 'X'] if self.nX >= self.nW else ['X', 'W']

    def G(self, t):
        R = []
        for wch in self.order():
            tt = t + (self.nX if wch == 'X' else self.nW)
            if tt < self.T and not (wch == 'X' and self.xres):
                R += self.group(wch, tt)
        return R

    def first_groups(self):
        R = []
        for t in range(max(self.nX, self.nW) - 1):
            if t < self.nX - 1 and not self.xres:
                R.append(self.group('X', t, tag=None if (self.static or t) else self.name + 'X0'))
            if t < self.nW - 1:
                R.append(self.group('W', t, tag=None if (self.static or t) else self.name + 'W0'))
        return R

    def live_ranges(self, b):
        R = []
        for t in range(b + 1, min(self.T, b + 1 + max(self.nX, self.nW))):
            if not self.xres and t < b + 1 + self.nX:
                R.append((self.xbase + self.xslot_of(t) * self.xsz, self.xbase + (self.xslot_of(t) + 1) * self.xsz))
            if t < b + 1 + self.nW:
                R.append((self.wbase + self.wslot_of(t) * self.wsz, self.wbase + (self.wslot_of(t) + 1) * self.wsz))
        return R

    def reads(self, t, kks, st):
        out = []
        xo = self.xslot_of(t) * self.xsz if self.static else 0
        wo = self.wslot_of(t) * self.wsz if self.static else 0
        for fi, kk in enumerate(kks):
            rx = []
            if not self.xres:
                for b in range(self.nxb):
                    o = xo + (b * 16 * self.xrow if self.xtype == 'rowk' else (b * self.KS + kk) * 1024)
                    rx.append(I('ds_read_b128 %s, v%d offset:%d' % (self.fX[st][fi][b].r(0, 4),
                                                                    self.aX[o >> 16][kk if self.xtype == 'rowk' else 0], o & 65535)))
            rw = []
            for b in range(self.nwb):
                if self.wfrag(t):
                    rw.append(I('ds_read_b128 %s, v%d offset:%d' % (self.fW[st][fi][b].r(0, 4), self.aWf, wo + (kk * self.TW // 16 + b) * 1024)))
                    continue
                for h in range(2):
                    o = wo + (32 * kk + (16 if self.kperm else 4) * h) * self.wrow + (b // self.naw) * self.naw * 32
                    rw.append(I('ds_read_b64_tr_b16 %s, v%d offset:%d' % (self.fW[st][fi][b].r(2 * h, 2), self.aW[o >> 16][b % self.naw], o & 65535)))
            out += (rx + rw) if self.wmajor else (rx[:1] + rw + rx[1:])
        return out

    def xfrag(self, t, st, fi, x):
        return self.fX[st][fi][x]

    def mfmas(self, t, st, zero=False):
        R = []
        for fi in range(self.FS):
            for x, w in ([(x, w) for w in range(self.nwb) for x in range(self.nxb)] if self.wmajor else
                         [(x, w) for x in range(self.nxb) for w in range(self.nwb)]):
                if True:
                    xa, wa = self.xfrag(t, st, fi, x).r(0, 4), self.fW[st][fi][w].r(0, 4)
                    a, b = (wa, xa) if self.swap else (xa, wa)
                    c = self.acc[x][w].r(0, 4)
                    R.append(I('%s %s, %s, %s, %s' % (MF, c, a, b, '0' if (zero and fi == 0) else c)))
        return R

    def geom(self):
        tile = self.mode == 'tile'
        nsteps = 1 if tile else self.KS
        nm = self.nm * self.FS
        return tile, nsteps, nm, nsteps * nm, (nsteps - 1) * nm

    def rdgap(self, i, stp=0):
        r = self.rdpg[stp] if isinstance(self.rdpg, (list, tuple)) else self.rdpg
        return int(i / r)

    def positions(self, n):
        tile, nsteps, nm, NG, bar = self.geom()
        nrd = len(self.reads(0, range(self.FS), 0))
        cnt = [0] * NG
        for stp in range(nsteps):
            for i in range(nrd):
                cnt[stp * nm + self.rdgap(i, stp)] += 1
        end = NG + bar - (0 if tile else max(2, nm // 4))
        cand = [g for g in range(bar, end - 1) if cnt[g % NG] == 0]
        if len(cand) < n:
            cand = [g for g in range(bar, end - 1) if cnt[g % NG] <= 1]
        if len(cand) < n:
            cand = list(range(bar, end - 1))
        return [cand[i * len(cand) // n] for i in range(n)]

    def split(self, items):
        NG = self.geom()[3]
        pos = self.positions(len(items))
        n3 = sum(1 for p in pos if p < NG)
        return list(zip(items[:n3], pos[:n3])), [(it, p - NG) for it, p in zip(items[n3:], pos[n3:])]

    def iter(self, t, late, early, extra=(), zero=False, last=False, tailcode=(), extra_mf=(), needs=None, xg=None, cap=2.0):
        s = self.s
        tile, nsteps, nm, NG, bar = self.geom()
        head = [[] for _ in range(NG)]
        gaps = [[] for _ in range(NG)]
        pre_gap = [[] for _ in range(NG)]
        load = [0.0] * NG
        par = t % 2 if tile else 0
        nrd = len(self.reads(0, range(self.FS), 0))
        lastrd = self.rdgap(nrd - 1, max(0, nsteps - 2))
        rds = [[] for _ in range(NG)]
        for stp in range(nsteps):
            cur = (stp + par) % 2
            nxt_tile = tile or stp == nsteps - 1
            if not (last and nxt_tile):
                rl = self.reads(t + 1 if nxt_tile else t, range(self.KS) if tile else [(stp + 1) % self.KS], 1 - cur)
                for i, r in enumerate(rl):
                    g = stp * nm + self.rdgap(i, stp)
                    assert g < (stp + 1) * nm
                    rds[g].append(r)
                    load[g] += 1 if len(rds[g]) == 1 else 2
            if not self.wmajor:
                pre_gap[stp * nm].append(I('s_waitcnt lgkmcnt(0)'))
            else:
                for w in range(0, self.nwb, 4):
                    regs = [self.fW[cur][0][u] for u in range(w, min(self.nwb, w + 4))] + (self.fX[cur][0] if w == 0 else [])
                    pre_gap[stp * nm + w * self.nxb].append(I('', needs=[r.r(k) for r in regs for k in range(4)]))
        if not self.static and not last:
            upd = []
            for rd, sz, n, d in ((s['xrd'], self.xsz, self.nX, T0), (s['wrd'], self.wsz, self.nW, T1)):
                upd += [L('s_add_u32 s%d, s%d, %d' % (d, rd, sz), 's_sub_u32 s%d, s%d, %d' % (T2, d, n * sz)),
                        L('s_min_u32 s%d, s%d, s%d' % (T2, d, T2), 's_sub_u32 s%d, s%d, s%d' % (d, T2, rd)),
                        L('s_mov_b32 s%d, s%d' % (rd, T2))]
            updv = [I('v_add_u32 v%d, s%d, v%d' % (a, T0, a)) for a in self.aX[0]]
            updv += [I('v_add_u32 v%d, s%d, v%d' % (a, T1, a)) for a in self.aW[0]]
            ub = max(0, nsteps - 2) * nm
            for i, u in enumerate(upd):
                gaps[ub + 1 + 2 * i].extend(u)
                load[ub + 1 + 2 * i] += len(u)
            room = nm - 1 - lastrd
            for i, u in enumerate(updv):
                g = ub + lastrd + 1 + (i * room // len(updv))
                gaps[g].append(u)
                load[g] += 1
        if needs is None:
            needs = []
            if not last:
                if self.static:
                    needs = [self.tag('W', t + 1)] + ([] if self.xres else [self.tag('X', t + 1)])
                else:
                    assert self.nW == 2 and self.nX == 3
                    needs = [self.tag('W', t + 1)]
        pre_gap[bar] = ([need(*needs)] if needs else []) + [I('s_waitcnt lgkmcnt(0)'), I('s_barrier')]
        for lst, lo, hi in ((late, 0, bar), (early, bar, NG)):
            prev = -1
            for i, (it, gi) in enumerate(lst):
                assert lo <= gi < hi or (not tile and lo <= gi < NG), (gi, lo, hi)
                if gi > lo and gi > prev:
                    gaps[gi - 1].extend(it.pre)
                    load[gi - 1] += len(it.pre)
                    head[gi].append(it.d)
                else:
                    head[gi].extend(it.pre + [it.d])
                    load[gi] += len(it.pre)
                load[gi] += 2
                prev = gi
                nxt = lst[i + 1][1] if i + 1 < len(lst) else gi + 6
                lim = min(nxt - 1, hi - 1)
                for q, pp in enumerate(it.post):
                    gq = min(gi + 1 + q, lim - 1)
                    if gq <= gi:
                        head[gi].extend(pp)
                        load[gi] += len(pp)
                    else:
                        gaps[gq].extend(pp)
                        load[gq] += len(pp)
        ex = [e if isinstance(e, (list, tuple)) else [e] for e in extra]
        g0, g1 = xg or (0, NG)
        g = g0
        for i, e in enumerate(ex):
            tgt = max(g, g0 + i * (g1 - g0) // len(ex))
            k = tgt
            room = g0 + (i + 1) * (g1 - g0) // len(ex) + 2
            c = sum(2 if x.kind in ('vst', 'vld', 'dma', 'trans') else 1 for x in e)
            while k < min(g1 - 1, room) and load[k] + min(c, cap) > cap:
                k += 1
            gaps[k].extend(e)
            load[k] += c
            g = k
        ms = []
        for stp in range(nsteps):
            ms += self.mfmas(t, (stp + par) % 2, zero=zero and stp == 0)
        out = []
        for g in range(NG):
            out.extend(pre_gap[g])
            out.append(ms[g])
            out.extend(rds[g])
            out.extend(head[g])
            out.extend(gaps[g])
        out += list(extra_mf) + list(tailcode)
        return out

    def zero_acc(self):
        P = []
        for x in range(self.nxb):
            for w in range(self.nwb):
                a = self.acc[x][w]
                for r in range(4):
                    P.append(I(('v_accvgpr_write_b32 %s, 0' if a.kind == 'a' else 'v_mov_b32 %s, 0') % a.r(r)))
        return P

    def start(self, needs=None):
        if needs is None:
            needs = [self.tag('W', 0)] + ([] if self.xres else [self.tag('X', 0)])
            if not self.static:
                needs = [self.name + 'W0', self.name + 'X0']
        return [need(*needs), I('s_barrier')] + self.reads(0, range(self.FS), 0)


def disjoint(r, ranges):
    return all(r[1] <= a or r[0] >= b for a, b in ranges)


def graft(g, b, own, queue, maxn):
    live = g.live_ranges(b)
    R = list(own)
    while queue and len(R) < maxn and disjoint(queue[0].lds, live):
        R.append(queue.pop(0))
    return R


def run_static(g, lab, cnt, Gf, opts=None, loop=None, late0=None):
    P = []
    late = late0 if late0 is not None else g.split(Gf(-1))[1]
    t = 0
    while t < g.T:
        if loop and t == loop[0]:
            a, b, per = loop
            assert (b - a) % per == 0
            P += L('s_mov_b32 s%d, %d' % (cnt, (b - a) // per), lab + '_loop:')
            for u in range(a, a + per):
                early, nl = g.split(Gf(u))
                tc = L('s_sub_u32 s%d, s%d, 1' % (cnt, cnt), 's_cmp_lg_u32 s%d, 0' % cnt, 's_cbranch_scc1 %s_loop' % lab) if u == a + per - 1 else []
                P += g.iter(u, late, early, tailcode=tc, **(opts(u) if opts else {}))
                late = nl
            t = b
            continue
        early, nl = g.split(Gf(t))
        kw = dict(opts(t)) if opts else {}
        if t == g.T - 1:
            kw['last'] = True
        P += g.iter(t, late, early, **kw)
        late = nl
        t += 1
    return P, [it for it, p in late]
```

```python
from asmlib import *
from engine import *

MB = 1 << 20
WS_K, WS_V, WS_Q, WS_HC, WS_Z2N, WS_G, WS_PART = 0, 16 * MB, 32 * MB, 48 * MB, 68 * MB, 72 * MB, 73 * MB
HC_KS = 156
HC_RB = HC_KS * 1024
HC_SIZE = 128 * HC_RB
P_X, P_CKV, P_WQ, P_WUK, P_WUV, P_WO, P_BX, P_WIN, P_WSP, P_BSP, P_WOUT, P_GATE, P_OUT, P_DBG, P_WS = [40 + 2 * i for i in range(15)]

SA = dict(xsrd=8, wsrd=12, xoff=20, woff=21, xslot=22, wslot=23, xrd=24, wrd=25)
SB = dict(xsrd=88, wsrd=92, xoff=36, woff=37, xslot=38, wslot=39)
OSRD, AUX, CNT = 16, 4, 28
QSRD = 96
E0, E1, E2, E3 = 84, 85, 29, 30
BANK = (8, 38)
MISC = 68
ACC0 = 72
VL16 = 6
VSTAMP = 7
LOG2E = 1.4426950408889634


def f2u(x):
    import struct
    return struct.unpack('<I', struct.pack('<f', x))[0]


def entry(nwg, endlab):
    return L('s_cmp_ge_u32 s2, %d' % nwg, 's_cbranch_scc1 %s' % endlab,
             's_load_dwordx16 s[40:55], s[0:1], 0', 's_load_dwordx8 s[56:63], s[0:1], 64',
             's_load_dwordx4 s[64:67], s[0:1], 96', 's_load_dwordx2 s[68:69], s[0:1], 112',
             'v_lshrrev_b32 v1, 6, v0', 'v_readfirstlane_b32 s%d, v1' % WAVE, 'v_and_b32 v0, 63, v0',
             'v_lshlrev_b32 v%d, 4, v0' % VL16)


def srd(dst, ptr, size, off=0):
    if off:
        P = L('s_add_u32 s%d, s%d, %d' % (dst, ptr, off), 's_addc_u32 s%d, s%d, 0' % (dst + 1, ptr + 1))
    else:
        P = L('s_mov_b32 s%d, s%d' % (dst, ptr), 's_mov_b32 s%d, s%d' % (dst + 1, ptr + 1))
    return P + L('s_mov_b32 s%d, %d' % (dst + 2, size), 's_mov_b32 s%d, 0x20000' % (dst + 3))


def store4(src, va, off, flags='', soff=E1, base=E0, srd_=OSRD):
    src = src if isinstance(src, Reg) else Reg('v', src)
    hi, lo = off & ~4095, off & 4095
    P = L('s_add_u32 s%d, s%d, %d' % (soff, base, hi)) if hi else []
    P.append(I('buffer_store_dwordx4 %s, v%d, s[%d:%d], s%d offen offset:%d %s' % (
        src.r(0, 4), va, srd_, srd_ + 3, soff if hi else base, lo, flags)))
    return P


def with_pre(items, pre):
    items[0].pre = list(pre) + items[0].pre
    return items


pr = lambda r: 'v[%d:%d]' % (r, r + 1)


def items_code(items):
    return flat([it.all() for it in items])


class KV:
    NV = 14
    DA = 152

    def __init__(self, sSB, sH, sKV, stflags=''):
        self.__dict__.update(locals())
        frags = [256 + 4 * i for i in range(32)]
        self.g2 = []
        for isK in (True, False):
            pairs = [((x, 2 * p), (x, 2 * p + 1)) for x in range(8) for p in range(4)] if isK else \
                    [((2 * p, w), (2 * p + 1, w)) for p in range(4) for w in range(8)]
            amap = {}
            vlo = list(range(ACC0, 200, 4))
            for k, (a, b) in enumerate(pairs):
                if k < 14:
                    amap[a], amap[b] = 200 + 4 * k, vlo.pop(0)
                elif k < 23:
                    amap[a], amap[b] = vlo.pop(0), vlo.pop(0)
                else:
                    amap[a], amap[b] = 256 + 184 + 8 * (k - 23), 256 + 188 + 8 * (k - 23)
            accs = [amap[x, w] for x in range(8) for w in range(8)]
            g = Gemm('kv', 256, 256, 2, 2, 16, 'rowk', 2048, 8192, isK, 3, 2, SA, BANK[0], accs, frags, rdpg=0.5)
            g.pairs = pairs
            self.g2.append(g)
        self.g = self.g2[0]
        assert self.g.vend <= BANK[0] + 30

    def prologue(self):
        g = self.g
        G = g.first_groups()
        with_pre(G[0], srd(SA['xsrd'], P_CKV, 4 * MB) + L('s_lshl_b32 s%d, s%d, 19' % (SA['xoff'], self.sSB)) + g.setup_x())
        with_pre(G[1], L('s_cmp_eq_u32 s%d, 0' % self.sKV,
                         's_cselect_b32 s%d, s%d, s%d' % (SA['wsrd'], P_WUK, P_WUV),
                         's_cselect_b32 s%d, s%d, s%d' % (SA['wsrd'] + 1, P_WUK + 1, P_WUV + 1),
                         's_mov_b32 s%d, %d' % (SA['wsrd'] + 2, 8 * MB), 's_mov_b32 s%d, 0x20000' % (SA['wsrd'] + 3),
                         's_lshl_b32 s%d, s%d, 9' % (SA['woff'], self.sH)) + g.setup_w())
        return G

    def off(self, isK, k):
        return (k // 4) * 8192 + (k % 4) * 1024 if isK else (k // 8) * 16384 + (k % 8) * 1024

    def pack(self, isK, tmp):
        g = self.g2[0 if isK else 1]
        P = srd(OSRD, P_WS, 32 * MB) + g.wx_expr(E1)
        P += L('s_lshl_b32 s%d, s%d, 1' % (E0, self.sSB), 's_add_u32 s%d, s%d, s%d' % (E0, E0, E1), 's_lshl_b32 s%d, s%d, 16' % (E0, E0))
        P += g.ww_expr(E1)
        P += L('s_lshl_b32 s%d, s%d, %d' % (E1, E1, 12 if isK else 13), 's_add_u32 s%d, s%d, s%d' % (E0, E0, E1),
               's_lshl_b32 s%d, s%d, 20' % (E1, self.sH), 's_add_u32 s%d, s%d, s%d' % (E0, E0, E1))
        if not isK:
            P += L('s_add_u32 s%d, s%d, %d' % (E0, E0, WS_V))
        P += L('s_mov_b32 s%d, %d' % (E2, 8192 - 4096 if isK else 0), 's_mov_b32 s%d, %d' % (E3, 8192 - 4096 if isK else 16384 - 8192))
        order = list(range(23, 32)) + list(range(14, 23)) + list(range(14))
        dslot = 0
        self.qloc = {}
        for n, k in enumerate(order):
            a, b = g.acc[g.pairs[k][0][0]][g.pairs[k][0][1]], g.acc[g.pairs[k][1][0]][g.pairs[k][1][1]]
            t = tmp[n % len(tmp)]
            if a.kind == 'a':
                for u, tl in enumerate((a, b)):
                    for r in range(4):
                        P.append(I('v_accvgpr_read_b32 v%d, %s' % (t + 4 + 4 * u + r, tl.r(r))))
                src = [t + 4 + i for i in range(8)]
                d = t
            else:
                src = [a.base + i for i in range(4)] + [b.base + i for i in range(4)]
                d = a.base
            for r in range(4):
                P.append(I('v_cvt_pk_bf16_f32 v%d, v%d, v%d' % (d + r, src[2 * r], src[2 * r + 1])))
            if k >= 14:
                da = self.DA + 4 * dslot
                dslot += 1
                for r in range(4):
                    P.append(I('v_accvgpr_write_b32 a%d, v%d' % (da + r, d + r)))
                self.qloc[k] = Reg('a', da)
            else:
                self.qloc[k] = Reg('v', d)
        return P

    def stores(self):
        R = []
        for k in range(32):
            grp = []
            if k and k % 4 == 0:
                grp += L('s_add_u32 s%d, s%d, 4096' % (E0, E0), 's_add_u32 s%d, s%d, s%d' % (E0, E0, E3 if k % 8 == 0 else E2))
            grp.append(I('buffer_store_dwordx4 %s, v%d, s[%d:%d], s%d offen offset:%d %s' % (
                self.qloc[k].r(0, 4), VL16, OSRD, OSRD + 3, E0, (k % 4) * 1024, self.stflags), tag='kvst'))
            R.append(grp)
        return R


class QJ:
    QP = 136

    def __init__(self, sQB, sH, stflags=''):
        self.__dict__.update(locals())
        amap = {}
        for x in range(2):
            for p in range(8):
                amap[x, 2 * p], amap[x, 2 * p + 1] = self.QP + 4 * (x * 8 + p), ACC0 + 4 * (x * 8 + p)
        accs = [amap[x, w] for x in range(2) for w in range(16)]
        frags = [256 + 4 * i for i in range(36)]
        self.g = Gemm('q', 128, 256, 4, 1, 7, 'rowk', 896, 8192, True, 4, 3, SB, BANK[1], accs, frags, static=True, x0=2, rdpg=(1.25, 1.1), wmajor=True)
        assert self.g.vend <= BANK[1] + 30

    def prologue(self):
        g = self.g
        G = g.first_groups()
        return [G[0], G[2], G[1], G[3], G[4]]

    def setup(self):
        g = self.g
        return srd(SB['xsrd'], P_X, 2048 * 896) + L('s_mul_i32 s%d, s%d, %d' % (SB['xoff'], self.sQB, 128 * 896)) + g.setup_x() + \
            srd(SB['wsrd'], P_WQ, 448 * 8192) + L('s_lshl_b32 s%d, s%d, 9' % (SB['woff'], self.sH)) + g.setup_w()

    def pack(self):
        g = self.g
        P = L('v_mov_b32 v4, 0x%x' % f2u(LOG2E / 16))
        for x in range(2):
            for p in range(8):
                a, b = g.acc[x][2 * p].base, g.acc[x][2 * p + 1].base
                for r in (a, a + 2, b, b + 2):
                    P.append(I('v_pk_mul_f32 %s, %s, %s op_sel_hi:[1,0]' % (pr(r), pr(r), pr(4))))
                for i, r in enumerate((a, a + 2, b, b + 2)):
                    P.append(I('v_cvt_pk_bf16_f32 v%d, v%d, v%d' % (a + i, r, r + 1)))
        return P

    def store_setup(self, sbase, enable):
        P = srd(QSRD, P_WS, 16 * MB, off=WS_Q) + L(*enable) + L('s_cselect_b32 s%d, %d, 0' % (QSRD + 2, 16 * MB))
        P += L('s_lshl_b32 s%d, s%d, 2' % (sbase, self.sQB), 's_add_u32 s%d, s%d, s%d' % (sbase, sbase, WAVE), 's_lshl_b32 s%d, s%d, 14' % (sbase, sbase),
               's_lshl_b32 s%d, s%d, 20' % (U0, self.sH), 's_add_u32 s%d, s%d, s%d' % (sbase, sbase, U0))
        return P

    def stores(self, sbase):
        R = []
        for k in range(16):
            grp = L('s_add_u32 s%d, s%d, 4096' % (sbase, sbase)) if (k and k % 4 == 0) else []
            grp.append(I('buffer_store_dwordx4 v[%d:%d], v%d, s[%d:%d], s%d offen offset:%d %s' % (
                self.QP + 4 * k, self.QP + 4 * k + 3, VL16, QSRD, QSRD + 3, sbase, (k % 4) * 1024, self.stflags), tag='kvst'))
            R.append(grp)
        return R


GC0 = -2.0 * LOG2E * 0.7978845608028654
GC1 = GC0 * 0.044715


def gelu_regs(regs, vC0, vC1, tmps):
    P = []
    n = len(tmps)
    for i0 in range(0, len(regs), n):
        grp = list(zip(regs[i0:i0 + n], tmps))
        g2 = grp[0::2]
        P += [I('v_pk_mul_f32 %s, %s, %s' % (pr(t), pr(x), pr(x))) for x, t in g2]
        P += [I('v_pk_fma_f32 %s, %s, %s, %s' % (pr(t), pr(t), pr(vC1), pr(vC0))) for x, t in g2]
        P += [I('v_pk_mul_f32 %s, %s, %s' % (pr(t), pr(t), pr(x))) for x, t in g2]
        P += [I('v_exp_f32 v%d, v%d' % (t, t)) for x, t in grp]
        P += [I('v_pk_add_f32 %s, %s, 1.0 op_sel_hi:[1,0]' % (pr(t), pr(t))) for x, t in g2]
        P += [I('v_rcp_f32 v%d, v%d' % (t, t)) for x, t in grp]
        P += [I('v_pk_mul_f32 %s, %s, %s' % (pr(x), pr(x), pr(t))) for x, t in g2]
    return P


def gelu_consts(vC0, vC1):
    return L('v_mov_b32 v%d, 0x%x' % (vC0, f2u(GC0)), 'v_mov_b32 v%d, 0x%x' % (vC0 + 1, f2u(GC0)),
             'v_mov_b32 v%d, 0x%x' % (vC1, f2u(GC1)), 'v_mov_b32 v%d, 0x%x' % (vC1 + 1, f2u(GC1)))


def xlane_reduce(reg, tmp, op):
    return L('v_mov_b32 v%d, v%d' % (tmp, reg), 'v_permlane32_swap_b32 v%d, v%d' % (reg, tmp),
             '%s v%d, v%d, v%d' % (op, reg, reg, tmp),
             'v_mov_b32 v%d, v%d' % (tmp, reg), 'v_permlane16_swap_b32 v%d, v%d' % (reg, tmp),
             '%s v%d, v%d, v%d' % (op, reg, reg, tmp))


class Z2:
    XST = 104 * 1024
    RED = 65536 + 6144

    def __init__(self, sRB, stflags=''):
        self.__dict__.update(locals())
        self.A = [[ACC0 + 4 * i for i in range(8)]] * 2
        self.ZP = 128
        self.XF = 256 + 64
        g = self.g = Gemm('z', 64, 128, 2, 2, 49, 'rowk', 896, 3584, False, 7, 10, SB, BANK[1], self.A[0], [256 + 4 * i for i in range(16)],
                          mode='tile', static=True, xres=True, xbase=self.XST, wbase=0, rdpg=1.15)
        g.xfrag = lambda t, st, fi, x: uni(self.XF + 4 * (x * 14 + 2 * (t % 7) + fi))
        assert g.vend <= 58
        self.C0, self.C1, self.ST, self.TM = 58, 60, 240, list(range(104, 120))

    def wg(self, t):
        return self.g.group('W', t, wstep=(64 * 3584 if t % 7 != 6 else (256 - 6 * 64 * 3584) & 0xffffffff))

    def post_chunk(self, c):
        P = []
        acc = self.A[0]
        for x in range(2):
            regs = [acc[x * 4 + w] + r for w in range(4) for r in range(4)]
            P += gelu_regs(regs, self.C0, self.C1, self.TM)
            for i in range(0, 16, 2):
                s1, s2 = self.ST + 4 * x + (i & 2), self.ST + 8 + 4 * x + (i & 2)
                P.append(I('v_pk_add_f32 %s, %s, %s' % (pr(s1), pr(s1), pr(regs[i]))))
                P.append(I('v_pk_fma_f32 %s, %s, %s, %s' % (pr(s2), pr(regs[i]), pr(regs[i]), pr(s2))))
                P.append(I('v_cvt_pk_bf16_f32 v%d, v%d, v%d' % (self.ZP + (c * 4 + i // 4) * 4 + 2 * x + (i & 2) // 2, regs[i], regs[i] + 1)))
        return P

    def run(self, between, nxt_queue):
        g = self.g
        P = srd(SB['wsrd'], P_WIN, 448 * 3584) + L('s_mov_b32 s%d, 1792' % SB['woff']) + g.setup_w() + items_code(self.wg(0))
        P += srd(SB['xsrd'], P_X, 2048 * 896) + L('s_mul_i32 s%d, s%d, %d' % (SB['xoff'], self.sRB, 64 * 896)) + g.setup_x()
        for t in range(7):
            P += items_code(g.group('X', t, tag='zX'))
        for t in range(1, 6):
            P += items_code(self.wg(t))
        P += between
        P += g.setup_read() + gelu_consts(self.C0, self.C1) + [I('v_mov_b32 v%d, 0' % (self.ST + i)) for i in range(16)]
        P += [need('zX', g.tag('W', 0)), I('s_barrier')]
        for t in range(7):
            for kk in range(2):
                for x in range(2):
                    P.append(I('ds_read_b128 %s, v%d offset:%d' % (g.xfrag(t, 0, kk, x).r(0, 4), g.aX[0][kk], t * 8192 + x * 2048)))
        P += g.reads(0, range(2), 0) + [STAMP(41)]

        def Gf(t):
            own = []
            if t == 0:
                own = flat([self.wg(u) for u in range(6, 11)])
            elif 0 < t and t + 10 < 49:
                own = self.wg(t + 10)
            if t + 10 >= 49:
                own = graft(g, t, own, nxt_queue, 6)
            return own
        late = []
        for t in range(49):
            c = t // 7
            g.set_acc(self.A[c % 2])
            early, _ = g.split(Gf(t))
            P += g.iter(t, [], early, zero=(t % 7 == 0), last=(t == 48),
                        tailcode=((self.post_chunk(c) if c < 6 else []) + [STAMP(42 + c)]) if t % 7 == 6 else [])
        return P

    def epi(self):
        g = self.g
        P = self.post_chunk(6)
        A = lambda x: P.append(I(x))
        ST = self.ST
        for sh in (8, 4, 2, 1):
            for i in range(16):
                A('v_add_f32_dpp v%d, v%d, v%d row_ror:%d row_mask:0xf bank_mask:0xf' % (ST + i, ST + i, ST + i, sh))
        P += L('v_lshrrev_b32 v2, 4, v0', 'v_lshlrev_b32 v2, 4, v2', 's_lshl_b32 s%d, s%d, 8' % (U0, WAVE), 's_add_u32 s%d, s%d, %d' % (U0, U0, self.RED),
               'v_add_u32 v3, s%d, v2' % U0, 's_xor_b32 s%d, s%d, 512' % (U0, U0), 'v_add_u32 v2, s%d, v2' % U0)
        for i in range(4):
            A('ds_write_b128 v3, v[%d:%d] offset:%d' % (ST + 4 * i, ST + 4 * i + 3, 64 * i))
        P += L('s_waitcnt lgkmcnt(0)', 's_barrier')
        T = self.TM[0]
        for i in range(4):
            A('ds_read_b128 v[%d:%d], v2 offset:%d' % (T + 4 * i, T + 4 * i + 3, 64 * i))
        for i in range(16):
            A('v_add_f32 v%d, v%d, v%d' % (ST + i, ST + i, T + i))
        seqs = []
        for i in range(8):
            m, v = ST + i, ST + 8 + i
            seqs.append(L('v_mul_f32 v%d, 0x%x, v%d' % (m, f2u(1.0 / 896), m), 'v_mul_f32 v%d, 0x%x, v%d' % (v, f2u(1.0 / 896), v),
                          'v_fma_f32 v%d, -v%d, v%d, v%d' % (v, m, m, v), 'v_max_f32 v%d, 0, v%d' % (v, v),
                          'v_add_f32 v%d, 0x%x, v%d' % (v, f2u(1e-5), v), 'v_rsq_f32 v%d, v%d' % (v, v),
                          'v_mul_f32 v%d, -v%d, v%d' % (m, m, v)))
        for k in range(7):
            P += [q_[k] for q_ in seqs]
        P.append(STAMP(49))
        P += srd(OSRD, P_WS, 2048 * 1792, off=WS_Z2N)
        P += L('v_and_b32 v1, 15, v0', 'v_bfe_u32 v2, v0, 5, 1', 'v_bfe_u32 v3, v0, 4, 1', 'v_lshl_add_u32 v2, v3, 1, v2',
               'v_lshl_add_u32 v2, v2, 4, v1', 'v_lshlrev_b32 v5, 4, v2')
        P += g.wx_expr(E1) + L('s_lshl_b32 s%d, s%d, 1' % (E0, self.sRB), 's_add_u32 s%d, s%d, s%d' % (E0, E0, E1),
                               's_mul_i32 s%d, s%d, %d' % (E0, E0, 57344))
        P += g.ww_expr(E1) + L('s_lshl_b32 s%d, s%d, 12' % (E1, E1), 's_add_u32 s%d, s%d, s%d' % (E0, E0, E1))
        for k in range(28):
            z = self.ZP + 4 * k
            t = ACC0 + 8 * (k % 4)
            for r in range(4):
                A('v_lshlrev_b32 v%d, 16, v%d' % (t + 2 * r, z + r))
                A('v_and_b32 v%d, 0xffff0000, v%d' % (t + 2 * r + 1, z + r))
            for r in range(4):
                A('v_pk_fma_f32 %s, %s, %s, %s' % (pr(t + 2 * r), pr(t + 2 * r), pr(ST + 8 + 2 * r), pr(ST + 2 * r)))
            for r in range(4):
                A('v_cvt_pk_bf16_f32 v%d, v%d, v%d' % (z + r, t + 2 * r, t + 2 * r + 1))
            A('v_permlane16_swap_b32 v%d, v%d' % (z, z + 2))
            A('v_permlane16_swap_b32 v%d, v%d' % (z + 1, z + 3))
            P += store4(z, 5, (k // 4) * 8192 + (k % 4) * 1024, self.stflags)
        P.append(STAMP(50))
        return P


class GH:
    def __init__(self, sTB, sFB, stflags='', wfl=''):
        self.__dict__.update(locals())
        accs = [ACC0 + 4 * i for i in range(8)]
        g = self.g = Gemm('g', 128, 64, 2, 2, 39, 'rowk', 896, 3584, True, 6, 6, SA, BANK[0], accs, [256 + 4 * i for i in range(24)],
                          mode='tile', static=True, rdpg=1.15, wfl=wfl, x0=1, w0=3)
        v = g.vend
        self.vX2 = list(range(v, v + g.ndx))
        self.vW2 = [v + g.ndx]
        g.aWf = v + g.ndx + 1
        g.wfrag = lambda t: t >= 7
        assert v + g.ndx + g.ndw <= BANK[0] + 30
        self.Z, self.GA, self.bias, self.C0, self.C1, self.TM = 104, 200, 216, 220, 222, list(range(224, 232))
        self.GF = [144, 148] + [224 + 4 * i for i in range(8)] + [96 + 4 * i for i in range(4)]

    def grp(self, which, t, wait_z2=()):
        g = self.g
        if which == 'X':
            pre = (srd(SA['xsrd'], P_WSP, 8 * MB) + L('s_lshl_b32 s%d, s%d, 19' % (SA['xoff'], self.sTB))) if t == 7 else None
            return g.group('X', t, vregs=self.vX2 if t >= 7 else None, pre=pre)
        pre = (list(wait_z2) + srd(SA['wsrd'], P_WS, 2048 * 1792, off=WS_Z2N) + L('s_lshl_b32 s%d, s%d, 12' % (SA['woff'], self.sFB))) if t == 7 else None
        return g.group('W', t, vregs=self.vW2 if t >= 7 else None, wstep=64 * (1792 if t >= 7 else 3584), pre=pre)

    def prologue(self):
        g = self.g
        G = []
        for t in range(6):
            G += [self.grp('X', t), self.grp('W', t)]
        return [G[i] for i in (0, 1, 2, 3, 4, 5, 7, 9, 11, 6, 8, 10)]

    def side_loads(self, part):
        P = srd(AUX, P_GATE, 896) + L('v_lshrrev_b32 v1, 4, v0', 'v_lshlrev_b32 v1, 4, v1')
        for k in (range(10) if part == 0 else range(10, 14)):
            P.append(I('buffer_load_dwordx4 a[%d:%d], v1, s[4:7], 0 offen offset:%d' % (self.GF[k], self.GF[k] + 3, 64 * k)))
        if part == 0:
            return P
        P += srd(AUX, P_BSP, 4096) + self.g.wx_expr(U1)
        P += L('v_and_b32 v1, 15, v0', 's_lshl_b32 s%d, s%d, 7' % (U0, self.sTB), 's_lshl_b32 s%d, s%d, 6' % (U1, U1),
               's_add_u32 s%d, s%d, s%d' % (U0, U0, U1), 'v_add_lshl_u32 v1, s%d, v1, 1' % U0)
        for x in range(4):
            P.append(I('buffer_load_ushort v%d, v1, s[4:7], 0 offen offset:%d' % (self.bias + x, x * 32)))
        return P

    def setup(self):
        g = self.g
        return srd(SA['xsrd'], P_X, 2048 * 896) + L('s_mul_i32 s%d, s%d, %d' % (SA['xoff'], self.sTB, 128 * 896)) + g.setup_x() + \
            srd(SA['wsrd'], P_WIN, 448 * 3584) + L('s_lshl_b32 s%d, s%d, 7' % (SA['woff'], self.sFB)) + g.setup_w()

    def prep(self):
        g = self.g
        W = L('s_lshr_b32 s%d, s%d, 1' % (U0, WAVE), 's_mul_i32 s%d, s%d, 57344' % (U1, U0), 's_lshl_b32 s%d, s%d, 11' % (U0, U0),
              's_add_u32 s%d, s%d, %d' % (U0, U0, g.wbase), 'v_add_u32 v%d, s%d, v%d' % (g.aWf, U0, VL16),
              's_and_b32 s%d, s%d, 1' % (U0, WAVE), 's_lshl_b32 s%d, s%d, 11' % (U0, U0), 's_add_u32 s%d, s%d, s%d' % (U0, U0, U1),
              'v_add_u32 v%d, s%d, v%d' % (self.vW2[0], U0, VL16))
        return g.setup_read() + g.voff_x(self.vX2, 4096) + W

    def gate_mf(self, t):
        g = self.g
        R = []
        for kk in range(2):
            gf = self.GF[2 * t + kk]
            for x in range(4):
                c = 'v[%d:%d]' % (self.GA + 4 * x, self.GA + 4 * x + 3)
                R.append(I('%s %s, a[%d:%d], %s, %s' % (MF, c, gf, gf + 3, g.fX[t % 2][kk][x].r(0, 4), '0' if (t == 0 and kk == 0) else c)))
        return R

    def switch(self):
        g = self.g
        P = gelu_consts(self.C0, self.C1)
        acc = [g.acc[x][w].base + r for x in range(4) for w in range(2) for r in range(4)]
        P += gelu_regs(acc, self.C0, self.C1, self.TM)
        for k in range(5):
            for x in range(4):
                a = self.GA + 4 * x
                P.append(I(['v_mul_f32 v%d, 0x%x, v%d' % (a, f2u(-LOG2E), a), 'v_exp_f32 v%d, v%d' % (a, a), 'v_add_f32 v%d, 1.0, v%d' % (a, a),
                            'v_rcp_f32 v%d, v%d' % (a, a), 'v_sub_f32 v%d, 1.0, v%d' % (a + 2, a)][k]))
        for i in range(0, 32, 2):
            P.append(I('v_pk_mul_f32 %s, %s, %s op_sel_hi:[1,0]' % (pr(self.Z + i), pr(acc[i]), pr(self.GA + 4 * (i // 8) + 2))))
        P += g.ww_expr(U1) + L('s_or_b32 s%d, s%d, s%d' % (U1, U1, self.sFB), 's_cmp_lg_u32 s%d, 0' % U1, 's_cbranch_scc1 gh_ng')
        P += srd(AUX, P_WS, 8192, off=WS_G) + g.wx_expr(U1)
        P += L('s_lshl_b32 s%d, s%d, 1' % (U0, self.sTB), 's_add_u32 s%d, s%d, s%d' % (U0, U0, U1), 's_lshl_b32 s%d, s%d, 8' % (U0, U0),
               'v_and_b32 v1, 15, v0', 'v_lshlrev_b32 v1, 2, v1')
        for x in range(4):
            P.append(I('buffer_store_dword v%d, v1, s[4:7], s%d offen offset:%d %s' % (self.GA + 4 * x, U0, x * 64, self.stflags), tag='gst'))
        P += L('gh_ng:')
        return P

    def epi(self):
        g = self.g
        P = srd(OSRD, P_WS, HC_SIZE, off=WS_HC) + g.wx_expr(E1)
        P += L('s_lshl_b32 s%d, s%d, 1' % (E0, self.sTB), 's_add_u32 s%d, s%d, s%d' % (E0, E0, E1),
               's_mul_i32 s%d, s%d, %d' % (E0, E0, 4 * HC_KS), 's_lshl_b32 s%d, s%d, 1' % (E1, self.sFB),
               's_add_u32 s%d, s%d, s%d' % (E0, E0, E1))
        P += g.ww_expr(E1) + L('s_add_u32 s%d, s%d, s%d' % (E0, E0, E1), 's_lshl_b32 s%d, s%d, 10' % (E0, E0))
        for x in range(4):
            P.append(I('v_lshlrev_b32 v%d, 16, v%d' % (self.C0, self.bias + x)))
            a = g.acc[x][0].base
            for r in range(0, 8, 2):
                P += L('v_pk_add_f32 %s, %s, %s op_sel_hi:[1,0]' % (pr(a + r), pr(a + r), pr(self.C0)),
                       'v_pk_mul_f32 %s, %s, %s' % (pr(a + r), pr(a + r), pr(self.Z + x * 8 + r)))
            for r in range(4):
                P.append(I('v_cvt_pk_bf16_f32 v%d, v%d, v%d' % (a + r, a + 2 * r, a + 2 * r + 1)))
            P += store4(a, VL16, x * HC_RB, self.stflags)
        return P


class FIN:
    def __init__(self, sTB, sMB, S=SA, bank=0, xfl=''):
        self.__dict__.update(locals())
        self.g = Gemm('f', 64, 64, 2, 2, 39, 'frag', HC_RB, 896, True, 5, 5, S, BANK[bank], [ACC0 + 4 * i for i in range(4)],
                      [256 + 4 * i for i in range(32)], BK=128, kperm=True, mode='tile', static=True, rdpg=1.6, xfl=xfl)

    def grp(self, which, t):
        S = self.S
        pre = None
        if which == 'W' and t == 7:
            pre = srd(S['wsrd'], P_WO, 4096 * 896) + L('s_lshl_b32 s%d, s%d, 7' % (S['woff'], self.sMB))
        return self.g.group(which, t, pre=pre)

    def prologue(self):
        g, S = self.g, self.S
        G = []
        for t in range(5):
            G += [self.grp('X', t), self.grp('W', t)]
        with_pre(G[0], srd(S['xsrd'], P_WS, HC_SIZE, off=WS_HC) + L('s_mul_i32 s%d, s%d, %d' % (S['xoff'], self.sTB, 4 * HC_RB)) + g.setup_x())
        with_pre(G[1], srd(S['wsrd'], P_WOUT, 896 * 896) + L('s_lshl_b32 s%d, s%d, 7' % (S['woff'], self.sMB)) + g.setup_w())
        return G

    def loop(self):
        Gf = lambda t: flat([self.grp(w, t + 5) for w in 'WX']) if 0 <= t and t + 5 < 39 else []
        P, _ = run_static(self.g, 'fin', CNT, Gf, opts=lambda t: dict(zero=(t == 0)), loop=(4, 34, 10))
        return P

    def epi(self):
        g = self.g
        P = srd(OSRD, P_OUT, 2048 * 896)
        P += L('v_and_b32 v2, 15, v0', 'v_mul_u32_u24 v2, 896, v2', 'v_bfe_u32 v3, v0, 4, 1', 'v_lshl_add_u32 v2, v3, 5, v2',
               'v_lshrrev_b32 v3, 5, v0', 'v_lshl_add_u32 v5, v3, 4, v2')
        P += g.wx_expr(E1)
        P += L('s_lshl_b32 s%d, s%d, 1' % (E0, self.sTB), 's_add_u32 s%d, s%d, s%d' % (E0, E0, E1),
               's_mul_i32 s%d, s%d, %d' % (E0, E0, 32 * 896), 's_lshl_b32 s%d, s%d, 7' % (E1, self.sMB),
               's_add_u32 s%d, s%d, s%d' % (E0, E0, E1))
        P += g.ww_expr(E1) + L('s_lshl_b32 s%d, s%d, 6' % (E1, E1), 's_add_u32 s%d, s%d, s%d' % (E0, E0, E1))
        for x in range(2):
            a, bb = g.acc[x][0].base, g.acc[x][1].base
            P += L('v_cvt_pk_bf16_f32 v%d, v%d, v%d' % (a, a, a + 1), 'v_cvt_pk_bf16_f32 v%d, v%d, v%d' % (a + 1, a + 2, a + 3),
                   'v_cvt_pk_bf16_f32 v%d, v%d, v%d' % (a + 2, bb, bb + 1), 'v_cvt_pk_bf16_f32 v%d, v%d, v%d' % (a + 3, bb + 2, bb + 3),
                   'v_permlane16_swap_b32 v%d, v%d' % (a, a + 2), 'v_permlane16_swap_b32 v%d, v%d' % (a + 1, a + 3))
            P += store4(a, 5, x * 16 * 896)
        return P


F_KVQ, F_KV2, F_G, F_PAIR, F_Z2 = 0, 32, 64, 128, 132


def signal(lab, off_sreg, only_wave0=True, val=1, va=1, vb=2):
    P = []
    if only_wave0:
        P += L('s_cmp_lg_u32 s%d, 0' % WAVE, 's_cbranch_scc1 %s_ns' % lab)
    P += L('v_mov_b32 v%d, s%d' % (va, off_sreg), 'v_mov_b32 v%d, %s' % (vb, val), 's_mov_b64 exec, 1',
           'global_atomic_add v%d, v%d, s[%d:%d]' % (va, vb, P_DBG, P_DBG + 1), 's_mov_b64 exec, -1')
    if only_wave0:
        P += L(lab + '_ns:')
    return P


def poll_issue(vaddr, vdst):
    return L('v_lshlrev_b32 v%d, 2, v0' % vaddr,
             'global_load_dword v%d, v%d, s[%d:%d] sc1' % (vdst, vaddr, P_DBG, P_DBG + 1))


def poll_check(lab, vaddr, vdst, vtgt, sc=U1, maxit=400000):
    return L('s_mov_b32 s%d, 0' % sc, lab + '_chk:', 'v_cmp_ge_u32 vcc, v%d, v%d' % (vdst, vtgt),
             's_cmp_eq_u64 vcc, -1', 's_cbranch_scc1 %s_ok' % lab,
             's_add_u32 s%d, s%d, 1' % (sc, sc), 's_cmp_ge_u32 s%d, %d' % (sc, maxit), 's_cbranch_scc1 %s_ok' % lab,
             's_sleep 1', 'global_load_dword v%d, v%d, s[%d:%d] sc1' % (vdst, vaddr, P_DBG, P_DBG + 1),
             's_waitcnt vmcnt(0)', 's_branch %s_chk' % lab, lab + '_ok:')
```

```python
import sys, json
from asmlib import *
from engine import *
from jobs import *
import attn

HDR = open('gated_mix__compressed_kv_cla__mixer_gmlp__prompt.s.ref').read().split('; Override')[0]

DEC_FIN = ['s_and_b32 s3, s2, 7', 's_lshr_b32 s6, s2, 3', 's_and_b32 s70, s6, 3', 's_lshl_b32 s3, s3, 2', 's_add_u32 s70, s70, s3',
           's_lshr_b32 s71, s6, 2']


def fin_kernel(name):
    f = FIN(70, 71)
    P = entry(224, 'L_end_' + name) + L(*DEC_FIN) + L('s_waitcnt lgkmcnt(0)')
    P += items_code(flat(f.prologue())) + f.g.setup_read() + f.g.start() + [STAMP(0)]
    P += f.loop() + [STAMP(1)] + f.epi()
    P += L('L_end_%s:' % name, 's_endpgm')
    return P, f.g.lds_end


sPF = 87


def relabel(Q, tag):
    return [I(x.text.replace('@', tag)) if '@' in x.text else x for x in Q]


def pf_switch(ptr, size, n):
    return srd(AUX, ptr, size) + L('s_lshl_b32 s%d, s2, 2' % sPF, 's_add_u32 s%d, s%d, s%d' % (sPF, sPF, WAVE),
                                   's_mul_i32 s%d, s%d, %d' % (sPF, sPF, n * 1024))


def pf_load(dst, soff, o):
    d = I('buffer_load_dwordx4 %s, v%d, s[4:7], s%d offen offset:%d' % (dst, VL16, soff, o))
    d.wr = {'tag:pf'}
    return d


def mega(name, opt):
    st = opt.get('st', 'sc1')
    ld = opt.get('ld', 'sc1')
    npf = opt.get('npf', 1)
    PF = [(P_WQ, 448 * 8192, 4), (P_WSP, 8 * MB, 8)]
    sSB, sH, sKV, sIDX, sTB, sFB, sFl, sQst = 70, 71, 72, 73, 82, 83, 100, 101
    attn.EXP['ldflags'] = ld
    end = 'L_end_' + name
    P = entry(256, end)
    P += L('s_and_b32 s3, s2, 7', 's_lshr_b32 s%d, s2, 3' % sIDX, 's_lshr_b32 s%d, s%d, 2' % (sSB, sIDX),
           's_and_b32 s%d, s%d, 1' % (sKV, sIDX), 's_bfe_u32 s6, s%d, 0x10001' % sIDX, 's_lshl_b32 s%d, s3, 1' % sH,
           's_add_u32 s%d, s%d, s6' % (sH, sH),
           's_lshr_b32 s%d, s3, 1' % sTB, 's_lshl_b32 s%d, s%d, 2' % (sTB, sTB), 's_and_b32 s6, s%d, 3' % sIDX,
           's_add_u32 s%d, s%d, s6' % (sTB, sTB),
           's_and_b32 s6, s3, 1', 's_mul_i32 s6, s6, 7', 's_min_u32 s%d, s%d, 6' % (sFB, sSB), 's_add_u32 s%d, s%d, s6' % (sFB, sFB),
           's_lshl_b32 s%d, s3, 2' % sFl)
    P += attn.decode()
    P += L('s_waitcnt lgkmcnt(0)')
    z2 = Z2(sQst, stflags=st)
    kv = KV(sSB, sH, sKV, stflags=st)
    q = QJ(attn.sOwn, attn.sH, stflags=st)
    gh = GH(sTB, sFB, stflags=st, wfl=opt.get('ghld', ld))
    if 'ghrd' in opt:
        gh.g.rdpg = opt['ghrd']
    vPA, vPD, vPT, vPZ = MISC, MISC + 1, MISC + 2, MISC + 3
    tgt_z = L('v_cmp_eq_u32 vcc, 33, v0', 's_mov_b32 s%d, 0x20000000' % U0, 'v_mov_b32 v%d, s%d' % (vPA, U0), 'v_cndmask_b32 v%d, 0, v%d, vcc' % (vPT, vPA))
    tgt_k = L('s_lshr_b32 s%d, s%d, 2' % (U0, sFl), 'v_cmp_eq_u32 vcc, s%d, v0' % U0, 'v_cndmask_b32 v%d, 0, 28, vcc' % vPT,
              'v_lshrrev_b32 v%d, 4, v0' % vPA, 'v_cmp_eq_u32 vcc, 1, v%d' % vPA, 'v_cndmask_b32 v%d, v%d, 1, vcc' % (vPT, vPT))
    a10, a11, a12 = attn.vT[10], attn.vT[11], attn.vT[12]
    attn.LATE_CHECK[:] = L('s_lshr_b32 s%d, s%d, 2' % (attn.t0, sFl), 's_add_u32 s%d, s%d, 8' % (attn.t0, attn.t0),
                           'v_cmp_eq_u32 vcc, s%d, v0' % attn.t0, 'v_cndmask_b32 v%d, 0, 16, vcc' % a12) + \
        poll_issue(a10, a11) + poll_check('@_l', a10, a11, a12, sc=attn.t1)

    if npf:
        R = L('s_cmp_eq_u32 s%d, 0' % sPF, 's_cbranch_scc1 a_nopf')
        for ptr, size, n in ((P_WO, 4096 * 896, 4), (P_WOUT, 896 * 896, 1)):
            R += pf_switch(ptr, size, n) + [pf_load('a[252:255]', sPF, i * 1024) for i in range(n)]
        attn.HEAD_EXTRA[:] = R + L('s_mov_b32 s%d, 0' % sPF, 'a_nopf:')

    def win_prefetch(dst):
        if not npf:
            return []
        R = srd(AUX, P_WIN, 448 * 3584)
        R += L('s_lshl_b32 s%d, s%d, 2' % (U0, sIDX), 's_add_u32 s%d, s%d, s%d' % (U0, U0, WAVE), 's_mul_i32 s%d, s%d, %d' % (U0, U0, 14336))
        for i in range(14):
            if i and i % 4 == 0:
                R.append(I('s_add_u32 s%d, s%d, 4096' % (U0, U0)))
            R.append(pf_load(dst, U0, (i % 4) * 1024))
        return R

    g = kv.g
    pfi = lambda: [Item([], pf_load('v[%d:%d]' % (MISC, MISC + 3), sPF, i * 1024),
                        [L('s_add_u32 s%d, s%d, %d' % (sPF, sPF, npf * 1024))] if i == npf - 1 else [], (0, 0)) for i in range(npf)]
    vWP = BANK[0] + 28
    wpd = opt.get('wpd', 2)

    def wpf(dist):
        d = I('buffer_load_dwordx4 v[%d:%d], v%d, s[%d:%d], s%d offen' % (MISC, MISC + 3, vWP, SA['wsrd'], SA['wsrd'] + 3, E1))
        d.wr = {'tag:pf'}
        return Item(L('s_add_u32 s%d, s%d, %d' % (E1, SA['woff'], dist * 64 * 8192)), d, [], (0, 0))
    wp_setup = L('s_lshl_b32 s%d, s%d, 2' % (U0, sSB), 's_add_u32 s%d, s%d, s%d' % (U0, U0, WAVE), 's_lshl_b32 s%d, s%d, 14' % (U0, U0),
                 'v_lshrrev_b32 v1, 5, v0', 'v_lshlrev_b32 v1, 13, v1', 'v_and_b32 v2, 31, v0', 'v_lshl_add_u32 v1, v2, 4, v1',
                 'v_add_u32 v%d, s%d, v1' % (vWP, U0))
    kvG = lambda gg, t: gg.G(t) + pfi() + ([wpf(wpd)] if wpd else [])
    early_m1, late_m1 = g.split(kvG(g, -1))
    assert len(early_m1) <= 14, len(early_m1)
    kv_mid = g.setup_read() + kv.g2[0].zero_acc()
    P += L('s_cmp_ge_u32 s%d, 28' % sIDX, 's_cbranch_scc1 L_roleZ')
    wp0 = (wp_setup + items_code([wpf(k) for k in range(wpd)])) if wpd else []
    P += items_code(flat(kv.prologue())) + items_code([it for it, p in early_m1]) + wp0 + win_prefetch('v[%d:%d]' % (MISC, MISC + 3))
    P += L('s_branch L_kv')
    P += L('L_roleZ:', 's_lshl_b32 s%d, s3, 2' % sQst, 's_and_b32 s6, s%d, 3' % sIDX, 's_add_u32 s%d, s%d, s6' % (sQst, sQst))
    kp = kv.prologue()
    queue = kp[0] + kp[2] + kp[1]
    P += z2.run([], queue) + [STAMP(9)]
    P += items_code(queue) + items_code([it for it, p in g.split(kvG(g, -1))[0]]) + z2.epi() + (wp_setup if wpd else [])
    P += L('L_kv:') + kv_mid + g.start()
    hooks = {}
    if npf:
        it = 0
        for k, (ptr, size, n) in enumerate(PF):
            if k:
                hooks[it] = pf_switch(ptr, size, n)
            else:
                P += pf_switch(ptr, size, n)
            it += n // npf
        hooks[it] = L('s_mov_b32 s6, 0')
        assert it <= 13
    hooks[2] = hooks.get(2, []) + L('s_cmp_lt_u32 s%d, 28' % sIDX, 's_cbranch_scc1 @_nz', 's_mov_b32 s%d, %d' % (U0, F_Z2),
                                    's_mov_b32 s%d, 0x1000000' % U1) + signal('@', U0, val='s%d' % U1) + L('@_nz:')
    P += L('s_mov_b32 s%d, 0' % CNT) + [STAMP(0)]
    P += L('s_cmp_eq_u32 s%d, 1' % sKV, 's_cbranch_scc1 L_V')
    ool = []
    qg = q.g
    for vi, gg in enumerate(kv.g2):
        lab = 'kv%d' % vi
        if vi:
            P += L('L_V:')
        early, late = gg.split(kvG(gg, 0))
        tc = L('s_add_u32 s%d, s%d, 1' % (CNT, CNT), 's_branch %s_hk' % lab, '%s_hr:' % lab, 's_cmp_lt_u32 s%d, 13' % CNT, 's_cbranch_scc1 %s' % lab)
        P += L(lab + ':') + gg.iter(0, late, early, tailcode=tc)
        ool += L('%s_hk:' % lab)
        for cval, ins in sorted(hooks.items()):
            ool += L('s_cmp_lg_u32 s%d, %d' % (CNT, cval), 's_cbranch_scc1 %s_n%d' % (lab, cval)) + relabel(ins, lab) + L('s_branch %s_hr' % lab, '%s_n%d:' % (lab, cval))
        ool += L('s_branch %s_hr' % lab)
        late = gg.split(kvG(gg, 12))[1]
        qe, qlate = qg.split(qg.G(-1))
        queue = flat(q.prologue()) + [it for it, p in qe]
        for t in range(13, 16):
            early, nl = gg.split(graft(gg, t, gg.G(t), queue, 18))
            ex = {13: q.setup(), 14: qg.setup_read()}.get(t, [])
            P += gg.iter(t, late, early, last=(t == 15), extra=ex, xg=(0, 62) if t == 13 else None)
            late = nl
        P += [STAMP(1)] + items_code([it for it, p in late] + queue)
        P += kv.pack(vi == 0, [BANK[0], BANK[0] + 12])
        if vi == 0:
            P += L('s_branch L_q')
    P += L('L_q:') + qg.start() + [STAMP(10)]
    kst = kv.stores()
    if opt.get('nost'):
        kst = [[x for x in g_ if x.kind != 'vst'] or [I('s_nop 0')] for g_ in kst]
    queue = flat(gh.prologue())
    nq = opt.get('nqst', 2)

    def q_opts(t):
        ex = kst[nq * t:nq * t + nq]
        if t == 1:
            ex = ex + gh.setup()
        if t == 2:
            ex = ex + gh.prep()
        if t == 4:
            ex = ex + [gh.side_loads(0)]
        return dict(zero=(t == 0), extra=ex, tailcode=[STAMP(12 + t)])
    C, left = run_static(qg, 'q', CNT, lambda t: graft(qg, t, qg.G(t), queue, 14) if t >= 0 else qg.G(t), opts=q_opts)
    P += C + [STAMP(2)] + items_code(left + queue)
    rest = kst[7 * nq:]
    assert 7 * nq >= KV.NV
    P += q.pack()
    P += q.store_setup(sQst, ['s_cmp_eq_u32 s%d, 2' % attn.sMode])
    rest = rest + (q.stores(sQst) if not opt.get('nost') else [])
    P += L('s_cmp_ge_u32 s%d, 28' % sIDX, 's_cbranch_scc1 L_roleZ2')
    gg = gh.g
    P += tgt_z + poll_issue(vPA, vPZ) + gh.side_loads(1) + gg.start() + [STAMP(11)]
    S0 = 2
    sl = attn.seg_loads(['s_cmp_eq_u32 s%d, 1' % attn.sMode])
    rngs = [((S0 + k) % 5 * 32768, ((S0 + k) % 5 + 1) * 32768) for k in range(5)]
    aq = attn.as_items(sl[0], rngs[0]) + attn.as_items(sl[1], (0, 0)) + attn.as_items(sl[2], rngs[1]) + attn.as_items(sl[3], rngs[2]) + \
        attn.as_items(sl[4], rngs[3]) + attn.as_items(sl[5], rngs[4])
    with_pre(aq, attn.kernel_setup(S0) + attn.gate_load(attn.sOwn, 232))
    ng = opt.get('ngst', 3)
    tsig = -(-len(rest) // ng) + 5

    def ghG(t):
        if t < 0:
            return []
        if t + 6 < 39:
            return gh.grp('W', t + 6, poll_check('wz', vPA, vPZ, vPT)) + gh.grp('X', t + 6)
        return graft(gg, t, [], aq, 8) if t >= 34 else []

    def gh_opts(t):
        kw = dict(zero=(t in (0, 7)), extra=rest[ng * t:ng * t + ng])
        tc = []
        if t < 7:
            kw['extra_mf'] = gh.gate_mf(t)
        if t == 6:
            tc = gh.switch()
        if t == 12:
            kw['needs'] = [gg.tag('W', t + 1), gg.tag('X', t + 1), 'gst']
            tc = L('s_cmp_lg_u32 s%d, 0' % sFB, 's_cbranch_scc1 gs_n', 's_lshl_b32 s%d, s%d, 2' % (U0, sTB),
                   's_add_u32 s%d, s%d, %d' % (U0, U0, F_G)) + signal('gs', U0) + L('gs_n:')
        if t == tsig:
            kw['needs'] = [gg.tag('W', t + 1), gg.tag('X', t + 1), 'kvst']
            tc = signal('ks', sFl)
        if t == 30:
            tc = tgt_k + poll_issue(vPA, vPD)
        if t == 33:
            tc = poll_check('wk', vPA, vPD, vPT)
        if t < 14 or t % 4 == 1:
            tc = tc + [STAMP(20 + (t if t < 14 else 14 + (t - 14) // 4))]
        kw['tailcode'] = tc
        return kw
    assert tsig not in (6, 12, 30, 33) and tsig < 28
    C, left = run_static(gg, 'gh', CNT, ghG, opts=gh_opts)
    P += C + [STAMP(3)] + items_code(left + aq)
    P += gh.epi() + relabel(attn.own_q(QJ.QP), 'g')
    P += L('v_mov_b32 v%d, v232' % attn.Gv[0], 'v_mov_b32 v%d, v233' % attn.Gv[1])
    P += [need('aK0')] + [I('', needs=['a%d' % (attn.Qa + i) for i in range(64)])] + L('s_branch L_seg')
    P += L('L_roleZ2:', 's_waitcnt vmcnt(0)', 's_barrier')
    P += tgt_k + poll_issue(vPA, vPD) + flat(kst[7 * nq:]) + poll_check('wkz', vPA, vPD, vPT)
    sl = attn.seg_loads(None)
    P += attn.kernel_setup() + attn.gate_load(attn.sOwn, attn.Gv[0]) + flat(flat(sl))
    P += L('s_add_u32 s%d, s%d, %d' % (attn.sPOff, sFl, F_KV2), 's_mov_b32 s%d, 1' % attn.sPend)
    P += relabel(attn.own_q(QJ.QP), 'z') + [need('aK0')]
    P += attn.run(end)
    P += ool
    P += L(end + ':', 's_endpgm')
    return P, 163840


def add_stamps(P, idx):
    out = L('s_memrealtime s[98:99]', 's_memtime s[52:53]')
    K = 0
    for i, p in enumerate(P):
        if p.kind == 'smem' and K == 0:
            out = out[:-0] if False else out
        if p.kind == 'dir' and p.op == '.stamp':
            out += L('s_memtime s[0:1]', 's_waitcnt lgkmcnt(0)', 'v_writelane_b32 v%d, s0, %d' % (VSTAMP, 3 + p.ops[0]))
            continue
        if p.kind == 'branch' and p.target.startswith('L_end_') and i > 2:
            p = I(p.text.replace('L_end_', 'L_stamp_'))
        if p.kind == 'label' and p.op.startswith('L_end_'):
            out += L(p.op.replace('L_end_', 'L_stamp_') + ':',
                     's_waitcnt vmcnt(0)', 's_memrealtime s[98:99]', 's_memtime s[0:1]', 's_waitcnt lgkmcnt(0)',
                     'v_writelane_b32 v%d, s98, 1' % VSTAMP, 'v_writelane_b32 v%d, s0, 2' % VSTAMP,
                     's_lshl_b32 s3, s2, 10', 's_lshl_b32 s4, s35, 8', 's_add_u32 s3, s3, s4', 's_add_u32 s3, s3, %d' % (100 * MB + idx * 262144),
                     'v_lshlrev_b32 v2, 2, v0', 'v_add_u32 v2, s3, v2', 'global_store_dword v2, v%d, s[68:69]' % VSTAMP)
        out.append(p)
        if p.kind == 'smem' and p.text.startswith('s_load_dwordx16'):
            pass
        if K == 0 and p.kind == 'wait' and p.lgkm == 0:
            K = 1
            out += L('v_mov_b32 v%d, 0' % VSTAMP, 'v_writelane_b32 v%d, s98, 0' % VSTAMP, 'v_writelane_b32 v%d, s96, 63' % VSTAMP)
    out[1] = I('s_memtime s[96:97]')
    return out


def build(kernels, stamp=False):
    txt = HDR
    body = ''
    kds = ''
    for idx, (name, grid, fn) in enumerate(kernels):
        P, lds = fn(name)
        if stamp:
            P = add_stamps(P, idx)
        else:
            P = [p for p in P if not (p.kind == 'dir' and p.op == '.stamp')]
        prog = finalize(P)
        txt += '; @launch kernel=%s grid=(%d,1,1) block=(256,1,1) lds=%d\n' % (name, grid, lds)
        body += kernel_text(name, prog, 512)
        kds += kd_text(name, 512, 256)
    return txt + '.amdgcn_target "amdgcn-amd-amdhsa--gfx950"\n' + body + kds


if __name__ == '__main__':
    opt = {}
    for a_ in sys.argv:
        if a_.startswith('--exp='):
            attn.EXP.update(json.loads(a_[6:]))
        if a_.startswith('--opt='):
            opt = json.loads(a_[6:])
    ks = [('mega_kernel', 256, lambda n: mega(n, opt)), ('fin_kernel', 224, fin_kernel)]
    open(sys.argv[1], 'w').write(build(ks, stamp='--stamp' in sys.argv))
```

```python
from asmlib import *
from engine import *
from jobs import *

NEG = f2u(-1.0e9 * LOG2E)
THR = f2u(8.0)
SPLIT = 19
LDS_DROP = 0x30000

sK, sV, sQ, sPt = 8, 12, 16, 4
sKoff, sVoff, sKslot, sVslot, sEnd, sRing, sTile, t0, t1, t2, t3 = 20, 21, 22, 23, 24, 25, 27, 31, 32, 33, 34
sWave = 35
sThr, sPend, sDiag, sEvt = 36, 37, 38, 26
sH, sQI, sT0, sT1, sMode, sPair, sP2, sW8, sOwn, sNm = 74, 75, 76, 77, 78, 79, 80, 81, 86, 28
CMP = [88, 90, 92, 94]
sNext = 39

EXP = dict(nodma=False, nobar=False, nosm=False, noread=False, cap=2.0)
D_LEAD = 12
RING = 16
RINGB = 5 * 32768

vDma, aK, aV, vL16, vDma2 = 2, 3, 4, VL16, 1
NM = [8, 12]
Lr = [16, 17]
vT = list(range(18, 32))
Sreg = [32, 64]
Preg = 96
Gv = [112, 113]
vPF = 116
Ov = 128
Qa, Fa, PART = 96, 0, 160


def Sr(p, kb, qb):
    return Sreg[p] + (kb * 2 + qb) * 4


def Pr(ks, qb):
    return Preg + (ks * 2 + qb) * 4


def Or(db, qb):
    return Ov + (db * 2 + qb) * 4


def frag(j):
    b = Fa + (j % RING) * 4
    return 'a[%d:%d]' % (b, b + 3)


def kread(j):
    return I('ds_read_b128 %s, v%d offset:%d' % (frag(j), aK, j * 1024))


def vread(j):
    return I('ds_read_b128 %s, v%d offset:%d' % (frag(32 + j), aV, j * 1024))


def qk_mfmas(pn):
    R = []
    for j in range(32):
        kb, ds = j // 8, j % 8
        for qb in range(2):
            d = 'v[%d:%d]' % (Sr(pn, kb, qb), Sr(pn, kb, qb) + 3)
            c = 'v[%d:%d]' % (NM[qb], NM[qb] + 3) if ds == 0 else d
            q = Qa + (qb * 8 + ds) * 4
            R.append(I('%s %s, %s, a[%d:%d], %s' % (MF, d, frag(j), q, q + 3, c)))
    return R


def pv_mfmas():
    R = []
    for j in range(32):
        ks, db = j // 16, j % 16
        for qb in range(2):
            o = 'v[%d:%d]' % (Or(db, qb), Or(db, qb) + 3)
            R.append(I('%s %s, %s, v[%d:%d], %s' % (MF, o, frag(32 + j), Pr(ks, qb), Pr(ks, qb) + 3, o)))
    return R


def softmax_items(pc):
    exps, plains = [], []
    for ks in range(2):
        for qb in range(2):
            for u in range(4):
                kb = 2 * ks + u // 2
                a = Sr(pc, kb, qb) + 2 * (u % 2)
                p = Pr(ks, qb) + u
                exps.append(I('v_exp_f32 v%d, v%d' % (a, a)))
                exps.append(I('v_exp_f32 v%d, v%d' % (a + 1, a + 1)))
                n = len(exps)
                plains.append((I('v_add_f32 v%d, v%d, v%d' % (Lr[qb], Lr[qb], a)), n - 2, ks))
                plains.append((I('v_cvt_pk_bf16_f32 v%d, v%d, v%d' % (p, a, a + 1)), n - 1, ks))
                plains.append((I('v_add_f32 v%d, v%d, v%d' % (Lr[qb], Lr[qb], a + 1)), n - 1, ks))
    return exps, plains


def place_softmax(gaps, load, pc, g0, g1, cap, e0=0, p0=0, gsum=None, mid=None, addstop=None):
    exps, plains = softmax_items(pc)
    plains = plains[p0:]
    cv = [x for x in plains if 'cvt' in x[0].op]
    ad = [x for x in plains if 'cvt' not in x[0].op]
    epos = [-1] * e0
    ei = e0
    done = {}
    gsum = gsum or g1
    for g in range(g0, max(g1, gsum)):
        while True:
            if ei < len(exps) and load[g] + 2 <= cap:
                gaps[g].append(exps[ei])
                epos.append(g)
                load[g] += 2
                ei += 1
            elif cv and cv[0][1] < len(epos) and epos[cv[0][1]] < g and load[g] + 1 <= cap:
                x = cv.pop(0)
                gaps[g].append(x[0])
                load[g] += 1
                done[x[2]] = g
            elif ad and ad[0][1] < len(epos) and epos[ad[0][1]] < g and load[g] + 1 <= cap and (addstop is None or g < addstop):
                x = ad.pop(0)
                gaps[g].append(x[0])
                load[g] += 1
            else:
                break
    if mid:
        mid()
        for c2 in (cap, cap + 1):
            for g in range(addstop, gsum):
                while ad and epos[ad[0][1]] < g and load[g] + 1 <= c2 and (c2 == cap or load[g] == cap):
                    gaps[g].append(ad.pop(0)[0])
                    load[g] += 1
                    if c2 > cap:
                        break
    assert ei == len(exps) and not cv and not ad, (ei, len(cv), len(ad))
    return done


def max_stream(pn):
    r = [Sreg[pn] + i for i in range(32)]
    m = vT[0]
    out = [I('v_max3_f32 v%d, v%d, v%d, v%d' % (m, r[0], r[1], r[2]))]
    for i in range(3, 31, 2):
        out.append(I('v_max3_f32 v%d, v%d, v%d, v%d' % (m, m, r[i], r[i + 1])))
    out.append(I('v_max_f32 v%d, v%d, v%d' % (m, m, r[31])))
    out.append(I('v_cmp_lt_f32 vcc, s%d, v%d' % (sThr, m)))
    return out


def adv(reg, step, tmp):
    return [[I('s_add_u32 s%d, s%d, %d' % (reg, reg, step * 32768))],
            [I('s_sub_u32 s%d, s%d, %d' % (tmp, reg, RINGB)), I('s_min_u32 s%d, s%d, s%d' % (reg, reg, tmp))]]


def dma_group(which, step=2, tag=None):
    srd_, off, end, slot = (sK, sKoff, sEnd, sKslot) if which == 'K' else (sV, sVoff, sEnd, sVslot)
    G = [[I('s_cmp_lt_u32 s%d, s%d' % (off, end)), I('s_cselect_b32 s%d, %d, 0' % (srd_ + 2, 16 * MB)),
          I('s_cselect_b32 m0, s%d, %d' % (slot, LDS_DROP))]]
    for j in range(8):
        if j == 4:
            G.append([I('s_add_u32 m0, m0, 4096')])
        G.append([I('buffer_load_dwordx4 v%d, s[%d:%d], s%d offen offset:%d %s lds' % (vDma if j < 4 else vDma2, srd_, srd_ + 3, off, (j % 4) * 1024, EXP.get('ldflags', '')), tag=tag)])
    G.append([I('s_add_u32 s%d, s%d, 32768' % (off, off))])
    G += adv(slot, step, t3)
    return G


def rd_advance(which, step=2):
    a = aK if which == 'K' else aV
    return [[I('v_add_u32 v%d, %d, v%d' % (a, step * 32768, a))], [I('v_subrev_u32 v%d, s%d, v%d' % (vT[13], sRing, a))],
            [I('v_min_u32 v%d, v%d, v%d' % (a, a, vT[13]))]]


PRE_FIN = []
HEAD_EXTRA = []
LATE_CHECK = []
LATE_TILE = 24


def mask_block(lab, pn, back):
    P = [I(lab + ':')]
    A = lambda x: P.append(I(x))
    A('s_cmp_eq_u32 s%d, s%d' % (sEvt, sDiag))
    A('s_cbranch_scc1 %s_m' % lab)
    A('s_cmp_eq_u32 s%d, 2' % sMode)
    A('s_cbranch_scc1 %s_p' % lab)
    P += [I(x.text.replace('@', lab)) for x in LATE_CHECK]
    A('s_branch %s_e' % lab)
    A('%s_p:' % lab)
    P += pair_flag(t0) + L('v_mov_b32 v%d, s%d' % (vPF, t0)) + [poll_load(vPF, vPF + 1)]
    A('%s_e:' % lab)
    A('s_mov_b32 s%d, s%d' % (sEvt, sDiag))
    A('s_cmp_lt_u32 s%d, s%d' % (sTile, sDiag))
    A('s_cbranch_scc1 %s' % back)
    A('%s_m:' % lab)
    A('s_lshl_b32 s%d, s%d, 7' % (t0, sQI))
    A('s_lshl_b32 s%d, s%d, 5' % (t1, sWave))
    A('s_add_u32 s%d, s%d, s%d' % (t0, t0, t1))
    A('s_lshl_b32 s%d, s%d, 6' % (t1, sTile))
    A('s_sub_u32 s%d, s%d, s%d' % (t0, t0, t1))
    u, ng = vT[1], vT[2]
    A('v_and_b32 v%d, 15, v0' % u)
    A('v_lshrrev_b32 v%d, 4, v0' % ng)
    A('v_lshlrev_b32 v%d, 2, v%d' % (ng, ng))
    A('v_sub_u32 v%d, v%d, v%d' % (u, u, ng))
    A('v_add_u32 v%d, s%d, v%d' % (u, t0, u))
    A('v_mov_b32 v%d, 0x%x' % (ng, NEG))
    items = [(16 * (kb - qb) + r, Sr(pn, kb, qb) + r) for kb in range(4) for qb in range(2) for r in range(4)]
    for i in range(0, 32, 4):
        for k in range(4):
            A('v_cmp_gt_i32 s[%d:%d], %d, v%d' % (CMP[k], CMP[k] + 1, items[i + k][0], u))
        for k in range(4):
            reg = items[i + k][1]
            A('v_cndmask_b32 v%d, v%d, v%d, s[%d:%d]' % (reg, reg, ng, CMP[k], CMP[k] + 1))
    A('s_branch %s' % back)
    return P


def rescale_block(lab, pn, back, first=False):
    P = [I(lab + ':')] if lab else []
    A = lambda x: P.append(I(x))
    dl = [vT[1], vT[2]]
    al = [vT[4], vT[6]]
    pr = lambda r: 'v[%d:%d]' % (r, r + 1)
    for qb in range(2):
        r = [Sr(pn, kb, qb) + i for kb in range(4) for i in range(4)]
        m = dl[qb]
        A('v_max3_f32 v%d, v%d, v%d, v%d' % (m, r[0], r[1], r[2]))
        for i in range(3, 15, 2):
            A('v_max3_f32 v%d, v%d, v%d, v%d' % (m, m, r[i], r[i + 1]))
        A('v_max_f32 v%d, v%d, v%d' % (m, m, r[15]))
    x0, x1 = xlane_reduce(dl[0], vT[8], 'v_max_f32'), xlane_reduce(dl[1], vT[9], 'v_max_f32')
    for a, b in zip(x0, x1):
        P.extend([a, b])
    for qb in range(2):
        r = [Sr(pn, kb, qb) + i for kb in range(4) for i in range(4)]
        m = dl[qb]
        if not first:
            A('v_max_f32 v%d, 0, v%d' % (m, m))
        for x in r:
            A('v_sub_f32 v%d, v%d, v%d' % (x, x, m))
        for i in range(4):
            A('v_sub_f32 v%d, v%d, v%d' % (NM[qb] + i, NM[qb] + i, m))
    if not first:
        for qb in range(2):
            A('v_exp_f32 v%d, -v%d' % (al[qb], dl[qb]))
        for qb in range(2):
            A('v_mul_f32 v%d, v%d, v%d' % (Lr[qb], Lr[qb], al[qb]))
        for db in range(16):
            for qb in range(2):
                for r in (0, 2):
                    A('v_pk_mul_f32 %s, %s, %s op_sel_hi:[1,0]' % (pr(Or(db, qb) + r), pr(Or(db, qb) + r), pr(al[qb])))
        A('s_branch %s' % back)
    return P


def fill(gaps, load, stream, g0, g1, cap, stride=1):
    q = list(stream)
    g = g0
    while g < g1 and q:
        if load[g] + q[0][1] <= cap + 1e-9:
            it = q.pop(0)
            gaps[g].extend(it[0] if isinstance(it[0], list) else [it[0]])
            load[g] += it[1]
            if stride > 1:
                g += stride
        else:
            g += 1
    return q


def place_dma(gaps, load, cap, grps, dg):
    ins = flat(grps)
    idx = [i for i, x in enumerate(ins) if x.kind == 'dma']
    for k, i in enumerate(idx):
        gaps[dg[k]].append(ins[i])
        load[dg[k]] += 2
    pre_ = ins[:idx[0]]
    g = dg[0] - 1
    spots = []
    for x in pre_:
        while load[g] + 1 > cap:
            g -= 1
        load[g] += 1
        spots.append(g)
    for x, g in zip(pre_, sorted(spots)):
        gaps[g].append(x)
    for k, i in enumerate(idx):
        nxt = idx[k + 1] if k + 1 < len(idx) else len(ins)
        g = dg[k] + 1
        for x in ins[i + 1:nxt]:
            while load[g] + 1 > cap:
                g += 1
            assert k + 1 == len(idx) or g < dg[k + 1]
            gaps[g].append(x)
            load[g] += 1


def iteration(lab, p):
    cap = EXP['cap']
    pn = 1 - p
    ms = qk_mfmas(pn) + pv_mfmas()
    NG = 128
    gaps = [[] for _ in range(NG)]
    pre = [[] for _ in range(NG)]
    load = [0.0] * NG
    for j in range(64):
        src = j + D_LEAD
        r = kread(src) if src < 32 else (vread(src - 32) if src < 64 else kread(src - 64))
        gaps[2 * j].append(r)
        load[2 * j] += 1
    for j in range(0, 64, 8):
        g = (2 * j - 2) % NG
        gaps[g].append(I('s_waitcnt lgkmcnt(%d)' % (D_LEAD - 8)))
        load[g] += 1
    pre[64] = [I('s_waitcnt vmcnt(16)'), I('s_barrier'),
               I('s_cmp_ge_u32 s%d, s%d' % (sTile, sEvt)), I('s_cbranch_scc1 %s_mask' % lab), I('%s_mb:' % lab)]
    load[63] += 2
    load[127] += 2
    place_dma(gaps, load, cap, dma_group('K'), EXP.get('kg', [5, 11, 19, 25, 33, 39, 47, 53]))
    place_dma(gaps, load, cap, dma_group('V'), EXP.get('vg', [93, 97, 101, 105, 109, 113, 117, 121]))
    left = fill(gaps, load, [(x, len(x)) for x in rd_advance('K')], 84, 103, cap)
    assert not left
    left = fill(gaps, load, [(x, len(x)) for x in rd_advance('V')], 104, 127, cap)
    assert not left
    def mid():
        left = fill(gaps, load, [(I('s_add_u32 s%d, s%d, 1' % (sTile, sTile)), 1)], 66, 90, cap)
        assert not left
        left = fill(gaps, load, [(x, 1) for x in max_stream(pn)], 72, 126, cap)
        assert not left, left
    done = place_softmax(gaps, load, p, 0, 94, cap, gsum=127, mid=mid, addstop=66)
    assert done[0] < 63 and done[1] < 95, done
    if EXP.get('show'):
        print('loads', ''.join(str(int(x)) for x in load), done)
    out = []
    for g in range(NG):
        out.extend(pre[g])
        out.append(ms[g])
        out.extend(gaps[g])
    out += L('s_waitcnt vmcnt(16)', 's_barrier')
    if EXP['nodma']:
        out = [x for x in out if x.kind != 'dma']
    if EXP['nobar']:
        out = [x for x in out if x.kind != 'barrier' and not (x.kind == 'wait' and x.vm is not None)]
    if EXP['nosm']:
        out = [x for x in out if not x.op.startswith(('v_exp', 'v_add_f32', 'v_cvt', 'v_max'))]
    if EXP['noread']:
        out = [x for x in out if x.kind != 'dsr']
    if EXP['nosm'] or EXP['noread'] or EXP['nodma'] or EXP['nobar']:
        out.append(I('s_mov_b64 vcc, 0'))
    out.append(I('s_cbranch_vccnz %s_resc' % lab))
    out.append(I('%s_rb:' % lab))
    return out


def tail(p):
    P = []
    exps, plains = softmax_items(p)
    sm = []
    for i in range(9):
        sm += exps[2 * i:2 * i + 2]
        if i > 0:
            sm += [x[0] for x in plains[3 * (i - 1):3 * i]]
    rd = [vread(j) for j in range(D_LEAD)]
    P.append(I('s_waitcnt lgkmcnt(0)'))
    P += interleave(sm, rd, 0.34)
    ms = pv_mfmas()
    gaps = [[] for _ in range(64)]
    pre = [[] for _ in range(64)]
    load = [0.0] * 64
    for j in range(32 - D_LEAD):
        gaps[2 * j].append(vread(j + D_LEAD))
        load[2 * j] += 1
    for j in range(0, 32, 8):
        pre[2 * j].append(I('s_waitcnt lgkmcnt(%d)' % max(0, min(32, j + D_LEAD) - (j + 8))))
    G = seg_loads(None, nosetup=True)
    place_dma(gaps, load, 2.0, G[0], [31, 33, 37, 39, 43, 45, 49, 51])
    done = place_softmax(gaps, load, p, 0, 31, 2.0, e0=18, p0=24, gsum=63)
    assert done[1] < 31
    for g in range(64):
        P.extend(pre[g])
        P.append(ms[g])
        P.extend(gaps[g])
    return P


def seg_loads(loadq, nosetup=False):
    P = L('s_lshl_b32 s%d, s%d, 20' % (t0, sH), 's_lshl_b32 s%d, s%d, 15' % (t1, sT0),
          's_add_u32 s%d, s%d, s%d' % (sKoff, t0, t1), 's_mov_b32 s%d, s%d' % (sVoff, sKoff),
          's_lshl_b32 s%d, s%d, 15' % (t1, sT1), 's_add_u32 s%d, s%d, s%d' % (sEnd, t0, t1),
          's_add_u32 s%d, s%d, s%d' % (sKslot, sNext, sW8), 's_mov_b32 s%d, s%d' % (sVslot, sKslot))
    P += flat(adv(sVslot, 2, t3))
    K0 = dma_group('K', 1, tag='aK0')
    seg_loads.setup = P
    if not nosetup:
        K0[0] = P + K0[0]
    Q = []
    if loadq:
        Q = srd(sQ, P_WS, 16 * MB, off=WS_Q)
        Q += L('s_lshl_b32 s%d, s%d, 20' % (t0, sH), 's_lshl_b32 s%d, s%d, 16' % (t1, sQI), 's_add_u32 s%d, s%d, s%d' % (t0, t0, t1),
               's_lshl_b32 s%d, s%d, 14' % (t1, sWave), 's_add_u32 s%d, s%d, s%d' % (t0, t0, t1))
        for i in range(16):
            if i % 4 == 0 and i:
                Q += L('s_add_u32 s%d, s%d, 4096' % (t0, t0))
            Q.append(I('buffer_load_dwordx4 a[%d:%d], v%d, s[%d:%d], s%d offen offset:%d %s' % (
                Qa + 4 * i, Qa + 4 * i + 3, vL16, sQ, sQ + 3, t0, (i % 4) * 1024, EXP.get('ldflags', ''))))
        Q = [Q]
    return [K0, Q, dma_group('K'), dma_group('V'), dma_group('K'), dma_group('V')]


def as_items(groups, lds):
    R = []
    pre = []
    for g in groups:
        if len(g) == 1 and g[0].kind in ('dma', 'vld'):
            R.append(Item(pre, g[0], [], lds))
            pre = []
        else:
            pre = pre + g
    if pre:
        R[-1].post = [pre]
    return R


def kernel_setup(slot0=0):
    P = srd(sK, P_WS, 16 * MB, off=WS_K) + srd(sV, P_WS, 16 * MB, off=WS_V)
    P += L('s_lshl_b32 s%d, s%d, 13' % (sW8, sWave),
           'v_add_u32 v%d, s%d, v%d' % (vDma, sW8, vL16), 'v_add_u32 v%d, 4096, v%d' % (vDma2, vDma),
           's_mov_b32 s%d, %d' % (sNext, slot0 * 32768), 's_mov_b32 s%d, %d' % (sRing, RINGB), 's_mov_b32 s%d, 0' % sPend)
    return P


def segment(lab, vm0):
    P = []
    A = lambda x: P.append(I(x))
    A('v_add_u32 v%d, s%d, v%d' % (aK, sNext, vL16))
    A('v_mov_b32 v%d, v%d' % (aV, aK))
    P += flat(rd_advance('V'))
    for qb in range(2):
        for i in range(4):
            A('v_mov_b32 v%d, 0' % (NM[qb] + i))
        A('v_mov_b32 v%d, 0' % Lr[qb])
    A('s_mov_b32 s%d, 0x%x' % (sThr, THR))
    A('s_mov_b32 s%d, s%d' % (sTile, sT0))
    A('s_lshl_b32 s%d, s%d, 1' % (sDiag, sQI))
    A('s_cmp_gt_u32 s%d, 28' % sT1)
    A('s_cselect_b32 s%d, %d, s%d' % (sEvt, LATE_TILE, sDiag))
    A('s_cmp_eq_u32 s%d, 2' % sMode)
    A('s_cselect_b32 s%d, %d, s%d' % (sEvt, SPLIT - 2, sEvt))
    A('s_waitcnt vmcnt(%d)' % vm0)
    A('s_barrier')
    P.append(STAMP(4))
    for j in range(D_LEAD):
        P.append(kread(j))
    ms = qk_mfmas(0)
    z = [I('v_mov_b32 v%d, 0' % (Ov + i)) for i in range(128)]
    for j in range(32):
        if j % 8 == 0:
            A('s_waitcnt lgkmcnt(%d)' % max(0, min(32, j + D_LEAD) - (j + 8)))
        P.append(ms[2 * j])
        if j + D_LEAD < 32:
            P.append(kread(j + D_LEAD))
        P += z[4 * j:4 * j + 2]
        P.append(ms[2 * j + 1])
        P += z[4 * j + 2:4 * j + 4]
    P += flat(rd_advance('K', 1))
    A('s_cmp_eq_u32 s%d, 0' % sPend)
    A('s_cbranch_scc1 %s_nopend' % lab)
    A('s_waitcnt vmcnt(0)')
    P += signal(None, sPend, only_wave0=False, va=vT[10], vb=vT[11])
    A('%s_nopend:' % lab)
    A('s_waitcnt vmcnt(16)')
    A('s_barrier')
    for j in range(D_LEAD):
        P.append(kread(j))
    P += HEAD_EXTRA
    A('s_cmp_ge_u32 s%d, s%d' % (sTile, sEvt))
    A('s_cbranch_scc1 %s_h_mask' % lab)
    A('%s_h_mb:' % lab)
    P += rescale_block(None, 0, None, first=True)
    A('s_add_u32 s%d, s%d, 1' % (sTile, sTile))
    P.append(STAMP(5))
    A('s_cmp_eq_u32 s%d, s%d' % (sTile, sT1))
    A('s_cbranch_scc1 %s_tail0' % lab)
    A('s_waitcnt lgkmcnt(%d)' % (D_LEAD - 8))
    A('%s_loop:' % lab)
    P += iteration(lab + '_i0', 0)
    A('s_cmp_eq_u32 s%d, s%d' % (sTile, sT1))
    A('s_cbranch_scc1 %s_tail1' % lab)
    P += iteration(lab + '_i1', 1)
    A('s_cmp_lg_u32 s%d, s%d' % (sTile, sT1))
    A('s_cbranch_scc1 %s_loop' % lab)
    for p in range(2):
        A('%s_tail%d:' % (lab, p))
        A('s_branch %s_pre%d' % (lab, p))
        A('%s_pb%d:' % (lab, p))
        P += tail(p)
        A('s_branch %s_end' % lab)
    O = []
    O += mask_block(lab + '_h_mask', 0, lab + '_h_mb')
    O += mask_block(lab + '_i0_mask', 1, lab + '_i0_mb')
    O += mask_block(lab + '_i1_mask', 0, lab + '_i1_mb')
    O += rescale_block(lab + '_i0_resc', 1, lab + '_i0_rb')
    O += rescale_block(lab + '_i1_resc', 0, lab + '_i1_rb')
    for p in range(2):
        O += pretail(lab + '_pre%d' % p, lab + '_pb%d' % p)
    P += O
    A('%s_end:' % lab)
    return P


def pair_flag(dst):
    return L('s_lshl_b32 s%d, s%d, 2' % (dst, sPair), 's_add_u32 s%d, s%d, s%d' % (dst, dst, sWave), 's_lshl_b32 s%d, s%d, 2' % (dst, dst),
             's_add_u32 s%d, s%d, %d' % (dst, dst, FL_PAIR))


def part_base():
    return srd(sPt, P_WS, 128 * 4 * 17 * 1024, off=WS_PART) + L(
        's_lshl_b32 s%d, s%d, 2' % (t0, sPair), 's_add_u32 s%d, s%d, s%d' % (t0, t0, sWave),
        's_mul_i32 s%d, s%d, %d' % (t0, t0, 17 * 1024))


def gate_load(sblk, dst):
    P = srd(sPt, P_WS, 8192, off=WS_G)
    P += L('s_lshl_b32 s%d, s%d, 2' % (t0, sblk), 's_add_u32 s%d, s%d, s%d' % (t0, t0, sWave), 's_lshl_b32 s%d, s%d, 7' % (t0, t0),
           'v_and_b32 v5, 15, v0', 'v_lshlrev_b32 v5, 2, v5')
    for qb in range(2):
        P.append(I('buffer_load_dword v%d, v5, s[%d:%d], s%d offen offset:%d %s' % (dst + qb, sPt, sPt + 3, t0, qb * 64, EXP.get('ldflags', ''))))
    return P


def pretail(lab, back):
    P = [I(lab + ':'), STAMP(6)]
    A = lambda x: P.append(I(x))
    A('s_cmp_eq_u32 s%d, 1' % sMode)
    A('s_cbranch_scc1 %s_next' % lab)
    A('s_mov_b32 s%d, 0' % sEnd)
    P += PRE_FIN
    A('s_cmp_lg_u32 s%d, 2' % sMode)
    A('s_cbranch_scc1 %s' % back)
    P += poll_check(lab, vPF, vPF + 1, 1, sc=t1)
    P += part_base()
    for i in range(17):
        if i % 4 == 0 and i:
            A('s_add_u32 s%d, s%d, 4096' % (t0, t0))
        A('buffer_load_dwordx4 a[%d:%d], v%d, s[%d:%d], s%d offen offset:%d sc1' % (PART + 4 * i, PART + 4 * i + 3, vL16, sPt, sPt + 3, t0, (i % 4) * 1024))
    A('s_branch %s' % back)
    A('%s_next:' % lab)
    A('v_readfirstlane_b32 s%d, v%d' % (sNext, aV))
    P += flat(adv(sNext, 1, t3))
    P += L('s_cmp_lg_u32 s%d, 0' % sP2, 's_cselect_b32 s%d, s%d, s%d' % (sQI, sP2, sOwn), 's_cselect_b32 s%d, %d, 0' % (sT0, SPLIT),
           's_cselect_b32 s%d, 1, 0' % sNm, 's_lshl_b32 s%d, s%d, 1' % (sT1, sQI), 's_add_u32 s%d, s%d, 2' % (sT1, sT1),
           's_mov_b32 s%d, 0' % sP2)
    G = seg_loads(True)
    P += seg_loads.setup + L('s_cmp_eq_u32 s%d, 0' % sNm, 's_cbranch_scc1 %s_own' % lab) + flat(G[1]) + L('s_branch %s' % back, '%s_own:' % lab)
    P += [I('v_accvgpr_mov_b32 a%d, a%d' % (Qa + i, PART + i)) for i in range(64)]
    A('s_branch %s' % back)
    return P


def mix(E, X):
    P = []
    k = 0
    for i, e in enumerate(E):
        P.append(e)
        while k < len(X) and k * len(E) < (i + 1) * len(X) and e.kind != 'salu':
            P += X[k]
            k += 1
    return P + flat(X[k:])


def finish(lab, stflags='', pre=lambda t: [], items=lambda: []):
    P = []
    A = lambda x: P.append(I(x))
    pr = lambda r: 'v[%d:%d]' % (r, r + 1)
    x0, x1 = xlane_reduce(Lr[0], vT[0], 'v_add_f32'), xlane_reduce(Lr[1], vT[1], 'v_add_f32')
    for a, b in zip(x0, x1):
        P.extend([a, b])
    f1 = [vT[2], vT[4]]
    f2 = [vT[6], vT[8]]
    A('s_cmp_eq_u32 s%d, 2' % sMode)
    A('s_cbranch_scc1 %s_comb' % lab)
    for qb in range(2):
        A('v_rcp_f32 v%d, v%d' % (f1[qb], Lr[qb]))
    A('s_cmp_eq_u32 s%d, 1' % sMode)
    A('s_cbranch_scc1 %s_part' % lab)

    def ctx_base():
        Q = srd(sQ, P_WS, HC_SIZE, off=WS_HC)
        Q += L('s_lshl_b32 s%d, s%d, 2' % (t0, sQI), 's_add_u32 s%d, s%d, s%d' % (t0, t0, sWave),
               's_mul_i32 s%d, s%d, %d' % (t0, t0, 2 * HC_RB), 's_lshl_b32 s%d, s%d, 13' % (t1, sH),
               's_add_u32 s%d, s%d, s%d' % (t0, t0, t1), 's_add_u32 s%d, s%d, %d' % (t0, t0, 28 * 1024))
        return Q

    def emit(srd_, offf, flags, comb):
        Q = []
        k = 0
        for qb in range(2):
            for pp in range(8):
                a, b = Or(2 * pp, qb), Or(2 * pp + 1, qb)
                for r in (a, a + 2, b, b + 2):
                    Q.append(I('v_pk_mul_f32 %s, %s, %s op_sel_hi:[1,0]' % (pr(r), pr(r), pr(f1[qb]))))
                if comb:
                    t = 32 + (k % 4) * 12
                    for r in range(4):
                        Q.append(I('v_accvgpr_read_b32 v%d, a%d' % (t + 8 + r, PART + 4 * k + r)))
                    for r in range(4):
                        Q.append(I('v_lshlrev_b32 v%d, 16, v%d' % (t + 2 * r, t + 8 + r)))
                        Q.append(I('v_and_b32 v%d, 0xffff0000, v%d' % (t + 2 * r + 1, t + 8 + r)))
                    for r, o in enumerate((a, a + 2, b, b + 2)):
                        Q.append(I('v_pk_fma_f32 %s, %s, %s, %s op_sel_hi:[1,0,1]' % (pr(o), pr(t + 2 * r), pr(f2[qb]), pr(o))))
                for r, o in enumerate((a, a + 2, b, b + 2)):
                    Q.append(I('v_cvt_pk_bf16_f32 v%d, v%d, v%d' % (a + r, o, o + 1)))
                Q += store4(a, vL16, offf(qb, pp, k), flags, soff=t1, base=t0, srd_=srd_)
                Q[-1].wr.add('tag:ctxst')
                k += 1
        return Q

    for qb in range(2):
        A('v_mul_f32 v%d, v%d, v%d' % (f1[qb], f1[qb], Gv[qb]))
    P += ctx_base()
    P += emit(sQ, lambda qb, pp, k: qb * HC_RB + pp * 1024, stflags, False)
    A('s_branch %s_fin' % lab)
    A('%s_part:' % lab)
    P += part_base()
    G = seg_loads(None, nosetup=True)
    E = emit(sPt, lambda qb, pp, k: k * 1024, 'sc1', False)
    X = G[2] + G[3] + G[4]
    P += mix(E, X)
    st = 80
    P += L('v_mov_b32 v%d, v%d' % (st, NM[0]), 'v_mov_b32 v%d, v%d' % (st + 1, Lr[0]),
           'v_mov_b32 v%d, v%d' % (st + 2, NM[1]), 'v_mov_b32 v%d, v%d' % (st + 3, Lr[1]))
    P += store4(st, vL16, 16384, 'sc1', soff=t1, base=t0, srd_=sPt)
    P += L('s_mov_b32 s%d, s%d' % (sMode, sNm))
    P += pair_flag(sPend) + L('s_barrier')
    P += set_pair() + flat(G[5])
    P += [need('aK0')] + [I('', needs=['a%d' % (Qa + i) for i in range(64)])] + L('s_branch L_seg')
    A('%s_comb:' % lab)
    for i in range(4):
        A('v_accvgpr_read_b32 v%d, a%d' % (80 + i, PART + 64 + i))
    for qb in range(2):
        nm2, l2 = 80 + 2 * qb, 81 + 2 * qb
        mn = vT[10]
        A('v_min_f32 v%d, v%d, v%d' % (mn, NM[qb], nm2))
        A('v_sub_f32 v%d, v%d, v%d' % (f1[qb], mn, NM[qb]))
        A('v_sub_f32 v%d, v%d, v%d' % (f2[qb], mn, nm2))
        A('v_exp_f32 v%d, v%d' % (f1[qb], f1[qb]))
        A('v_exp_f32 v%d, v%d' % (f2[qb], f2[qb]))
        A('v_mul_f32 v%d, v%d, v%d' % (f2[qb], f2[qb], l2))
        A('v_fma_f32 v%d, v%d, v%d, v%d' % (mn, f1[qb], Lr[qb], f2[qb]))
        A('v_rcp_f32 v%d, v%d' % (mn, mn))
        A('v_mul_f32 v%d, v%d, v%d' % (mn, mn, Gv[qb]))
        A('v_mul_f32 v%d, v%d, v%d' % (f1[qb], f1[qb], mn))
        A('v_mul_f32 v%d, v%d, v%d' % (f2[qb], f2[qb], mn))
    P += ctx_base()
    P += emit(sQ, lambda qb, pp, k: qb * HC_RB + pp * 1024, stflags, True)
    A('%s_fin:' % lab)
    return P


OWN = [15, 14, 13, 12, 11, 10, 9, 8, 7, 4, 3, 2, 1, 0, 6, 5]
PT1 = [0] * 8 + [9, 12, 13, 14, 15, 11, 0, 0]
PT2 = [0] * 13 + [10, 0, 0]


def decode():
    def tab(vals, dst):
        v = sum(x << (4 * i) for i, x in enumerate(vals))
        return L('s_mov_b32 s4, 0x%x' % (v & 0xffffffff), 's_mov_b32 s5, 0x%x' % (v >> 32), 's_lshr_b64 s[4:5], s[4:5], s%d' % t0,
                 's_and_b32 s%d, s4, 15' % dst)
    P = L('s_and_b32 s%d, s2, 7' % t2, 's_lshr_b32 s%d, s2, 3' % t0, 's_and_b32 s%d, s%d, 1' % (t1, t0),
          's_lshl_b32 s%d, s%d, 1' % (t2, t2), 's_add_u32 s%d, s%d, s%d' % (sH, t2, t1),
          's_lshr_b32 s%d, s%d, 1' % (t0, t0), 's_lshl_b32 s%d, s%d, 2' % (t0, t0))
    P += tab(OWN, sOwn) + tab(PT1, t1) + tab(PT2, sP2)
    P += L('s_cmp_lg_u32 s%d, 0' % t1, 's_cselect_b32 s%d, s%d, s%d' % (sQI, t1, sOwn), 's_cselect_b32 s%d, %d, 0' % (sT0, SPLIT),
           's_cselect_b32 s%d, 1, 0' % sMode, 's_lshl_b32 s%d, s%d, 1' % (sT1, sQI), 's_add_u32 s%d, s%d, 2' % (sT1, sT1),
           's_cmp_gt_u32 s%d, %d' % (sOwn, 8), 's_cselect_b32 s%d, 2, s%d' % (sMode, sMode),
           's_cselect_b32 s%d, %d, s%d' % (sT1, SPLIT, sT1))
    P += set_pair()
    return P


def set_pair():
    return L('s_lshl_b32 s%d, s%d, 3' % (sPair, sH), 's_add_u32 s%d, s%d, s%d' % (sPair, sPair, sQI), 's_sub_u32 s%d, s%d, 9' % (sPair, sPair))


def own_q(src):
    return [I('v_accvgpr_write_b32 a%d, v%d' % (d + i, src + i)) for d in (Qa, PART) for i in range(64)]


def run(stflags='', **kw):
    P = L('L_seg:')
    P += segment('a', 63)
    P.append(STAMP(7))
    P += finish('f', stflags, **kw)
    P.append(STAMP(8))
    return P
```

```python
from asmlib import *

MF = 'v_mfma_f32_16x16x32_bf16'
WAVE = 35
T0, T1, T2, T3, U0, U1 = 31, 32, 33, 34, 26, 27


def rng(kind, b, n):
    return '%s[%d:%d]' % (kind, b, b + n - 1) if n > 1 else '%s%d' % (kind, b)


class Reg:
    def __init__(self, kind, base):
        self.kind, self.base = kind, base

    def r(self, i=0, n=1):
        return rng(self.kind, self.base + i, n)


def uni(idx):
    return Reg('v', idx) if idx < 256 else Reg('a', idx - 256)


def log2(x):
    n = x.bit_length() - 1
    assert 1 << n == x
    return n


def flat(G):
    return [i for g in G for i in g]


def L(*lines):
    return [I(x) for x in lines]


def nvm(P):
    return sum(1 for b in P if b.kind in ('vld', 'vst', 'dma'))


class Item:
    def __init__(self, pre, d, post, lds):
        self.pre, self.d, self.post, self.lds = pre, d, post, lds

    def all(self):
        return self.pre + [self.d] + flat(self.post)


class Gemm:
    def __init__(self, name, TX, TW, WX, WW, T, xtype, x_stride, w_stride, swap, nX, nW, s, vbase, acc_regs,
                 frag_regs, BK=64, kperm=False, xbase=0, wbase=None, rdpg=1.0, mode='step',
                 xfl='', wfl='', static=False, x0=0, w0=0, xres=False, wmajor=False):
        self.__dict__.update(locals())
        del self.self
        assert WX * WW == 4
        self.nxb = TX // WX // 16
        self.nwb = TW // WW // 16
        self.KS = BK // 32
        self.xrow = BK * 2
        self.xsz = TX * BK * 2
        self.wrow = TW * 2
        self.wsz = BK * TW * 2
        self.ndx = self.xsz // 4096
        assert self.xsz % 4096 == 0 and self.wsz % 4096 == 0
        self.ndw = self.wsz // 4096
        if wbase is None:
            self.wbase = xbase + nX * self.xsz
        self.lds_end = max(self.wbase + nW * self.wsz, xbase + nX * self.xsz)
        assert self.lds_end <= 163840, self.lds_end
        self.nm = self.nxb * self.nwb
        v = vbase
        self.vX = list(range(v, v + (self.ndx if xtype == 'rowk' else self.ndx // self.KS)))
        v += len(self.vX)
        self.vW = list(range(v, v + self.ndw))
        v += self.ndw
        self.xwin = -(-nX * self.xsz // 65536) if static else 1
        self.wwin = -(-nW * self.wsz // 65536) if static else 1
        na = self.KS if xtype == 'rowk' else 1
        self.aX = [list(range(v + k * na, v + (k + 1) * na)) for k in range(self.xwin)]
        v += na * self.xwin
        self.naw = min(self.nwb, 1 << len(self.wswz_bits()))
        self.aW = [list(range(v + k * self.naw, v + (k + 1) * self.naw)) for k in range(self.wwin)]
        v += self.naw * self.wwin
        self.vend = v
        self.FS = self.KS if mode == 'tile' else 1
        it = iter(frag_regs)
        if not xres:
            self.fX = [[[uni(next(it)) for b in range(self.nxb)] for k in range(self.FS)] for st in range(2)]
        self.fW = [[[uni(next(it)) for b in range(self.nwb)] for k in range(self.FS)] for st in range(2)]
        self.set_acc(acc_regs)

    def set_acc(self, acc_regs):
        assert len(acc_regs) >= self.nm
        self.acc = [[uni(acc_regs[x * self.nwb + w]) for w in range(self.nwb)] for x in range(self.nxb)]

    def wx_expr(self, dst):
        return L({1: 's_mov_b32 s%d, 0' % dst, 2: 's_and_b32 s%d, s%d, 1' % (dst, WAVE), 4: 's_mov_b32 s%d, s%d' % (dst, WAVE)}[self.WX])

    def ww_expr(self, dst):
        return L({1: 's_mov_b32 s%d, s%d' % (dst, WAVE), 2: 's_lshr_b32 s%d, s%d, 1' % (dst, WAVE), 4: 's_mov_b32 s%d, 0' % dst}[self.WX])

    def wswz_bits(self):
        lowbits = [0, 1, 2] if self.kperm else [0, 1, 3]
        if self.wrow % 256 == 0:
            return list(zip(lowbits, [0, 1, 2]))
        if self.wrow % 256 == 128:
            return list(zip(lowbits[1:], [0, 1]))
        raise ValueError(self.wrow)

    def fk(self, k):
        f = 0
        for kb, sb in self.wswz_bits():
            f |= ((k >> kb) & 1) << sb
        return f

    def voff_x(self, dst, stride, t=(1, 2), st0=U0):
        P = []
        A = lambda x: P.append(I(x))
        t1, t2 = ['v%d' % i for i in t]
        if self.xtype == 'rowk':
            cpr = self.xrow // 16
            rpi = 64 // cpr
            assert self.BK == 64 and self.ndx % 2 == 0 and stride % 128 == 0
            A('v_lshrrev_b32 %s, %d, v0' % (t1, log2(cpr)))
            A('s_mul_i32 s%d, s%d, %d' % (st0, WAVE, self.ndx * rpi * stride))
            A('v_mul_u32_u24 %s, %d, %s' % (t1, stride, t1))
            A('v_lshrrev_b32 %s, 4, v0' % t2)
            A('v_xor_b32 %s, %s, v0' % (t2, t2))
            A('v_and_b32 %s, %d, %s' % (t2, cpr - 1, t2))
            A('v_lshl_add_u32 %s, %s, 4, %s' % (t1, t2, t1))
            A('v_add_u32 v%d, s%d, %s' % (dst[0], st0, t1))
            A('v_xor_b32 %s, 64, v%d' % (t2, dst[0]))
            assert rpi * stride >= 1024
            A('v_add_u32 v%d, %d, %s' % (dst[1], rpi * stride - 1024, t2))
            for j in range(2, self.ndx):
                A('v_add_u32 v%d, %d, v%d' % (dst[j], (j - j % 2) * rpi * stride - (j % 4 - j % 2) * 1024, dst[j % 2]))
        else:
            assert self.ndx <= 4 and self.ndx % self.KS == 0
            A('s_mul_i32 s%d, s%d, %d' % (st0, WAVE, stride * (self.ndx // self.KS)))
            A('v_lshl_add_u32 v%d, v0, 4, s%d' % (dst[0], st0))
            for b in range(1, self.ndx // self.KS):
                A('v_add_u32 v%d, %d, v%d' % (dst[b], b * (stride - self.KS * 1024), dst[0]))
        return P

    def voff_w(self, dst, stride, t=(1, 2, 3), st0=U0):
        P = []
        A = lambda x: P.append(I(x))
        t1, t2, t3 = ['v%d' % i for i in t]
        cw = self.wrow // 16
        rpi = 64 // cw
        assert cw & (cw - 1) == 0 and rpi * stride >= 1024
        assert all(self.fk(w * self.ndw * rpi) == 0 for w in range(4))
        A('v_lshrrev_b32 %s, %d, v0' % (t1, log2(cw)))
        A('v_and_b32 %s, %d, v0' % (t2, cw - 1))
        for kb, sb in self.wswz_bits():
            if (1 << kb) < rpi:
                A('v_bfe_u32 %s, %s, %d, 1' % (t3, t1, kb))
                A('v_lshlrev_b32 %s, %d, %s' % (t3, sb + 1, t3))
                A('v_xor_b32 %s, %s, %s' % (t2, t2, t3))
        A('v_lshlrev_b32 %s, 4, %s' % (t2, t2))
        A('s_mul_i32 s%d, s%d, %d' % (st0, WAVE, self.ndw * rpi * stride))
        A('v_mul_u32_u24 %s, %d, %s' % (t1, stride, t1))
        A('v_add_u32 %s, s%d, %s' % (t1, st0, t1))
        done = {}
        for j in range(self.ndw):
            f = self.fk(j * rpi)
            if f in done:
                A('v_add_u32 v%d, %d, v%d' % (dst[j], (j - done[f]) * rpi * stride - (j % 4 - done[f] % 4) * 1024, dst[done[f]]))
            else:
                done[f] = j
                if f:
                    A('v_xor_b32 %s, %d, %s' % (t3, f * 32, t2))
                    A('v_add_u32 v%d, %s, %s' % (dst[j], t3, t1))
                else:
                    A('v_add_u32 v%d, %s, %s' % (dst[j], t2, t1))
                if j:
                    A('v_add_u32 v%d, %d, v%d' % (dst[j], j * rpi * stride - (j % 4) * 1024, dst[j]))
        return P

    def setup_x(self):
        s = self.s
        P = self.voff_x(self.vX, self.x_stride)
        P += L('s_mul_i32 s%d, s%d, %d' % (s['xslot'], WAVE, self.ndx * 1024))
        if not self.static:
            assert self.xbase == 0 and self.x0 == 0
        return P

    def setup_w(self):
        s = self.s
        P = self.voff_w(self.vW, self.w_stride)
        P += L('s_mul_i32 s%d, s%d, %d' % (s['wslot'], WAVE, self.ndw * 1024))
        return P

    def setup_read(self, t=(1, 2, 3, 4, 5), st0=U0, st1=U1):
        s = self.s
        P = []
        A = lambda x: P.append(I(x))
        t1, t2, t3, t4, t5 = ['v%d' % i for i in t]
        P += self.wx_expr(st0)
        a0 = self.aX[0]
        if self.xtype == 'rowk':
            A('v_and_b32 %s, 15, v0' % t1)
            A('s_mul_i32 s%d, s%d, %d' % (st0, st0, self.nxb * 16 * self.xrow))
            if self.xbase:
                A('s_add_u32 s%d, s%d, %d' % (st0, st0, self.xbase))
            A('v_lshl_add_u32 %s, %s, %d, s%d' % (t1, t1, log2(self.xrow), st0))
            A('v_lshrrev_b32 %s, 4, v0' % t2)
            A('v_bfe_u32 %s, v0, 1, 3' % t3)
            A('v_xor_b32 %s, %s, %s' % (t2, t2, t3))
            A('v_lshl_add_u32 v%d, %s, 4, %s' % (a0[0], t2, t1))
            for kk in range(1, self.KS):
                A('v_xor_b32 v%d, %d, v%d' % (a0[kk], kk * 64, a0[0]))
        else:
            A('s_mul_i32 s%d, s%d, %d' % (st0, st0, self.nxb * self.KS * 1024))
            if self.xbase:
                A('s_add_u32 s%d, s%d, %d' % (st0, st0, self.xbase))
            A('v_lshl_add_u32 v%d, v0, 4, s%d' % (a0[0], st0))
        for k in range(1, self.xwin):
            for a, b in zip(self.aX[k], a0):
                A('v_add_u32 v%d, %d, v%d' % (a, 65536 * k, b))
        A('v_bfe_u32 %s, v0, 2, 2' % t1)
        A('v_lshrrev_b32 %s, 4, v0' % t2)
        A('v_lshl_add_u32 %s, %s, %d, %s' % (t2, t2, 2 if self.kperm else 3, t1))
        for i, (kb, sb) in enumerate(self.wswz_bits()):
            if i == 0:
                A('v_bfe_u32 %s, %s, %d, 1' % (t4, t2, kb))
            else:
                A('v_bfe_u32 %s, %s, %d, 1' % (t5, t2, kb))
                A('v_lshl_or_b32 %s, %s, %d, %s' % (t4, t5, sb, t4))
        A('v_mul_u32_u24 %s, %d, %s' % (t2, self.wrow, t2))
        A('v_and_b32 %s, 3, v0' % t3)
        A('v_lshl_add_u32 %s, %s, 3, %s' % (t2, t3, t2))
        A('v_add_u32 %s, %d, %s' % (t2, self.wbase, t2))
        P += self.ww_expr(st0)
        A('s_mul_i32 s%d, s%d, %d' % (st0, st0, self.nwb))
        A('v_xor_b32 %s, s%d, %s' % (t4, st0, t4))
        assert self.WW == 1 or (self.nwb & (self.nwb - 1)) == 0
        for wb in range(self.naw):
            A('v_xor_b32 %s, %d, %s' % (t3, wb, t4))
            A('v_lshl_add_u32 v%d, %s, 5, %s' % (self.aW[0][wb], t3, t2))
        for k in range(1, self.wwin):
            for a, b in zip(self.aW[k], self.aW[0]):
                A('v_add_u32 v%d, %d, v%d' % (a, 65536 * k, b))
        if not self.static:
            P += L('s_mov_b32 s%d, 0' % s['xrd'], 's_mov_b32 s%d, 0' % s['wrd'])
        return P

    def wfrag(self, t):
        return False

    def xslot_of(self, t):
        return (t + self.x0) % self.nX

    def wslot_of(self, t):
        return (t + self.w0) % self.nW

    def tag(self, which, t):
        if self.static:
            return '%s%s%d' % (self.name, which, self.xslot_of(t) if which == 'X' else self.wslot_of(t))
        return self.name + which

    def group(self, which, t, vregs=None, wstep=None, pre=None, tag=None):
        s = self.s
        X = which == 'X'
        srd, off, slot = (s['xsrd'], s['xoff'], s['xslot']) if X else (s['wsrd'], s['woff'], s['wslot'])
        nd, sz, ns, base = (self.ndx, self.xsz, self.nX, self.xbase) if X else (self.ndw, self.wsz, self.nW, self.wbase)
        sl = self.xslot_of(t) if X else self.wslot_of(t)
        step = (self.BK * 2 if self.xtype == 'rowk' else self.KS * 1024) if X else (wstep or self.BK * self.w_stride)
        fl = self.xfl if X else self.wfl
        cst = base + (sl * sz if self.static else 0)
        lds = (base + sl * sz, base + (sl + 1) * sz)
        vv = vregs or (self.vX if X else self.vW)
        items = []
        for j in range(nd):
            m = list(pre or []) if j == 0 else []
            if (X and self.xtype == 'frag') or (not X and self.wfrag(t)):
                if j == 0:
                    m.append(I('s_add_u32 m0, s%d, %d' % (slot, cst)))
                d = I('buffer_load_dwordx4 v%d, s[%d:%d], s%d offen offset:%d %s lds' % (vv[j // self.KS if X else 0], srd, srd + 3, off, j * 1024, fl), tag=tag or self.tag(which, t))
            else:
                if j % 4 == 0:
                    m.append(I('s_add_u32 m0, s%d, %d' % (slot, cst + j * 1024)))
                d = I('buffer_load_dwordx4 v%d, s[%d:%d], s%d offen offset:%d %s lds' % (vv[j], srd, srd + 3, off, (j % 4) * 1024, fl), tag=tag or self.tag(which, t))
            post = []
            if j == nd - 1:
                post = [L('s_add_u32 s%d, s%d, %d' % (off, off, step))]
                if not self.static:
                    post += [L('s_add_u32 s%d, s%d, %d' % (slot, slot, sz)),
                             L('s_sub_u32 s%d, s%d, %d' % (T3, slot, ns * sz), 's_min_u32 s%d, s%d, s%d' % (slot, slot, T3))]
            items.append(Item(m, d, post, lds))
        return items

    def order(self):
        return ['W', 'X'] if self.nX >= self.nW else ['X', 'W']

    def G(self, t):
        R = []
        for wch in self.order():
            tt = t + (self.nX if wch == 'X' else self.nW)
            if tt < self.T and not (wch == 'X' and self.xres):
                R += self.group(wch, tt)
        return R

    def first_groups(self):
        R = []
        for t in range(max(self.nX, self.nW) - 1):
            if t < self.nX - 1 and not self.xres:
                R.append(self.group('X', t, tag=None if (self.static or t) else self.name + 'X0'))
            if t < self.nW - 1:
                R.append(self.group('W', t, tag=None if (self.static or t) else self.name + 'W0'))
        return R

    def live_ranges(self, b):
        R = []
        for t in range(b + 1, min(self.T, b + 1 + max(self.nX, self.nW))):
            if not self.xres and t < b + 1 + self.nX:
                R.append((self.xbase + self.xslot_of(t) * self.xsz, self.xbase + (self.xslot_of(t) + 1) * self.xsz))
            if t < b + 1 + self.nW:
                R.append((self.wbase + self.wslot_of(t) * self.wsz, self.wbase + (self.wslot_of(t) + 1) * self.wsz))
        return R

    def reads(self, t, kks, st):
        out = []
        xo = self.xslot_of(t) * self.xsz if self.static else 0
        wo = self.wslot_of(t) * self.wsz if self.static else 0
        for fi, kk in enumerate(kks):
            rx = []
            if not self.xres:
                for b in range(self.nxb):
                    o = xo + (b * 16 * self.xrow if self.xtype == 'rowk' else (b * self.KS + kk) * 1024)
                    rx.append(I('ds_read_b128 %s, v%d offset:%d' % (self.fX[st][fi][b].r(0, 4),
                                                                    self.aX[o >> 16][kk if self.xtype == 'rowk' else 0], o & 65535)))
            rw = []
            for b in range(self.nwb):
                if self.wfrag(t):
                    rw.append(I('ds_read_b128 %s, v%d offset:%d' % (self.fW[st][fi][b].r(0, 4), self.aWf, wo + (kk * self.TW // 16 + b) * 1024)))
                    continue
                for h in range(2):
                    o = wo + (32 * kk + (16 if self.kperm else 4) * h) * self.wrow + (b // self.naw) * self.naw * 32
                    rw.append(I('ds_read_b64_tr_b16 %s, v%d offset:%d' % (self.fW[st][fi][b].r(2 * h, 2), self.aW[o >> 16][b % self.naw], o & 65535)))
            out += (rx + rw) if self.wmajor else (rx[:1] + rw + rx[1:])
        return out

    def xfrag(self, t, st, fi, x):
        return self.fX[st][fi][x]

    def mfmas(self, t, st, zero=False):
        R = []
        for fi in range(self.FS):
            for x, w in ([(x, w) for w in range(self.nwb) for x in range(self.nxb)] if self.wmajor else
                         [(x, w) for x in range(self.nxb) for w in range(self.nwb)]):
                if True:
                    xa, wa = self.xfrag(t, st, fi, x).r(0, 4), self.fW[st][fi][w].r(0, 4)
                    a, b = (wa, xa) if self.swap else (xa, wa)
                    c = self.acc[x][w].r(0, 4)
                    R.append(I('%s %s, %s, %s, %s' % (MF, c, a, b, '0' if (zero and fi == 0) else c)))
        return R

    def geom(self):
        tile = self.mode == 'tile'
        nsteps = 1 if tile else self.KS
        nm = self.nm * self.FS
        return tile, nsteps, nm, nsteps * nm, (nsteps - 1) * nm

    def rdgap(self, i, stp=0):
        r = self.rdpg[stp] if isinstance(self.rdpg, (list, tuple)) else self.rdpg
        return int(i / r)

    def positions(self, n):
        tile, nsteps, nm, NG, bar = self.geom()
        nrd = len(self.reads(0, range(self.FS), 0))
        cnt = [0] * NG
        for stp in range(nsteps):
            for i in range(nrd):
                cnt[stp * nm + self.rdgap(i, stp)] += 1
        end = NG + bar - (0 if tile else max(2, nm // 4))
        cand = [g for g in range(bar, end - 1) if cnt[g % NG] == 0]
        if len(cand) < n:
            cand = [g for g in range(bar, end - 1) if cnt[g % NG] <= 1]
        if len(cand) < n:
            cand = list(range(bar, end - 1))
        return [cand[i * len(cand) // n] for i in range(n)]

    def split(self, items):
        NG = self.geom()[3]
        pos = self.positions(len(items))
        n3 = sum(1 for p in pos if p < NG)
        return list(zip(items[:n3], pos[:n3])), [(it, p - NG) for it, p in zip(items[n3:], pos[n3:])]

    def iter(self, t, late, early, extra=(), zero=False, last=False, tailcode=(), extra_mf=(), needs=None, xg=None, cap=2.0):
        s = self.s
        tile, nsteps, nm, NG, bar = self.geom()
        head = [[] for _ in range(NG)]
        gaps = [[] for _ in range(NG)]
        pre_gap = [[] for _ in range(NG)]
        load = [0.0] * NG
        par = t % 2 if tile else 0
        nrd = len(self.reads(0, range(self.FS), 0))
        lastrd = self.rdgap(nrd - 1, max(0, nsteps - 2))
        rds = [[] for _ in range(NG)]
        for stp in range(nsteps):
            cur = (stp + par) % 2
            nxt_tile = tile or stp == nsteps - 1
            if not (last and nxt_tile):
                rl = self.reads(t + 1 if nxt_tile else t, range(self.KS) if tile else [(stp + 1) % self.KS], 1 - cur)
                for i, r in enumerate(rl):
                    g = stp * nm + self.rdgap(i, stp)
                    assert g < (stp + 1) * nm
                    rds[g].append(r)
                    load[g] += 1 if len(rds[g]) == 1 else 2
            if not self.wmajor:
                pre_gap[stp * nm].append(I('s_waitcnt lgkmcnt(0)'))
            else:
                for w in range(0, self.nwb, 4):
                    regs = [self.fW[cur][0][u] for u in range(w, min(self.nwb, w + 4))] + (self.fX[cur][0] if w == 0 else [])
                    pre_gap[stp * nm + w * self.nxb].append(I('', needs=[r.r(k) for r in regs for k in range(4)]))
        if not self.static and not last:
            upd = []
            for rd, sz, n, d in ((s['xrd'], self.xsz, self.nX, T0), (s['wrd'], self.wsz, self.nW, T1)):
                upd += [L('s_add_u32 s%d, s%d, %d' % (d, rd, sz), 's_sub_u32 s%d, s%d, %d' % (T2, d, n * sz)),
                        L('s_min_u32 s%d, s%d, s%d' % (T2, d, T2), 's_sub_u32 s%d, s%d, s%d' % (d, T2, rd)),
                        L('s_mov_b32 s%d, s%d' % (rd, T2))]
            updv = [I('v_add_u32 v%d, s%d, v%d' % (a, T0, a)) for a in self.aX[0]]
            updv += [I('v_add_u32 v%d, s%d, v%d' % (a, T1, a)) for a in self.aW[0]]
            ub = max(0, nsteps - 2) * nm
            for i, u in enumerate(upd):
                gaps[ub + 1 + 2 * i].extend(u)
                load[ub + 1 + 2 * i] += len(u)
            room = nm - 1 - lastrd
            for i, u in enumerate(updv):
                g = ub + lastrd + 1 + (i * room // len(updv))
                gaps[g].append(u)
                load[g] += 1
        if needs is None:
            needs = []
            if not last:
                if self.static:
                    needs = [self.tag('W', t + 1)] + ([] if self.xres else [self.tag('X', t + 1)])
                else:
                    assert self.nW == 2 and self.nX == 3
                    needs = [self.tag('W', t + 1)]
        pre_gap[bar] = ([need(*needs)] if needs else []) + [I('s_waitcnt lgkmcnt(0)'), I('s_barrier')]
        for lst, lo, hi in ((late, 0, bar), (early, bar, NG)):
            prev = -1
            for i, (it, gi) in enumerate(lst):
                assert lo <= gi < hi or (not tile and lo <= gi < NG), (gi, lo, hi)
                if gi > lo and gi > prev:
                    gaps[gi - 1].extend(it.pre)
                    load[gi - 1] += len(it.pre)
                    head[gi].append(it.d)
                else:
                    head[gi].extend(it.pre + [it.d])
                    load[gi] += len(it.pre)
                load[gi] += 2
                prev = gi
                nxt = lst[i + 1][1] if i + 1 < len(lst) else gi + 6
                lim = min(nxt - 1, hi - 1)
                for q, pp in enumerate(it.post):
                    gq = min(gi + 1 + q, lim - 1)
                    if gq <= gi:
                        head[gi].extend(pp)
                        load[gi] += len(pp)
                    else:
                        gaps[gq].extend(pp)
                        load[gq] += len(pp)
        ex = [e if isinstance(e, (list, tuple)) else [e] for e in extra]
        g0, g1 = xg or (0, NG)
        g = g0
        for i, e in enumerate(ex):
            tgt = max(g, g0 + i * (g1 - g0) // len(ex))
            k = tgt
            room = g0 + (i + 1) * (g1 - g0) // len(ex) + 2
            c = sum(2 if x.kind in ('vst', 'vld', 'dma', 'trans') else 1 for x in e)
            while k < min(g1 - 1, room) and load[k] + min(c, cap) > cap:
                k += 1
            gaps[k].extend(e)
            load[k] += c
            g = k
        ms = []
        for stp in range(nsteps):
            ms += self.mfmas(t, (stp + par) % 2, zero=zero and stp == 0)
        out = []
        for g in range(NG):
            out.extend(pre_gap[g])
            out.append(ms[g])
            out.extend(rds[g])
            out.extend(head[g])
            out.extend(gaps[g])
        out += list(extra_mf) + list(tailcode)
        return out

    def zero_acc(self):
        P = []
        for x in range(self.nxb):
            for w in range(self.nwb):
                a = self.acc[x][w]
                for r in range(4):
                    P.append(I(('v_accvgpr_write_b32 %s, 0' if a.kind == 'a' else 'v_mov_b32 %s, 0') % a.r(r)))
        return P

    def start(self, needs=None):
        if needs is None:
            needs = [self.tag('W', 0)] + ([] if self.xres else [self.tag('X', 0)])
            if not self.static:
                needs = [self.name + 'W0', self.name + 'X0']
        return [need(*needs), I('s_barrier')] + self.reads(0, range(self.FS), 0)


def disjoint(r, ranges):
    return all(r[1] <= a or r[0] >= b for a, b in ranges)


def graft(g, b, own, queue, maxn):
    live = g.live_ranges(b)
    R = list(own)
    assert not (own and queue) or any('m0' in x.wr for x in queue[0].pre), 'grafted item would inherit a foreign m0'
    while queue and len(R) < maxn and disjoint(queue[0].lds, live):
        R.append(queue.pop(0))
    return R


def run_static(g, lab, cnt, Gf, opts=None, loop=None, late0=None):
    P = []
    late = late0 if late0 is not None else g.split(Gf(-1))[1]
    t = 0
    while t < g.T:
        if loop and t == loop[0]:
            a, b, per = loop
            assert (b - a) % per == 0
            P += L('s_mov_b32 s%d, %d' % (cnt, (b - a) // per), lab + '_loop:')
            for u in range(a, a + per):
                early, nl = g.split(Gf(u))
                tc = L('s_sub_u32 s%d, s%d, 1' % (cnt, cnt), 's_cmp_lg_u32 s%d, 0' % cnt, 's_cbranch_scc1 %s_loop' % lab) if u == a + per - 1 else []
                P += g.iter(u, late, early, tailcode=tc, **(opts(u) if opts else {}))
                late = nl
            t = b
            continue
        early, nl = g.split(Gf(t))
        kw = dict(opts(t)) if opts else {}
        if t == g.T - 1:
            kw['last'] = True
        P += g.iter(t, late, early, **kw)
        late = nl
        t += 1
    return P, [it for it, p in late]
```

```python
from asmlib import *
from engine import *

MB = 1 << 20
WS_K, WS_V, WS_Q, WS_HC, WS_Z2N, WS_G, WS_PART = 0, 16 * MB, 32 * MB, 48 * MB, 68 * MB, 72 * MB, 73 * MB
HC_KS = 156
HC_RB = HC_KS * 1024
HC_SIZE = 128 * HC_RB
P_X, P_CKV, P_WQ, P_WUK, P_WUV, P_WO, P_BX, P_WIN, P_WSP, P_BSP, P_WOUT, P_GATE, P_OUT, P_DBG, P_WS = [40 + 2 * i for i in range(15)]

SA = dict(xsrd=8, wsrd=12, xoff=20, woff=21, xslot=22, wslot=23, xrd=24, wrd=25)
SB = dict(xsrd=88, wsrd=92, xoff=36, woff=37, xslot=38, wslot=39)
OSRD, AUX, CNT = 16, 4, 28
QSRD = 96
E0, E1, E2, E3 = 84, 85, 29, 30
BANK = (8, 38)
MISC = 68
ACC0 = 72
VL16 = 6
VSTAMP = 7
LOG2E = 1.4426950408889634


def f2u(x):
    import struct
    return struct.unpack('<I', struct.pack('<f', x))[0]


def entry(nwg, endlab):
    return L('s_cmp_ge_u32 s2, %d' % nwg, 's_cbranch_scc1 %s' % endlab,
             's_load_dwordx16 s[40:55], s[0:1], 0', 's_load_dwordx8 s[56:63], s[0:1], 64',
             's_load_dwordx4 s[64:67], s[0:1], 96', 's_load_dwordx2 s[68:69], s[0:1], 112',
             'v_lshrrev_b32 v1, 6, v0', 'v_readfirstlane_b32 s%d, v1' % WAVE, 'v_and_b32 v0, 63, v0',
             'v_lshlrev_b32 v%d, 4, v0' % VL16)


def srd(dst, ptr, size, off=0):
    if off:
        P = L('s_add_u32 s%d, s%d, %d' % (dst, ptr, off), 's_addc_u32 s%d, s%d, 0' % (dst + 1, ptr + 1))
    else:
        P = L('s_mov_b32 s%d, s%d' % (dst, ptr), 's_mov_b32 s%d, s%d' % (dst + 1, ptr + 1))
    return P + L('s_mov_b32 s%d, %d' % (dst + 2, size), 's_mov_b32 s%d, 0x20000' % (dst + 3))


def store4(src, va, off, flags='', soff=E1, base=E0, srd_=OSRD):
    src = src if isinstance(src, Reg) else Reg('v', src)
    hi, lo = off & ~4095, off & 4095
    P = L('s_add_u32 s%d, s%d, %d' % (soff, base, hi)) if hi else []
    P.append(I('buffer_store_dwordx4 %s, v%d, s[%d:%d], s%d offen offset:%d %s' % (
        src.r(0, 4), va, srd_, srd_ + 3, soff if hi else base, lo, flags)))
    return P


def with_pre(items, pre):
    items[0].pre = list(pre) + items[0].pre
    return items


pr = lambda r: 'v[%d:%d]' % (r, r + 1)


def items_code(items):
    return flat([it.all() for it in items])


class KV:
    NV = 14
    DA = 152

    def __init__(self, sSB, sH, sKV, stflags=''):
        self.__dict__.update(locals())
        frags = [256 + 4 * i for i in range(32)]
        self.g2 = []
        for isK in (True, False):
            pairs = [((x, 2 * p), (x, 2 * p + 1)) for x in range(8) for p in range(4)] if isK else \
                    [((2 * p, w), (2 * p + 1, w)) for p in range(4) for w in range(8)]
            amap = {}
            vlo = list(range(ACC0, 200, 4))
            for k, (a, b) in enumerate(pairs):
                if k < 14:
                    amap[a], amap[b] = 200 + 4 * k, vlo.pop(0)
                elif k < 23:
                    amap[a], amap[b] = vlo.pop(0), vlo.pop(0)
                else:
                    amap[a], amap[b] = 256 + 184 + 8 * (k - 23), 256 + 188 + 8 * (k - 23)
            accs = [amap[x, w] for x in range(8) for w in range(8)]
            g = Gemm('kv', 256, 256, 2, 2, 16, 'rowk', 2048, 8192, isK, 3, 2, SA, BANK[0], accs, frags, rdpg=0.5)
            g.pairs = pairs
            self.g2.append(g)
        self.g = self.g2[0]
        assert self.g.vend <= BANK[0] + 30

    def prologue(self):
        g = self.g
        G = g.first_groups()
        with_pre(G[0], srd(SA['xsrd'], P_CKV, 4 * MB) + L('s_lshl_b32 s%d, s%d, 19' % (SA['xoff'], self.sSB)) + g.setup_x())
        with_pre(G[1], L('s_cmp_eq_u32 s%d, 0' % self.sKV,
                         's_cselect_b32 s%d, s%d, s%d' % (SA['wsrd'], P_WUK, P_WUV),
                         's_cselect_b32 s%d, s%d, s%d' % (SA['wsrd'] + 1, P_WUK + 1, P_WUV + 1),
                         's_mov_b32 s%d, %d' % (SA['wsrd'] + 2, 8 * MB), 's_mov_b32 s%d, 0x20000' % (SA['wsrd'] + 3),
                         's_lshl_b32 s%d, s%d, 9' % (SA['woff'], self.sH)) + g.setup_w())
        return G

    def off(self, isK, k):
        return (k // 4) * 8192 + (k % 4) * 1024 if isK else (k // 8) * 16384 + (k % 8) * 1024

    def pack(self, isK, tmp):
        g = self.g2[0 if isK else 1]
        P = srd(OSRD, P_WS, 32 * MB) + g.wx_expr(E1)
        P += L('s_lshl_b32 s%d, s%d, 1' % (E0, self.sSB), 's_add_u32 s%d, s%d, s%d' % (E0, E0, E1), 's_lshl_b32 s%d, s%d, 16' % (E0, E0))
        P += g.ww_expr(E1)
        P += L('s_lshl_b32 s%d, s%d, %d' % (E1, E1, 12 if isK else 13), 's_add_u32 s%d, s%d, s%d' % (E0, E0, E1),
               's_lshl_b32 s%d, s%d, 20' % (E1, self.sH), 's_add_u32 s%d, s%d, s%d' % (E0, E0, E1))
        if not isK:
            P += L('s_add_u32 s%d, s%d, %d' % (E0, E0, WS_V))
        P += L('s_mov_b32 s%d, %d' % (E2, 8192 - 4096 if isK else 0), 's_mov_b32 s%d, %d' % (E3, 8192 - 4096 if isK else 16384 - 8192))
        order = list(range(23, 32)) + list(range(14, 23)) + list(range(14))
        dslot = 0
        self.qloc = {}
        for n, k in enumerate(order):
            a, b = g.acc[g.pairs[k][0][0]][g.pairs[k][0][1]], g.acc[g.pairs[k][1][0]][g.pairs[k][1][1]]
            t = tmp[n % len(tmp)]
            if a.kind == 'a':
                for u, tl in enumerate((a, b)):
                    for r in range(4):
                        P.append(I('v_accvgpr_read_b32 v%d, %s' % (t + 4 + 4 * u + r, tl.r(r))))
                src = [t + 4 + i for i in range(8)]
                d = t
            else:
                src = [a.base + i for i in range(4)] + [b.base + i for i in range(4)]
                d = a.base
            for r in range(4):
                P.append(I('v_cvt_pk_bf16_f32 v%d, v%d, v%d' % (d + r, src[2 * r], src[2 * r + 1])))
            if k >= 14:
                da = self.DA + 4 * dslot
                dslot += 1
                for r in range(4):
                    P.append(I('v_accvgpr_write_b32 a%d, v%d' % (da + r, d + r)))
                self.qloc[k] = Reg('a', da)
            else:
                self.qloc[k] = Reg('v', d)
        return P

    def stores(self):
        R = []
        for k in range(32):
            grp = []
            if k and k % 4 == 0:
                grp += L('s_add_u32 s%d, s%d, 4096' % (E0, E0), 's_add_u32 s%d, s%d, s%d' % (E0, E0, E3 if k % 8 == 0 else E2))
            grp.append(I('buffer_store_dwordx4 %s, v%d, s[%d:%d], s%d offen offset:%d %s' % (
                self.qloc[k].r(0, 4), VL16, OSRD, OSRD + 3, E0, (k % 4) * 1024, self.stflags), tag='kvst'))
            R.append(grp)
        return R


class QJ:
    QP = 136

    def __init__(self, sQB, sH, stflags=''):
        self.__dict__.update(locals())
        amap = {}
        for x in range(2):
            for p in range(8):
                amap[x, 2 * p], amap[x, 2 * p + 1] = self.QP + 4 * (x * 8 + p), ACC0 + 4 * (x * 8 + p)
        accs = [amap[x, w] for x in range(2) for w in range(16)]
        frags = [256 + 4 * i for i in range(36)]
        self.g = Gemm('q', 128, 256, 4, 1, 7, 'rowk', 896, 8192, True, 4, 3, SB, BANK[1], accs, frags, static=True, x0=2, rdpg=(1.25, 1.1), wmajor=True)
        assert self.g.vend <= BANK[1] + 30

    def prologue(self):
        g = self.g
        G = g.first_groups()
        return [G[0], G[2], G[1], G[3], G[4]]

    def setup(self):
        g = self.g
        return srd(SB['xsrd'], P_X, 2048 * 896) + L('s_mul_i32 s%d, s%d, %d' % (SB['xoff'], self.sQB, 128 * 896)) + g.setup_x() + \
            srd(SB['wsrd'], P_WQ, 448 * 8192) + L('s_lshl_b32 s%d, s%d, 9' % (SB['woff'], self.sH)) + g.setup_w()

    def pack(self):
        g = self.g
        P = L('v_mov_b32 v4, 0x%x' % f2u(LOG2E / 16))
        for x in range(2):
            for p in range(8):
                a, b = g.acc[x][2 * p].base, g.acc[x][2 * p + 1].base
                for r in (a, a + 2, b, b + 2):
                    P.append(I('v_pk_mul_f32 %s, %s, %s op_sel_hi:[1,0]' % (pr(r), pr(r), pr(4))))
                for i, r in enumerate((a, a + 2, b, b + 2)):
                    P.append(I('v_cvt_pk_bf16_f32 v%d, v%d, v%d' % (a + i, r, r + 1)))
        return P

    def store_setup(self, sbase, enable):
        P = srd(QSRD, P_WS, 16 * MB, off=WS_Q) + L(*enable) + L('s_cselect_b32 s%d, %d, 0' % (QSRD + 2, 16 * MB))
        P += L('s_lshl_b32 s%d, s%d, 2' % (sbase, self.sQB), 's_add_u32 s%d, s%d, s%d' % (sbase, sbase, WAVE), 's_lshl_b32 s%d, s%d, 14' % (sbase, sbase),
               's_lshl_b32 s%d, s%d, 20' % (U0, self.sH), 's_add_u32 s%d, s%d, s%d' % (sbase, sbase, U0))
        return P

    def stores(self, sbase):
        R = []
        for k in range(16):
            grp = L('s_add_u32 s%d, s%d, 4096' % (sbase, sbase)) if (k and k % 4 == 0) else []
            grp.append(I('buffer_store_dwordx4 v[%d:%d], v%d, s[%d:%d], s%d offen offset:%d %s' % (
                self.QP + 4 * k, self.QP + 4 * k + 3, VL16, QSRD, QSRD + 3, sbase, (k % 4) * 1024, self.stflags), tag='kvst'))
            R.append(grp)
        return R


GC0 = -2.0 * LOG2E * 0.7978845608028654
GC1 = GC0 * 0.044715


def gelu_regs(regs, vC0, vC1, tmps):
    P = []
    n = len(tmps)
    for i0 in range(0, len(regs), n):
        grp = list(zip(regs[i0:i0 + n], tmps))
        g2 = grp[0::2]
        P += [I('v_pk_mul_f32 %s, %s, %s' % (pr(t), pr(x), pr(x))) for x, t in g2]
        P += [I('v_pk_fma_f32 %s, %s, %s, %s' % (pr(t), pr(t), pr(vC1), pr(vC0))) for x, t in g2]
        P += [I('v_pk_mul_f32 %s, %s, %s' % (pr(t), pr(t), pr(x))) for x, t in g2]
        P += [I('v_exp_f32 v%d, v%d' % (t, t)) for x, t in grp]
        P += [I('v_pk_add_f32 %s, %s, 1.0 op_sel_hi:[1,0]' % (pr(t), pr(t))) for x, t in g2]
        P += [I('v_rcp_f32 v%d, v%d' % (t, t)) for x, t in grp]
        P += [I('v_pk_mul_f32 %s, %s, %s' % (pr(x), pr(x), pr(t))) for x, t in g2]
    return P


def gelu_consts(vC0, vC1):
    return L('v_mov_b32 v%d, 0x%x' % (vC0, f2u(GC0)), 'v_mov_b32 v%d, 0x%x' % (vC0 + 1, f2u(GC0)),
             'v_mov_b32 v%d, 0x%x' % (vC1, f2u(GC1)), 'v_mov_b32 v%d, 0x%x' % (vC1 + 1, f2u(GC1)))


def xlane_reduce(reg, tmp, op):
    return L('v_mov_b32 v%d, v%d' % (tmp, reg), 'v_permlane32_swap_b32 v%d, v%d' % (reg, tmp),
             '%s v%d, v%d, v%d' % (op, reg, reg, tmp),
             'v_mov_b32 v%d, v%d' % (tmp, reg), 'v_permlane16_swap_b32 v%d, v%d' % (reg, tmp),
             '%s v%d, v%d, v%d' % (op, reg, reg, tmp))


class Z2:
    XST = 104 * 1024
    RED = 65536 + 6144

    def __init__(self, sRB, stflags=''):
        self.__dict__.update(locals())
        self.A = [ACC0 + 4 * i for i in range(8)]
        self.TM = list(range(104, 112))
        self.ZP = 112
        self.ST = 224
        self.XF = 256 + 32
        g = self.g = Gemm('z', 64, 128, 1, 4, 49, 'rowk', 896, 3584, False, 7, 10, SB, BANK[1], self.A, [256 + 4 * i for i in range(8)],
                          mode='tile', static=True, xres=True, xbase=self.XST, wbase=0, rdpg=1)
        g.xfrag = lambda t, st, fi, x: uni(self.XF + 4 * (x * 14 + 2 * (t % 7) + fi))
        assert g.vend <= 58
        self.C0, self.C1 = 58, 60

    def wg(self, t):
        return self.g.group('W', t, wstep=(64 * 3584 if t % 7 != 6 else (256 - 6 * 64 * 3584) & 0xffffffff))

    def zq(self, c, p, w):
        return self.ZP + ((c * 2 + p) * 2 + w) * 4

    def post_chunk(self, c):
        P = []
        for x in range(4):
            regs = [self.A[x * 2 + w] + r for w in range(2) for r in range(4)]
            P += gelu_regs(regs, self.C0, self.C1, self.TM)
            for i in range(0, 8, 2):
                s1, s2 = self.ST + 4 * x + (i & 2), self.ST + 16 + 4 * x + (i & 2)
                P.append(I('v_pk_add_f32 %s, %s, %s' % (pr(s1), pr(s1), pr(regs[i]))))
                P.append(I('v_pk_fma_f32 %s, %s, %s, %s' % (pr(s2), pr(regs[i]), pr(regs[i]), pr(s2))))
                P.append(I('v_cvt_pk_bf16_f32 v%d, v%d, v%d' % (self.zq(c, x // 2, i // 4) + 2 * (x % 2) + (i & 2) // 2, regs[i], regs[i] + 1)))
        return P

    def run(self, between, nxt_queue):
        g = self.g
        P = srd(SB['wsrd'], P_WIN, 448 * 3584) + L('s_mov_b32 s%d, 1792' % SB['woff']) + g.setup_w() + items_code(self.wg(0))
        P += srd(SB['xsrd'], P_X, 2048 * 896) + L('s_mul_i32 s%d, s%d, %d' % (SB['xoff'], self.sRB, 64 * 896)) + g.setup_x()
        for t in range(7):
            P += items_code(g.group('X', t, tag='zX'))
        for t in range(1, 6):
            P += items_code(self.wg(t))
        P += between
        P += g.setup_read() + gelu_consts(self.C0, self.C1) + [I('v_mov_b32 v%d, 0' % (self.ST + i)) for i in range(32)]
        P += [need('zX', g.tag('W', 0)), I('s_barrier')]
        P += g.reads(0, range(2), 0)
        for t in range(7):
            for kk in range(2):
                for x in range(4):
                    P.append(I('ds_read_b128 %s, v%d offset:%d' % (g.xfrag(t, 0, kk, x).r(0, 4), g.aX[0][kk], t * 8192 + x * 2048)))
        P.append(STAMP(41))

        def Gf(t):
            own = []
            if t == 0:
                own = flat([self.wg(u) for u in range(6, 11)])
            elif 0 < t and t + 10 < 49:
                own = self.wg(t + 10)
            if t + 10 >= 49:
                own = graft(g, t, own, nxt_queue, 6)
            return own
        for t in range(49):
            c = t // 7
            early, _ = g.split(Gf(t))
            P += g.iter(t, [], early, zero=(t % 7 == 0), last=(t == 48),
                        tailcode=((self.post_chunk(c) if c < 6 else []) + [STAMP(42 + c)]) if t % 7 == 6 else [])
        return P

    def epi(self):
        g = self.g
        P = self.post_chunk(6)
        A = lambda x: P.append(I(x))
        ST = self.ST
        for sh in (8, 4, 2, 1):
            for i in range(32):
                A('v_add_f32_dpp v%d, v%d, v%d row_ror:%d row_mask:0xf bank_mask:0xf' % (ST + i, ST + i, ST + i, sh))
        P += L('v_lshrrev_b32 v2, 4, v0', 'v_lshlrev_b32 v2, 4, v2', 'v_add_u32 v2, %d, v2' % self.RED,
               's_lshl_b32 s%d, s%d, 9' % (U0, WAVE), 'v_add_u32 v3, s%d, v2' % U0)
        for i in range(8):
            A('ds_write_b128 v3, v[%d:%d] offset:%d' % (ST + 4 * i, ST + 4 * i + 3, 64 * i))
        P += L('s_waitcnt lgkmcnt(0)', 's_barrier')
        T = ACC0
        for i in range(8):
            A('ds_read_b128 v[%d:%d], v2 offset:%d' % (ST + 4 * i, ST + 4 * i + 3, 64 * i))
        for w in range(1, 4):
            for i in range(8):
                A('ds_read_b128 v[%d:%d], v2 offset:%d' % (T + 4 * i, T + 4 * i + 3, 512 * w + 64 * i))
            for i in range(0, 32, 2):
                A('v_pk_add_f32 %s, %s, %s' % (pr(ST + i), pr(ST + i), pr(T + i)))
        seqs = []
        for i in range(16):
            m, v = ST + i, ST + 16 + i
            seqs.append(L('v_mul_f32 v%d, 0x%x, v%d' % (m, f2u(1.0 / 896), m), 'v_mul_f32 v%d, 0x%x, v%d' % (v, f2u(1.0 / 896), v),
                          'v_fma_f32 v%d, -v%d, v%d, v%d' % (v, m, m, v), 'v_max_f32 v%d, 0, v%d' % (v, v),
                          'v_add_f32 v%d, 0x%x, v%d' % (v, f2u(1e-5), v), 'v_rsq_f32 v%d, v%d' % (v, v),
                          'v_mul_f32 v%d, -v%d, v%d' % (m, m, v)))
        for k in range(7):
            P += [q_[k] for q_ in seqs]
        P.append(STAMP(49))
        P += srd(OSRD, P_WS, 2048 * 1792, off=WS_Z2N)
        P += L('v_and_b32 v1, 15, v0', 'v_bfe_u32 v2, v0, 5, 1', 'v_bfe_u32 v3, v0, 4, 1', 'v_lshl_add_u32 v2, v3, 1, v2',
               'v_lshl_add_u32 v2, v2, 4, v1', 'v_lshlrev_b32 v5, 4, v2',
               's_mul_i32 s%d, s%d, %d' % (E0, self.sRB, 2 * 57344), 's_lshl_b32 s%d, s%d, 11' % (E1, WAVE),
               's_add_u32 s%d, s%d, s%d' % (E0, E0, E1))
        k = 0
        for c in range(7):
            for p in range(2):
                for w in range(2):
                    z = self.zq(c, p, w)
                    t = ACC0 + 8 * (k % 4)
                    k += 1
                    for r in range(4):
                        A('v_lshlrev_b32 v%d, 16, v%d' % (t + 2 * r, z + r))
                        A('v_and_b32 v%d, 0xffff0000, v%d' % (t + 2 * r + 1, z + r))
                    for r in range(4):
                        A('v_pk_fma_f32 %s, %s, %s, %s' % (pr(t + 2 * r), pr(t + 2 * r), pr(ST + 16 + 8 * p + 2 * r), pr(ST + 8 * p + 2 * r)))
                    for r in range(4):
                        A('v_cvt_pk_bf16_f32 v%d, v%d, v%d' % (z + r, t + 2 * r, t + 2 * r + 1))
                    A('v_permlane16_swap_b32 v%d, v%d' % (z, z + 2))
                    A('v_permlane16_swap_b32 v%d, v%d' % (z + 1, z + 3))
                    P += store4(z, 5, p * 57344 + c * 8192 + w * 1024, self.stflags)
        P.append(STAMP(50))
        return P


class GH:
    def __init__(self, sTB, sFB, stflags='', wfl=''):
        self.__dict__.update(locals())
        accs = [ACC0 + 4 * i for i in range(8)]
        g = self.g = Gemm('g', 128, 64, 2, 2, 39, 'rowk', 896, 3584, True, 6, 6, SA, BANK[0], accs, [256 + 4 * i for i in range(24)],
                          mode='tile', static=True, rdpg=1.15, wfl=wfl, x0=1, w0=3)
        v = g.vend
        self.vX2 = list(range(v, v + g.ndx))
        self.vW2 = [v + g.ndx]
        g.aWf = v + g.ndx + 1
        g.wfrag = lambda t: t >= 7
        assert v + g.ndx + g.ndw <= BANK[0] + 30
        self.Z, self.GA, self.bias, self.C0, self.C1, self.TM = 104, 200, 216, 220, 222, list(range(224, 232))
        self.GF = [144, 148] + [224 + 4 * i for i in range(8)] + [96 + 4 * i for i in range(4)]

    def grp(self, which, t, wait_z2=()):
        g = self.g
        if which == 'X':
            pre = (srd(SA['xsrd'], P_WSP, 8 * MB) + L('s_lshl_b32 s%d, s%d, 19' % (SA['xoff'], self.sTB))) if t == 7 else None
            return g.group('X', t, vregs=self.vX2 if t >= 7 else None, pre=pre)
        pre = (list(wait_z2) + srd(SA['wsrd'], P_WS, 2048 * 1792, off=WS_Z2N) + L('s_lshl_b32 s%d, s%d, 12' % (SA['woff'], self.sFB))) if t == 7 else None
        return g.group('W', t, vregs=self.vW2 if t >= 7 else None, wstep=64 * (1792 if t >= 7 else 3584), pre=pre)

    def prologue(self):
        g = self.g
        G = []
        for t in range(6):
            G += [self.grp('X', t), self.grp('W', t)]
        return [G[i] for i in (0, 1, 2, 3, 4, 5, 7, 9, 11, 6, 8, 10)]

    def side_loads(self, part):
        P = srd(AUX, P_GATE, 896) + L('v_lshrrev_b32 v1, 4, v0', 'v_lshlrev_b32 v1, 4, v1')
        for k in (range(10) if part == 0 else range(10, 14)):
            P.append(I('buffer_load_dwordx4 a[%d:%d], v1, s[4:7], 0 offen offset:%d' % (self.GF[k], self.GF[k] + 3, 64 * k)))
        if part == 0:
            return P
        P += srd(AUX, P_BSP, 4096) + self.g.wx_expr(U1)
        P += L('v_and_b32 v1, 15, v0', 's_lshl_b32 s%d, s%d, 7' % (U0, self.sTB), 's_lshl_b32 s%d, s%d, 6' % (U1, U1),
               's_add_u32 s%d, s%d, s%d' % (U0, U0, U1), 'v_add_lshl_u32 v1, s%d, v1, 1' % U0)
        for x in range(4):
            P.append(I('buffer_load_ushort v%d, v1, s[4:7], 0 offen offset:%d' % (self.bias + x, x * 32)))
        return P

    def setup(self):
        g = self.g
        return srd(SA['xsrd'], P_X, 2048 * 896) + L('s_mul_i32 s%d, s%d, %d' % (SA['xoff'], self.sTB, 128 * 896)) + g.setup_x() + \
            srd(SA['wsrd'], P_WIN, 448 * 3584) + L('s_lshl_b32 s%d, s%d, 7' % (SA['woff'], self.sFB)) + g.setup_w()

    def prep(self):
        g = self.g
        W = L('s_lshr_b32 s%d, s%d, 1' % (U0, WAVE), 's_mul_i32 s%d, s%d, 57344' % (U1, U0), 's_lshl_b32 s%d, s%d, 11' % (U0, U0),
              's_add_u32 s%d, s%d, %d' % (U0, U0, g.wbase), 'v_add_u32 v%d, s%d, v%d' % (g.aWf, U0, VL16),
              's_and_b32 s%d, s%d, 1' % (U0, WAVE), 's_lshl_b32 s%d, s%d, 11' % (U0, U0), 's_add_u32 s%d, s%d, s%d' % (U0, U0, U1),
              'v_add_u32 v%d, s%d, v%d' % (self.vW2[0], U0, VL16))
        return g.setup_read() + g.voff_x(self.vX2, 4096) + W

    def gate_mf(self, t):
        g = self.g
        R = []
        for kk in range(2):
            gf = self.GF[2 * t + kk]
            for x in range(4):
                c = 'v[%d:%d]' % (self.GA + 4 * x, self.GA + 4 * x + 3)
                R.append(I('%s %s, a[%d:%d], %s, %s' % (MF, c, gf, gf + 3, g.fX[t % 2][kk][x].r(0, 4), '0' if (t == 0 and kk == 0) else c)))
        return R

    def switch(self):
        g = self.g
        P = gelu_consts(self.C0, self.C1)
        acc = [g.acc[x][w].base + r for x in range(4) for w in range(2) for r in range(4)]
        P += gelu_regs(acc, self.C0, self.C1, self.TM)
        for k in range(5):
            for x in range(4):
                a = self.GA + 4 * x
                P.append(I(['v_mul_f32 v%d, 0x%x, v%d' % (a, f2u(-LOG2E), a), 'v_exp_f32 v%d, v%d' % (a, a), 'v_add_f32 v%d, 1.0, v%d' % (a, a),
                            'v_rcp_f32 v%d, v%d' % (a, a), 'v_sub_f32 v%d, 1.0, v%d' % (a + 2, a)][k]))
        for i in range(0, 32, 2):
            P.append(I('v_pk_mul_f32 %s, %s, %s op_sel_hi:[1,0]' % (pr(self.Z + i), pr(acc[i]), pr(self.GA + 4 * (i // 8) + 2))))
        P += g.ww_expr(U1) + L('s_or_b32 s%d, s%d, s%d' % (U1, U1, self.sFB), 's_cmp_lg_u32 s%d, 0' % U1, 's_cbranch_scc1 gh_ng')
        P += srd(AUX, P_WS, 8192, off=WS_G) + g.wx_expr(U1)
        P += L('s_lshl_b32 s%d, s%d, 1' % (U0, self.sTB), 's_add_u32 s%d, s%d, s%d' % (U0, U0, U1), 's_lshl_b32 s%d, s%d, 8' % (U0, U0),
               'v_and_b32 v1, 15, v0', 'v_lshlrev_b32 v1, 2, v1')
        for x in range(4):
            P.append(I('buffer_store_dword v%d, v1, s[4:7], s%d offen offset:%d %s' % (self.GA + 4 * x, U0, x * 64, self.stflags), tag='gst'))
        P += L('gh_ng:')
        return P

    def epi(self):
        g = self.g
        P = srd(OSRD, P_WS, HC_SIZE, off=WS_HC) + g.wx_expr(E1)
        P += L('s_lshl_b32 s%d, s%d, 1' % (E0, self.sTB), 's_add_u32 s%d, s%d, s%d' % (E0, E0, E1),
               's_mul_i32 s%d, s%d, %d' % (E0, E0, 4 * HC_KS), 's_lshl_b32 s%d, s%d, 1' % (E1, self.sFB),
               's_add_u32 s%d, s%d, s%d' % (E0, E0, E1))
        P += g.ww_expr(E1) + L('s_add_u32 s%d, s%d, s%d' % (E0, E0, E1), 's_lshl_b32 s%d, s%d, 10' % (E0, E0))
        for x in range(4):
            P.append(I('v_lshlrev_b32 v%d, 16, v%d' % (self.C0, self.bias + x)))
            a = g.acc[x][0].base
            for r in range(0, 8, 2):
                P += L('v_pk_add_f32 %s, %s, %s op_sel_hi:[1,0]' % (pr(a + r), pr(a + r), pr(self.C0)),
                       'v_pk_mul_f32 %s, %s, %s' % (pr(a + r), pr(a + r), pr(self.Z + x * 8 + r)))
            for r in range(4):
                P.append(I('v_cvt_pk_bf16_f32 v%d, v%d, v%d' % (a + r, a + 2 * r, a + 2 * r + 1)))
            P += store4(a, VL16, x * HC_RB, self.stflags)
        return P


WS_XP = 84 * MB


class FIN:
    NH = 4

    def __init__(self, sTB, sMB, sS, S=SA, vbase=BANK[0], xfl=''):
        self.__dict__.update(locals())
        self.AC = 128
        self.g = Gemm('f', 128, 128, 2, 2, 20, 'frag', HC_RB, 896, True, 5, 5, S, vbase, [self.AC + 4 * i for i in range(16)],
                      [256 + 4 * i for i in range(32)], BK=64, kperm=True, mode='tile', static=True, rdpg=1, xfl=xfl)

    def grp(self, which, t):
        S = self.S
        pre = None
        if which == 'W' and t == self.NH:
            pre = srd(S['wsrd'], P_WO, 4096 * 896) + L('s_mul_i32 s%d, s%d, %d' % (S['woff'], self.sS, 1024 * 896),
                                                       's_lshl_b32 s%d, s%d, 8' % (T3, self.sMB), 's_add_u32 s%d, s%d, s%d' % (S['woff'], S['woff'], T3))
        if which == 'X' and t == 2:
            pre = L('s_cmp_eq_u32 s%d, 3' % self.sS, 's_cselect_b32 s%d, 0, s%d' % (S['xsrd'] + 2, S['xsrd'] + 2))
        if which == 'X' and t == self.NH:
            pre = L('s_mov_b32 s%d, %d' % (S['xsrd'] + 2, HC_SIZE), 's_mul_i32 s%d, s%d, %d' % (S['xoff'], self.sTB, 8 * HC_RB),
                    's_lshl_b32 s%d, s%d, 15' % (T3, self.sS), 's_add_u32 s%d, s%d, s%d' % (S['xoff'], S['xoff'], T3),
                    's_add_u32 s%d, s%d, %d' % (S['xoff'], S['xoff'], 28 * 1024))
        return self.g.group(which, t, pre=pre)

    def prologue(self):
        G = []
        for t in range(5):
            G += ([self.grp('X', t)] if t < self.NH else []) + [self.grp('W', t)]
        return G

    def setup(self):
        g, S = self.g, self.S
        return srd(S['xsrd'], P_WS, HC_SIZE, off=WS_HC) + L('s_mul_i32 s%d, s%d, %d' % (S['xoff'], self.sTB, 8 * HC_RB),
                                                            's_lshl_b32 s%d, s%d, 13' % (T3, self.sS),
                                                            's_add_u32 s%d, s%d, s%d' % (S['xoff'], S['xoff'], T3)) + g.setup_x() + \
            srd(S['wsrd'], P_WOUT, 896 * 896) + L('s_mul_i32 s%d, s%d, %d' % (S['woff'], self.sS, 256 * 896),
                                                  's_lshl_b32 s%d, s%d, 8' % (T3, self.sMB),
                                                  's_add_u32 s%d, s%d, s%d' % (S['woff'], S['woff'], T3)) + g.setup_w() + g.setup_read()

    def loop(self, hooks={}):
        NH = self.NH

        def Gf(t):
            if t < 0 or t + 5 >= 20:
                return []
            return self.grp('W', t + 5) + (self.grp('X', t + 5) if t + 5 >= NH + 5 else [])

        def opts(t):
            kw = dict(zero=(t == 0))
            kw.update(hooks.get(t, {}))
            if t == NH - 1:
                kw['last'] = True
                kw['tailcode'] = kw.get('tailcode', []) + items_code(flat([self.grp('X', u) for u in range(NH, NH + 5)])) + \
                    [need(self.g.tag('X', NH), self.g.tag('W', NH)), I('s_barrier')] + self.g.reads(NH, range(2), NH % 2)
            return kw
        P, _ = run_static(self.g, 'fin', CNT, Gf, opts=opts)
        return P

    def epi(self, end):
        g = self.g
        A = lambda x: P.append(I(x))
        grp_ = L('s_lshl_b32 s%d, s%d, 2' % (T0, self.sTB), 's_add_u32 s%d, s%d, s%d' % (T0, T0, self.sMB))
        P = srd(OSRD, P_WS, 64 * 16 * 8192, off=WS_XP) + grp_
        P += L('s_lshl_b32 s%d, s%d, 2' % (E0, T0), 's_add_u32 s%d, s%d, s%d' % (E0, E0, self.sS), 's_lshl_b32 s%d, s%d, 2' % (E0, E0),
               's_add_u32 s%d, s%d, s%d' % (E0, E0, WAVE), 's_lshl_b32 s%d, s%d, 2' % (T1, E0), 's_add_u32 s%d, s%d, %d' % (T1, T1, FL_X),
               's_lshl_b32 s%d, s%d, 13' % (E0, E0))
        for x in range(4):
            for p in range(2):
                a, b = g.acc[x][2 * p].base, g.acc[x][2 * p + 1].base
                for i, r in enumerate((a, a + 2, b, b + 2)):
                    A('v_cvt_pk_bf16_f32 v%d, v%d, v%d' % (a + i, r, r + 1))
                P += store4(a, VL16, (x * 2 + p) * 1024, 'sc1')
        P += L('s_lshl_b32 s%d, s%d, 6' % (T2, T0), 's_lshl_b32 s%d, s%d, 2' % (T3, WAVE), 's_add_u32 s%d, s%d, s%d' % (T2, T2, T3),
               's_add_u32 s%d, s%d, %d' % (T2, T2, FL_X), 'v_and_b32 v8, 3, v0', 'v_lshlrev_b32 v8, 4, v8', 'v_add_u32 v8, s%d, v8' % T2,
               's_lshl_b32 s%d, s%d, 4' % (E0, T0), 's_add_u32 s%d, s%d, s%d' % (E0, E0, WAVE), 's_lshl_b32 s%d, s%d, 13' % (E0, E0),
               's_lshl_b32 s%d, s%d, 11' % (T3, self.sS), 's_add_u32 s%d, s%d, s%d' % (E0, E0, T3),
               'v_and_b32 v2, 15, v0', 'v_mul_u32_u24 v2, 896, v2', 'v_bfe_u32 v3, v0, 4, 1', 'v_lshl_add_u32 v2, v3, 5, v2',
               'v_lshrrev_b32 v3, 5, v0', 'v_lshl_add_u32 v5, v3, 4, v2',
               's_waitcnt vmcnt(0)')
        P += signal(None, T1, only_wave0=False) + [STAMP(55)]
        P += g.ww_expr(T3) + L('s_lshl_b32 s%d, s%d, 1' % (T1, self.sMB), 's_add_u32 s%d, s%d, s%d' % (T1, T1, T3),
                               's_cmp_ge_u32 s%d, 7' % T1, 's_cbranch_scc1 %s' % end)
        P += [poll_load(8, 9)] + poll_check('wx', 8, 9, 1) + [STAMP(56)]
        for sp in range(4):
            if sp:
                A('s_add_u32 s%d, s%d, 32768' % (E0, E0))
            for p in range(2):
                d = 16 + (sp * 2 + p) * 4
                A('buffer_load_dwordx4 v[%d:%d], v%d, s[%d:%d], s%d offen offset:%d sc1' % (d, d + 3, VL16, OSRD, OSRD + 3, E0, p * 1024))
        P += srd(AUX, P_OUT, 2048 * 896) + g.wx_expr(T3)
        P += L('s_lshl_b32 s%d, s%d, 1' % (E0, self.sTB), 's_add_u32 s%d, s%d, s%d' % (E0, E0, T3), 's_lshl_b32 s%d, s%d, 2' % (E0, E0),
               's_add_u32 s%d, s%d, s%d' % (E0, E0, self.sS), 's_mul_i32 s%d, s%d, %d' % (E0, E0, 16 * 896),
               's_lshl_b32 s%d, s%d, 7' % (T1, T1), 's_add_u32 s%d, s%d, s%d' % (E0, E0, T1))
        for p in range(2):
            acc = 64 + 8 * p
            for sp in range(4):
                d = 16 + (sp * 2 + p) * 4
                t = acc if sp == 0 else 48
                for r in range(4):
                    A('v_lshlrev_b32 v%d, 16, v%d' % (t + 2 * r, d + r))
                    A('v_and_b32 v%d, 0xffff0000, v%d' % (t + 2 * r + 1, d + r))
                if sp:
                    for r in range(4):
                        A('v_pk_add_f32 %s, %s, %s' % (pr(acc + 2 * r), pr(acc + 2 * r), pr(t + 2 * r)))
            for r in range(4):
                A('v_cvt_pk_bf16_f32 v%d, v%d, v%d' % (acc + r, acc + 2 * r, acc + 2 * r + 1))
            A('v_permlane16_swap_b32 v%d, v%d' % (acc, acc + 2))
            A('v_permlane16_swap_b32 v%d, v%d' % (acc + 1, acc + 3))
            P += store4(acc, 5, p * 64, srd_=AUX)
        return P


WS_FL = 96 * MB
FL_GRP, FL_G, FL_TB, FL_PAIR, FL_H, FL_X, FL_SIZE = 0, 1024, 1152, 2176 + 128, 4352 + 128, 8704, 16384
FSRD = 0


def flag_srd():
    return srd(FSRD, P_WS, FL_SIZE, off=WS_FL)


def z2_signal(lab):
    return L('s_cmp_lg_u32 s%d, 0' % WAVE, 's_cbranch_scc1 %s_ns' % lab, 'v_mov_b32 v1, 0', 'v_mov_b32 v2, 1', 's_mov_b64 exec, 1',
             'global_atomic_add v1, v2, s[%d:%d]' % (P_DBG, P_DBG + 1), 's_mov_b64 exec, -1', lab + '_ns:')


def signal(lab, off_sreg, only_wave0=True, va=1, vb=2):
    P = L('s_cmp_lg_u32 s%d, 0' % WAVE, 's_cbranch_scc1 %s_ns' % lab) if only_wave0 else []
    P += L('v_mov_b32 v%d, 0' % va, 'v_mov_b32 v%d, 1' % vb, 's_mov_b64 exec, 1',
           'buffer_store_dword v%d, v%d, s[%d:%d], s%d offen sc1' % (vb, va, FSRD, FSRD + 3, off_sreg), 's_mov_b64 exec, -1')
    return P + (L(lab + '_ns:') if only_wave0 else [])


def poll_load(vaddr, vdst, dbg=False):
    if dbg:
        return I('global_load_dword v%d, v%d, s[%d:%d] sc1' % (vdst, vaddr, P_DBG, P_DBG + 1))
    return I('buffer_load_dword v%d, v%d, s[%d:%d], 0 offen sc1' % (vdst, vaddr, FSRD, FSRD + 3))


def poll_check(lab, vaddr, vdst, tgt, sc=U1, maxit=400000, dbg=False):
    return L('s_mov_b32 s%d, 0' % sc, lab + '_chk:', 'v_cmp_le_u32 vcc, %d, v%d' % (tgt, vdst),
             's_cmp_eq_u64 vcc, -1', 's_cbranch_scc1 %s_ok' % lab,
             's_add_u32 s%d, s%d, 1' % (sc, sc), 's_cmp_ge_u32 s%d, %d' % (sc, maxit), 's_cbranch_scc1 %s_ok' % lab,
             's_sleep 1') + [poll_load(vaddr, vdst, dbg)] + L('s_waitcnt vmcnt(0)', 's_branch %s_chk' % lab, lab + '_ok:')


def lanes_addr(vaddr, base_s, first, count, tmp):
    return L('v_min_u32 v%d, %s, v0' % (tmp, count - 1 if isinstance(count, int) else count), 'v_lshlrev_b32 v%d, 2, v%d' % (tmp, tmp),
             'v_add_u32 v%d, s%d, v%d' % (vaddr, base_s, tmp)) + (L('v_add_u32 v%d, %d, v%d' % (vaddr, 4 * first, vaddr)) if first else [])
```

```python
import sys, json
from asmlib import *
from engine import *
from jobs import *
import attn

HDR = open('gated_mix__compressed_kv_cla__mixer_gmlp__prompt.s.ref').read().split('; Override')[0]

sPF = 87
sID = 52


def relabel(Q, tag):
    return [I(x.text.replace('@', tag)) if '@' in x.text else x for x in Q]


def pf_switch(ptr, size, n):
    return srd(AUX, ptr, size) + L('s_lshl_b32 s%d, s%d, 2' % (sPF, sID), 's_add_u32 s%d, s%d, s%d' % (sPF, sPF, WAVE),
                                   's_mul_i32 s%d, s%d, %d' % (sPF, sPF, n * 1024))


def pf_load(dst, soff, o):
    d = I('buffer_load_dwordx4 %s, v%d, s[4:7], s%d offen offset:%d' % (dst, VL16, soff, o))
    d.wr = {'tag:pf'}
    return d


def mega(name, opt):
    st = opt.get('st', 'sc1')
    ld = opt.get('ld', 'sc1')
    npf = opt.get('npf', 1)
    PF = [(P_WQ, 448 * 8192, 4), (P_WSP, 8 * MB, 8)]
    sSB, sH, sKV, sIDX, sTB, sFB, sFl, sQst = 70, 71, 72, 73, 82, 83, 100, 101
    attn.EXP['ldflags'] = ld
    end = 'L_end_' + name
    P = entry(256, end)
    if opt.get('cpf', 1):
        P += L('s_getpc_b64 s[4:5]', 'L_pc:', 's_lshr_b32 s6, s2, 3', 's_lshl_b32 s6, s6, 2', 's_add_u32 s6, s6, s%d' % WAVE,
               's_lshl_b32 s6, s6, 10', 'v_add_u32 v1, s6, v%d' % VL16, 's_mov_b32 s7, L_codeend-L_pc-16')
        for k in range(2):
            P += L('v_min_u32 v2, s7, v1')
            d = I('global_load_dwordx4 v[%d:%d], v2, s[4:5]' % (MISC, MISC + 3))
            d.wr = {'tag:pf'}
            P += [d] + L('v_add_u32 v1, 131072, v1')
    P += L('s_and_b32 s3, s2, 7', 's_lshr_b32 s%d, s2, 3' % sIDX, 's_lshr_b32 s%d, s%d, 2' % (sSB, sIDX),
           's_and_b32 s%d, s%d, 1' % (sKV, sIDX), 's_bfe_u32 s6, s%d, 0x10001' % sIDX, 's_lshl_b32 s%d, s3, 1' % sH,
           's_add_u32 s%d, s%d, s6' % (sH, sH),
           's_lshr_b32 s%d, s3, 1' % sTB, 's_lshl_b32 s%d, s%d, 2' % (sTB, sTB), 's_and_b32 s6, s%d, 3' % sIDX,
           's_add_u32 s%d, s%d, s6' % (sTB, sTB),
           's_and_b32 s6, s3, 1', 's_mul_i32 s6, s6, 7', 's_min_u32 s%d, s%d, 6' % (sFB, sSB), 's_add_u32 s%d, s%d, s6' % (sFB, sFB),
           's_lshl_b32 s%d, s3, 7' % sFl, 's_mov_b32 s%d, s2' % sID)
    P += attn.decode()
    P += L('s_waitcnt lgkmcnt(0)') + flag_srd()
    z2 = Z2(sQst, stflags=st)
    kv = KV(sSB, sH, sKV, stflags=st)
    q = QJ(attn.sOwn, attn.sH, stflags=st)
    gh = GH(sTB, sFB, stflags=st, wfl=opt.get('ghld', ld))
    if 'ghrd' in opt:
        gh.g.rdpg = opt['ghrd']
    vPA, vPD, vPZA, vPZ = MISC, MISC + 1, MISC + 2, MISC + 3
    sWG = 29
    addr_k = lanes_addr(vPA, sFl, 0, 28, vPD) + L('v_and_b32 v%d, 15, v0' % vPD, 'v_lshlrev_b32 v%d, 2, v%d' % (vPD, vPD),
                                                   'v_add_u32 v%d, %d, v%d' % (vPD, FL_G, vPD), 'v_cmp_gt_u32 vcc, 32, v0',
                                                   'v_cndmask_b32 v%d, v%d, v%d, vcc' % (vPA, vPD, vPA))
    own_flag = lambda d: L('s_lshl_b32 s%d, s%d, 2' % (d, sIDX), 's_add_u32 s%d, s%d, s%d' % (d, d, sFl))
    a10, a11 = attn.vT[10], attn.vT[11]
    attn.LATE_CHECK[:] = lanes_addr(a10, sFl, 28, 4, a11) + [poll_load(a10, a11)] + poll_check('@_l', a10, a11, 1, sc=attn.t1)

    if npf:
        R = L('s_cmp_eq_u32 s%d, 0' % sPF, 's_cbranch_scc1 a_nopf')
        for ptr, size, n in ((P_WO, 4096 * 896, 4), (P_WOUT, 896 * 896, 1)):
            R += pf_switch(ptr, size, n) + [pf_load('a[252:255]', sPF, i * 1024) for i in range(n)]
        attn.HEAD_EXTRA[:] = R + L('s_mov_b32 s%d, 0' % sPF, 'a_nopf:')

    def win_prefetch(dst):
        if not npf:
            return []
        R = pf_switch(P_WIN, 448 * 3584, 2) + [pf_load(dst, sPF, 0), pf_load(dst, sPF, 1024)]
        R += srd(AUX, P_CKV, 4 * MB) + L('s_lshl_b32 s%d, s%d, 2' % (U0, sID), 's_add_u32 s%d, s%d, s%d' % (U0, U0, WAVE),
                                         's_lshl_b32 s%d, s%d, 10' % (U0, U0), 's_add_u32 s%d, s%d, %d' % (U0, U0, 7 * 524288))
        R.append(pf_load(dst, U0, 0))
        return R

    g = kv.g
    pfi = lambda: [Item([], pf_load('v[%d:%d]' % (MISC, MISC + 3), sPF, i * 1024),
                        [L('s_add_u32 s%d, s%d, %d' % (sPF, sPF, npf * 1024))] if i == npf - 1 else [], (0, 0)) for i in range(npf)]
    vWP = BANK[0] + 28
    wpd = opt.get('wpd', 2)

    def wpf(dist):
        d = I('buffer_load_dwordx4 v[%d:%d], v%d, s[%d:%d], s%d offen' % (MISC, MISC + 3, vWP, SA['wsrd'], SA['wsrd'] + 3, E1))
        d.wr = {'tag:pf'}
        return Item(L('s_add_u32 s%d, s%d, %d' % (E1, SA['woff'], dist * 64 * 8192)), d, [], (0, 0))
    wp_setup = L('s_lshl_b32 s%d, s%d, 2' % (U0, sSB), 's_add_u32 s%d, s%d, s%d' % (U0, U0, WAVE), 's_lshl_b32 s%d, s%d, 14' % (U0, U0),
                 'v_lshrrev_b32 v1, 5, v0', 'v_lshlrev_b32 v1, 13, v1', 'v_and_b32 v2, 31, v0', 'v_lshl_add_u32 v1, v2, 4, v1',
                 'v_add_u32 v%d, s%d, v1' % (vWP, U0))
    kvG = lambda gg, t: gg.G(t) + pfi() + ([wpf(wpd)] if wpd else [])
    early_m1, late_m1 = g.split(kvG(g, -1))
    assert len(early_m1) <= 14, len(early_m1)
    kv_mid = g.setup_read() + kv.g2[0].zero_acc()
    P += L('s_cmp_ge_u32 s%d, 28' % sIDX, 's_cbranch_scc1 L_roleZ')
    wp0 = (wp_setup + items_code([wpf(k) for k in range(wpd)])) if wpd else []
    P += items_code(flat(kv.prologue())) + items_code([it for it, p in early_m1]) + wp0 + win_prefetch('v[%d:%d]' % (MISC, MISC + 3))
    PG = P
    P = L('L_roleZ:', 's_lshr_b32 s%d, s%d, 5' % (sQst, sFl), 's_and_b32 s6, s%d, 3' % sIDX, 's_add_u32 s%d, s%d, s6' % (sQst, sQst))
    P += L('s_cmp_lg_u32 s%d, 224' % sID, 's_cbranch_scc1 L_noclr', 's_lshl_b32 s%d, s%d, 12' % (U0, WAVE))
    P += L(*['v_mov_b32 v%d, 0' % (ACC0 + i) for i in range(4)])
    P += L(*['buffer_store_dwordx4 v[%d:%d], v%d, s[0:3], s%d offen offset:%d sc1' % (ACC0, ACC0 + 3, VL16, U0, o) for o in (0, 1024, 2048, 3072)])
    P += L('L_noclr:')
    kp = kv.prologue()
    queue = kp[0] + kp[2] + kp[1]
    P += z2.run(pf_switch(P_WIN, 448 * 3584, 2) + [pf_load('v[68:71]', sPF, 0), pf_load('v[68:71]', sPF, 1024)], queue) + [STAMP(9)]
    P += items_code(queue) + items_code([it for it, p in g.split(kvG(g, -1))[0]]) + z2.epi() + (wp_setup if wpd else [])
    PZ = P + L('s_branch L_kv')
    P = PG + L('L_kv:') + kv_mid + g.start()
    hooks = {}
    if npf:
        it = 0
        for k, (ptr, size, n) in enumerate(PF):
            if k:
                hooks[it] = pf_switch(ptr, size, n)
            else:
                P += pf_switch(ptr, size, n)
            it += n // npf
        hooks[it] = L('s_mov_b32 s6, 0')
        assert it <= 13
    hooks[2] = hooks.get(2, []) + L('s_cmp_lt_u32 s%d, 28' % sIDX, 's_cbranch_scc1 @_nz') + z2_signal('@') + L('@_nz:')
    P += L('s_mov_b32 s%d, 0' % CNT) + [STAMP(0)]
    P += L('s_cmp_eq_u32 s%d, 1' % sKV, 's_cbranch_scc1 L_V')
    ool = []
    qg = q.g
    for vi, gg in enumerate(kv.g2):
        lab = 'kv%d' % vi
        if vi:
            P += L('L_V:')
        early, late = gg.split(kvG(gg, 0))
        tc = L('s_add_u32 s%d, s%d, 1' % (CNT, CNT), 's_branch %s_hk' % lab, '%s_hr:' % lab, 's_cmp_lt_u32 s%d, 13' % CNT, 's_cbranch_scc1 %s' % lab)
        P += L(lab + ':') + gg.iter(0, late, early, tailcode=tc)
        ool += L('%s_hk:' % lab)
        for cval, ins in sorted(hooks.items()):
            ool += L('s_cmp_lg_u32 s%d, %d' % (CNT, cval), 's_cbranch_scc1 %s_n%d' % (lab, cval)) + relabel(ins, lab) + L('s_branch %s_hr' % lab, '%s_n%d:' % (lab, cval))
        ool += L('s_branch %s_hr' % lab)
        late = gg.split(kvG(gg, 12))[1]
        qe, qlate = qg.split(qg.G(-1))
        queue = flat(q.prologue()) + [it for it, p in qe]
        for t in range(13, 16):
            early, nl = gg.split(graft(gg, t, gg.G(t), queue, 18))
            ex = {13: q.setup(), 14: qg.setup_read()}.get(t, [])
            P += gg.iter(t, late, early, last=(t == 15), extra=ex, xg=(0, 62) if t == 13 else None)
            late = nl
        P += [STAMP(1)] + items_code([it for it, p in late] + queue)
        P += kv.pack(vi == 0, [BANK[0], BANK[0] + 12])
        if vi == 0:
            P += L('s_branch L_q')
    kst = kv.stores()
    P += L('L_q:', 's_cmp_lt_u32 s%d, 28' % sIDX, 's_cbranch_scc1 L_q2') + flat(kv.stores()) + L('s_mov_b32 s%d, 0' % (OSRD + 2), 'L_q2:')
    P += qg.start() + [STAMP(10)]
    if opt.get('nost'):
        kst = [[x for x in g_ if x.kind != 'vst'] or [I('s_nop 0')] for g_ in kst]
    queue = flat(gh.prologue())
    nq = opt.get('nqst', 2)

    def q_opts(t):
        ex = kst[nq * t:nq * t + nq]
        if t == 1:
            ex = ex + gh.setup()
        if t == 2:
            ex = ex + gh.prep()
        if t == 4:
            ex = ex + [gh.side_loads(0)]
        return dict(zero=(t == 0), extra=ex, tailcode=[STAMP(12 + t)])
    C, left = run_static(qg, 'q', CNT, lambda t: graft(qg, t, qg.G(t), queue, 14) if t >= 0 else qg.G(t), opts=q_opts)
    P += C + [STAMP(2)] + items_code(left + queue)
    rest = kst[7 * nq:]
    assert 7 * nq >= KV.NV
    P += q.pack()
    P += q.store_setup(sQst, ['s_cmp_eq_u32 s%d, 2' % attn.sMode])
    rest = rest + (q.stores(sQst) if not opt.get('nost') else [])
    P += L('s_cmp_ge_u32 s%d, 28' % sIDX, 's_cbranch_scc1 L_roleZ2')
    gg = gh.g
    P += L('v_mov_b32 v%d, 0' % vPZA) + [poll_load(vPZA, vPZ, True)] + gh.side_loads(1) + gg.start() + [STAMP(11)]
    S0 = 2
    sl = attn.seg_loads(True)
    rngs = [((S0 + k) % 5 * 32768, ((S0 + k) % 5 + 1) * 32768) for k in range(5)]
    aq = attn.as_items(sl[0], rngs[0]) + attn.as_items(sl[2], rngs[1]) + attn.as_items(sl[3], rngs[2]) + \
        attn.as_items(sl[4], rngs[3]) + attn.as_items(sl[5], rngs[4])
    with_pre(aq, attn.kernel_setup(S0) + attn.gate_load(attn.sOwn, 232))
    aq[7].post = aq[7].post + [L('s_cmp_lg_u32 s%d, 1' % attn.sMode, 's_cbranch_scc1 L_noq') + sl[1][0] + L('L_noq:')]
    oq = attn.own_q(QJ.QP)
    ng = opt.get('ngst', 3)
    tsig = -(-len(rest) // ng) + opt.get('sigd', 5)
    if tsig == 12:
        tsig = 13

    def ghG(t):
        if t < 0:
            return []
        if t + 6 < 39:
            return gh.grp('W', t + 6, poll_check('wz', vPZA, vPZ, 32, dbg=True)) + gh.grp('X', t + 6)
        return graft(gg, t, [], aq, 8) if t >= 34 else []

    def gh_opts(t):
        kw = dict(zero=(t in (0, 7)), extra=rest[ng * t:ng * t + ng])
        tc = []
        if 23 <= t < 33:
            kw['extra'] = oq[13 * (t - 23):13 * (t - 22)]
        if t < 7:
            kw['extra_mf'] = gh.gate_mf(t)
        if t == 6:
            tc = gh.switch()
        if t == 12:
            kw['needs'] = [gg.tag('W', t + 1), gg.tag('X', t + 1), 'gst']
            tc = L('s_cmp_lg_u32 s%d, 0' % sFB, 's_cbranch_scc1 gs_n', 's_lshl_b32 s%d, s%d, 2' % (U0, sTB),
                   's_add_u32 s%d, s%d, %d' % (U0, U0, FL_G)) + signal('gs', U0) + L('gs_n:')
        if t == tsig:
            kw['needs'] = [gg.tag('W', t + 1), gg.tag('X', t + 1), 'kvst']
            tc = own_flag(U0) + signal('ks', U0)
        if t == 30:
            tc = addr_k + [poll_load(vPA, vPD)]
        if t == 33:
            tc = poll_check('wk', vPA, vPD, 1)
        if t < 14 or t % 4 == 1:
            tc = tc + [STAMP(20 + (t if t < 14 else 14 + (t - 14) // 4))]
        kw['tailcode'] = tc
        return kw
    assert tsig not in (6, 12, 30, 33) and tsig <= 23
    C, left = run_static(gg, 'gh', CNT, ghG, opts=gh_opts)
    P += C + [STAMP(3)] + items_code(left + aq)
    P += gh.epi()
    P += L('v_mov_b32 v%d, v232' % attn.Gv[0], 'v_mov_b32 v%d, v233' % attn.Gv[1])
    P += L('s_lshl_b32 s%d, s%d, 4' % (U0, sTB), 's_add_u32 s%d, s%d, s%d' % (U0, U0, sFB), 's_lshl_b32 s%d, s%d, 2' % (U0, U0),
           's_add_u32 s%d, s%d, s%d' % (U0, U0, WAVE), 's_lshl_b32 s%d, s%d, 2' % (U0, U0), 's_add_u32 s%d, s%d, %d' % (attn.sPend, U0, FL_H))
    P += [need('aK0')] + [I('', needs=['a%d' % (attn.Qa + i) for i in range(64)])] + L('s_branch L_seg')
    P += L('L_roleZ2:', 'v_mov_b32 v%d, 0' % vPZA) + [poll_load(vPZA, vPZ, True)] + L('s_waitcnt vmcnt(0)', 's_barrier')
    P += poll_check('wzz', vPZA, vPZ, 32, dbg=True) + own_flag(U0) + signal('kz', U0)
    P += addr_k + [poll_load(vPA, vPD)] + poll_check('wkz', vPA, vPD, 1)
    sl = attn.seg_loads(None)
    P += attn.kernel_setup() + attn.gate_load(attn.sOwn, attn.Gv[0]) + flat(flat(sl))
    P += attn.own_q(QJ.QP)[:64] + [need('aK0')]
    fin = FIN(70, 71, 72, vbase=84, xfl=ld)
    assert fin.g.vend <= 112
    vFA, vFD = 114, 115
    t0_, t1_ = attn.t0, attn.t1
    ctx_flag = L('s_lshl_b32 s%d, s%d, 4' % (U0, attn.sOwn), 's_add_u32 s%d, s%d, s%d' % (U0, U0, attn.sH), 's_lshl_b32 s%d, s%d, 2' % (U0, U0),
                 's_add_u32 s%d, s%d, %d' % (U0, U0, FL_TB))
    attn.PRE_FIN[:] = L('s_lshr_b32 s72, s%d, 8' % sFl, 's_bfe_u32 s70, s%d, 0x10007' % sFl, 's_lshl_b32 s70, s70, 3',
                        's_lshr_b32 s71, s%d, 2' % sIDX, 's_add_u32 s70, s70, s71', 's_and_b32 s71, s%d, 3' % sIDX,
                        's_lshl_b32 s%d, s70, 8' % t0_, 's_lshl_b32 s%d, s72, 6' % t1_, 's_add_u32 s%d, s%d, s%d' % (t0_, t0_, t1_),
                        's_add_u32 s%d, s%d, %d' % (t0_, t0_, FL_H), 's_cmp_eq_u32 s72, 3', 's_cselect_b32 s%d, 7, 15' % t1_) + \
        lanes_addr(vFA, t0_, 0, 's%d' % t1_, vFD) + [poll_load(vFA, vFD)]
    P += attn.run(stflags=st)
    fg = fin.g
    hk = {2: dict(tailcode=L('s_lshl_b32 s%d, s70, 6' % U0, 's_lshl_b32 s%d, s72, 4' % U1, 's_add_u32 s%d, s%d, s%d' % (U0, U0, U1),
                             's_add_u32 s%d, s%d, %d' % (U0, U0, FL_TB)) + lanes_addr(vFA, U0, 0, 4, vFD) + [poll_load(vFA, vFD)]),
          3: dict(tailcode=[STAMP(52)] + poll_check('wc', vFA, vFD, 1) + [STAMP(53)])}
    P += poll_check('wh', vFA, vFD, 1) + fin.setup() + L('s_barrier') + items_code(flat(fin.prologue())) + fg.start()
    P += ctx_flag + signal('cs', U0) + [STAMP(51)] + fin.loop(hk) + [STAMP(54)] + fin.epi(end) + L('s_branch %s' % end)
    P += ool + PZ
    P += L(end + ':', 's_endpgm', 'L_codeend:')
    return P, 163840


def add_stamps(P, idx):
    out = L('s_memrealtime s[98:99]', 's_memtime s[52:53]')
    K = 0
    for i, p in enumerate(P):
        if p.kind == 'smem' and K == 0:
            out = out[:-0] if False else out
        if p.kind == 'dir' and p.op == '.stamp':
            out += L('s_memtime vcc', 's_waitcnt lgkmcnt(0)', 'v_writelane_b32 v%d, vcc_lo, %d' % (VSTAMP, 3 + p.ops[0]))
            continue
        if p.kind == 'branch' and p.target.startswith('L_end_') and i > 2:
            p = I(p.text.replace('L_end_', 'L_stamp_'))
        if p.kind == 'label' and p.op.startswith('L_end_'):
            out += L(p.op.replace('L_end_', 'L_stamp_') + ':',
                     's_waitcnt vmcnt(0)', 's_memrealtime s[98:99]', 's_memtime s[0:1]', 's_waitcnt lgkmcnt(0)',
                     'v_writelane_b32 v%d, s98, 1' % VSTAMP, 'v_writelane_b32 v%d, s0, 2' % VSTAMP,
                     's_lshl_b32 s3, s%d, 10' % sID, 's_lshl_b32 s4, s35, 8', 's_add_u32 s3, s3, s4', 's_add_u32 s3, s3, %d' % (100 * MB + idx * 262144),
                     'v_lshlrev_b32 v2, 2, v0', 'v_add_u32 v2, s3, v2', 'global_store_dword v2, v%d, s[68:69]' % VSTAMP)
        out.append(p)
        if p.kind == 'smem' and p.text.startswith('s_load_dwordx16'):
            pass
        if K == 0 and p.kind == 'wait' and p.lgkm == 0:
            K = 1
            out += L('v_mov_b32 v%d, 0' % VSTAMP, 'v_writelane_b32 v%d, s98, 0' % VSTAMP, 'v_writelane_b32 v%d, s96, 63' % VSTAMP)
    out[1] = I('s_memtime s[96:97]')
    return out


def build(kernels, stamp=False):
    txt = HDR
    body = ''
    kds = ''
    for idx, (name, grid, fn) in enumerate(kernels):
        P, lds = fn(name)
        if stamp:
            P = add_stamps(P, idx)
        else:
            P = [p for p in P if not (p.kind == 'dir' and p.op == '.stamp')]
        prog = finalize(P)
        txt += '; @launch %sgrid=(%d,1,1) block=(256,1,1) lds=%d\n' % ('kernel=%s ' % name if len(kernels) > 1 else '', grid, lds)
        body += kernel_text(name, prog, 512)
        kds += kd_text(name, 512, 256)
    return txt + '.amdgcn_target "amdgcn-amd-amdhsa--gfx950"\n' + body + kds


if __name__ == '__main__':
    opt = {}
    for a_ in sys.argv:
        if a_.startswith('--exp='):
            attn.EXP.update(json.loads(a_[6:]))
        if a_.startswith('--opt='):
            opt = json.loads(a_[6:])
    ks = [('gated_mix__compressed_kv_cla__mixer_gmlp__prompt_kernel', 256, lambda n: mega(n, opt))]
    open(sys.argv[1], 'w').write(build(ks, stamp='--stamp' in sys.argv))
```

```python
from asmlib import *
from engine import *
from jobs import *

NEG = f2u(-1.0e9 * LOG2E)
THR = f2u(8.0)
SPLIT = 19
LDS_DROP = 0x30000

sK, sV, sQ, sPt = 8, 12, 16, 4
sKoff, sVoff, sKslot, sVslot, sEnd, sRing, sTile, t0, t1, t2, t3 = 20, 21, 22, 23, 24, 25, 27, 31, 32, 33, 34
sWave = 35
sThr, sPend, sDiag, sEvt, sEt, sEk, sE0 = 36, 37, 38, 26, 29, 30, 85
sH, sQI, sT0, sT1, sMode, sPair, sP2, sW8, sOwn, sNm = 74, 75, 76, 77, 78, 79, 80, 81, 86, 28
CMP = [88, 90, 92, 94]
sNext = 39

EXP = dict(nodma=False, nobar=False, nosm=False, noread=False, cap=2.0)
D_LEAD = 12
RING = 16
RINGB = 5 * 32768

vDma, aK, aV, vL16, vDma2 = 2, 3, 4, VL16, 1
NM = [8, 12]
Lr = [16, 17]
vT = list(range(18, 32))
Sreg = [32, 64]
Preg = 96
Gv = [112, 113]
vPF = 116
Ov = 128
Qa, Fa, PART = 96, 0, 160


def Sr(p, kb, qb):
    return Sreg[p] + (kb * 2 + qb) * 4


def Pr(ks, qb):
    return Preg + (ks * 2 + qb) * 4


def Or(db, qb):
    return Ov + (db * 2 + qb) * 4


def frag(j):
    b = Fa + (j % RING) * 4
    return 'a[%d:%d]' % (b, b + 3)


def kread(j):
    return I('ds_read_b128 %s, v%d offset:%d' % (frag(j), aK, j * 1024))


def vread(j):
    return I('ds_read_b128 %s, v%d offset:%d' % (frag(32 + j), aV, j * 1024))


def qk_mfmas(pn):
    R = []
    for j in range(32):
        kb, ds = j // 8, j % 8
        for qb in range(2):
            d = 'v[%d:%d]' % (Sr(pn, kb, qb), Sr(pn, kb, qb) + 3)
            c = 'v[%d:%d]' % (NM[qb], NM[qb] + 3) if ds == 0 else d
            q = Qa + (qb * 8 + ds) * 4
            R.append(I('%s %s, %s, a[%d:%d], %s' % (MF, d, frag(j), q, q + 3, c)))
    return R


def pv_mfmas():
    R = []
    for j in range(32):
        ks, db = j // 16, j % 16
        for qb in range(2):
            o = 'v[%d:%d]' % (Or(db, qb), Or(db, qb) + 3)
            R.append(I('%s %s, %s, v[%d:%d], %s' % (MF, o, frag(32 + j), Pr(ks, qb), Pr(ks, qb) + 3, o)))
    return R


def softmax_items(pc):
    exps, plains = [], []
    for ks in range(2):
        for qb in range(2):
            for u in range(4):
                kb = 2 * ks + u // 2
                a = Sr(pc, kb, qb) + 2 * (u % 2)
                p = Pr(ks, qb) + u
                exps.append(I('v_exp_f32 v%d, v%d' % (a, a)))
                exps.append(I('v_exp_f32 v%d, v%d' % (a + 1, a + 1)))
                n = len(exps)
                plains.append((I('v_add_f32 v%d, v%d, v%d' % (Lr[qb], Lr[qb], a)), n - 2, ks))
                plains.append((I('v_cvt_pk_bf16_f32 v%d, v%d, v%d' % (p, a, a + 1)), n - 1, ks))
                plains.append((I('v_add_f32 v%d, v%d, v%d' % (Lr[qb], Lr[qb], a + 1)), n - 1, ks))
    return exps, plains


def place_softmax(gaps, load, pc, g0, g1, cap, e0=0, p0=0, gsum=None, mid=None, addstop=None):
    exps, plains = softmax_items(pc)
    plains = plains[p0:]
    cv = [x for x in plains if 'cvt' in x[0].op]
    ad = [x for x in plains if 'cvt' not in x[0].op]
    epos = [-1] * e0
    ei = e0
    done = {}
    gsum = gsum or g1
    for g in range(g0, max(g1, gsum)):
        while True:
            if ei < len(exps) and load[g] + 2 <= cap:
                gaps[g].append(exps[ei])
                epos.append(g)
                load[g] += 2
                ei += 1
            elif cv and cv[0][1] < len(epos) and epos[cv[0][1]] < g and load[g] + 1 <= cap:
                x = cv.pop(0)
                gaps[g].append(x[0])
                load[g] += 1
                done[x[2]] = g
            elif ad and ad[0][1] < len(epos) and epos[ad[0][1]] < g and load[g] + 1 <= cap and (addstop is None or g < addstop):
                x = ad.pop(0)
                gaps[g].append(x[0])
                load[g] += 1
            else:
                break
    if mid:
        mid()
        for c2 in (cap, cap + 1):
            for g in range(addstop, gsum):
                while ad and epos[ad[0][1]] < g and load[g] + 1 <= c2 and (c2 == cap or load[g] == cap):
                    gaps[g].append(ad.pop(0)[0])
                    load[g] += 1
                    if c2 > cap:
                        break
    assert ei == len(exps) and not cv and not ad, (ei, len(cv), len(ad))
    return done


def max_stream(pn):
    r = [Sreg[pn] + i for i in range(32)]
    m = vT[0]
    out = [I('v_max3_f32 v%d, v%d, v%d, v%d' % (m, r[0], r[1], r[2]))]
    for i in range(3, 31, 2):
        out.append(I('v_max3_f32 v%d, v%d, v%d, v%d' % (m, m, r[i], r[i + 1])))
    out.append(I('v_max_f32 v%d, v%d, v%d' % (m, m, r[31])))
    out.append(I('v_cmp_lt_f32 vcc, s%d, v%d' % (sThr, m)))
    return out


def adv(reg, step, tmp):
    return [[I('s_add_u32 s%d, s%d, %d' % (reg, reg, step * 32768))],
            [I('s_sub_u32 s%d, s%d, %d' % (tmp, reg, RINGB)), I('s_min_u32 s%d, s%d, s%d' % (reg, reg, tmp))]]


def dma_group(which, step=2, tag=None):
    srd_, off, end, slot = (sK, sKoff, sEnd, sKslot) if which == 'K' else (sV, sVoff, sEnd, sVslot)
    G = [[I('s_cmp_lt_u32 s%d, s%d' % (off, end)), I('s_cselect_b32 s%d, %d, 0' % (srd_ + 2, 16 * MB)),
          I('s_cselect_b32 m0, s%d, %d' % (slot, LDS_DROP))]]
    for j in range(8):
        if j == 4:
            G.append([I('s_add_u32 m0, m0, 4096')])
        G.append([I('buffer_load_dwordx4 v%d, s[%d:%d], s%d offen offset:%d %s lds' % (vDma if j < 4 else vDma2, srd_, srd_ + 3, off, (j % 4) * 1024, EXP.get('ldflags', '')), tag=tag)])
    G.append([I('s_add_u32 s%d, s%d, 32768' % (off, off))])
    G += adv(slot, step, t3)
    return G


def rd_advance(which, step=2):
    a = aK if which == 'K' else aV
    return [[I('v_add_u32 v%d, %d, v%d' % (a, step * 32768, a))], [I('v_subrev_u32 v%d, s%d, v%d' % (vT[13], sRing, a))],
            [I('v_min_u32 v%d, v%d, v%d' % (a, a, vT[13]))]]


PRE_FIN = []
PRE_FIN2 = []
FIN_TAIL = dict(setup=[], groups=[])
HEAD_EXTRA = []
LATE_CHECK = []
LATE_TILE = 24


def early_event(lab, vm):
    P = L('s_mov_b32 s%d, 64' % sE0, 's_cmp_eq_u32 s%d, 0' % sPend, 's_cbranch_scc1 %s_np0' % lab, 's_waitcnt vmcnt(%d)' % vm)
    P += signal(None, sPend, only_wave0=False, va=vT[10], vb=vT[11]) + L('%s_np0:' % lab)
    return P + [I(x.text.replace('@', lab)) if '@' in x.text else x for x in HEAD_EXTRA]


def mask_block(lab, pn, back):
    P = [I(lab + ':')]
    A = lambda x: P.append(I(x))
    rl = lambda Q: [I(x.text.replace('@', lab)) if '@' in x.text else x for x in Q]
    P += L('s_cmp_lt_u32 s%d, s%d' % (sTile, sE0), 's_cbranch_scc1 %s_n0' % lab) + early_event(lab, 8) + L('%s_n0:' % lab)
    P += L('s_cmp_lt_u32 s%d, s%d' % (sTile, sEt), 's_cbranch_scc1 %s_d' % lab,
           's_cmp_eq_u32 s%d, 1' % sEk, 's_cbranch_scc1 %s_e1' % lab, 's_cmp_eq_u32 s%d, 2' % sEk, 's_cbranch_scc1 %s_e2' % lab)
    P += rl(LATE_CHECK) + L('s_mov_b32 s%d, 64' % sEt, 's_branch %s_d' % lab, '%s_e1:' % lab)
    P += pair_flag(t0) + L('v_mov_b32 v%d, s%d' % (vPF, t0)) + [poll_load(vPF, vPF + 1)] + rl(PRE_FIN)
    P += L('s_mov_b32 s%d, 2' % sEk, 's_add_u32 s%d, s%d, 1' % (sEt, sEt), 's_branch %s_d' % lab, '%s_e2:' % lab,
           's_cmp_lg_u32 s%d, 2' % sMode, 's_cbranch_scc1 %s_np' % lab)
    P += poll_check(lab + '_p', vPF, vPF + 1, 1, sc=t1) + part_base()
    for i in range(17):
        if i % 4 == 0 and i:
            A('s_add_u32 s%d, s%d, 4096' % (t0, t0))
        A('buffer_load_dwordx4 a[%d:%d], v%d, s[%d:%d], s%d offen offset:%d sc1' % (PART + 4 * i, PART + 4 * i + 3, vL16, sPt, sPt + 3, t0, (i % 4) * 1024))
    P += L('%s_np:' % lab) + rl(PRE_FIN2) + L('s_mov_b32 s%d, 64' % sEt, '%s_d:' % lab,
           's_min_u32 s%d, s%d, s%d' % (sEvt, sEt, sDiag), 's_min_u32 s%d, s%d, s%d' % (sEvt, sEvt, sE0),
           's_cmp_lt_u32 s%d, s%d' % (sTile, sDiag), 's_cbranch_scc1 %s' % back)
    A('s_lshl_b32 s%d, s%d, 7' % (t0, sQI))
    A('s_lshl_b32 s%d, s%d, 5' % (t1, sWave))
    A('s_add_u32 s%d, s%d, s%d' % (t0, t0, t1))
    A('s_lshl_b32 s%d, s%d, 6' % (t1, sTile))
    A('s_sub_u32 s%d, s%d, s%d' % (t0, t0, t1))
    u, ng = vT[1], vT[2]
    A('v_and_b32 v%d, 15, v0' % u)
    A('v_lshrrev_b32 v%d, 4, v0' % ng)
    A('v_lshlrev_b32 v%d, 2, v%d' % (ng, ng))
    A('v_sub_u32 v%d, v%d, v%d' % (u, u, ng))
    A('v_add_u32 v%d, s%d, v%d' % (u, t0, u))
    A('v_mov_b32 v%d, 0x%x' % (ng, NEG))
    items = [(16 * (kb - qb) + r, Sr(pn, kb, qb) + r) for kb in range(4) for qb in range(2) for r in range(4)]
    for i in range(0, 32, 4):
        for k in range(4):
            A('v_cmp_gt_i32 s[%d:%d], %d, v%d' % (CMP[k], CMP[k] + 1, items[i + k][0], u))
        for k in range(4):
            reg = items[i + k][1]
            A('v_cndmask_b32 v%d, v%d, v%d, s[%d:%d]' % (reg, reg, ng, CMP[k], CMP[k] + 1))
    A('s_branch %s' % back)
    return P


def rescale_block(lab, pn, back, first=False):
    P = [I(lab + ':')] if lab else []
    A = lambda x: P.append(I(x))
    dl = [vT[1], vT[2]]
    al = [vT[4], vT[6]]
    pr = lambda r: 'v[%d:%d]' % (r, r + 1)
    for qb in range(2):
        r = [Sr(pn, kb, qb) + i for kb in range(4) for i in range(4)]
        m = dl[qb]
        A('v_max3_f32 v%d, v%d, v%d, v%d' % (m, r[0], r[1], r[2]))
        for i in range(3, 15, 2):
            A('v_max3_f32 v%d, v%d, v%d, v%d' % (m, m, r[i], r[i + 1]))
        A('v_max_f32 v%d, v%d, v%d' % (m, m, r[15]))
    x0, x1 = xlane_reduce(dl[0], vT[8], 'v_max_f32'), xlane_reduce(dl[1], vT[9], 'v_max_f32')
    for a, b in zip(x0, x1):
        P.extend([a, b])
    for qb in range(2):
        r = [Sr(pn, kb, qb) + i for kb in range(4) for i in range(4)]
        m = dl[qb]
        if not first:
            A('v_max_f32 v%d, 0, v%d' % (m, m))
        for x in r:
            A('v_sub_f32 v%d, v%d, v%d' % (x, x, m))
        for i in range(4):
            A('v_sub_f32 v%d, v%d, v%d' % (NM[qb] + i, NM[qb] + i, m))
    if not first:
        for qb in range(2):
            A('v_exp_f32 v%d, -v%d' % (al[qb], dl[qb]))
        for qb in range(2):
            A('v_mul_f32 v%d, v%d, v%d' % (Lr[qb], Lr[qb], al[qb]))
        for db in range(16):
            for qb in range(2):
                for r in (0, 2):
                    A('v_pk_mul_f32 %s, %s, %s op_sel_hi:[1,0]' % (pr(Or(db, qb) + r), pr(Or(db, qb) + r), pr(al[qb])))
        A('s_branch %s' % back)
    return P


def fill(gaps, load, stream, g0, g1, cap, stride=1):
    q = list(stream)
    g = g0
    while g < g1 and q:
        if load[g] + q[0][1] <= cap + 1e-9:
            it = q.pop(0)
            gaps[g].extend(it[0] if isinstance(it[0], list) else [it[0]])
            load[g] += it[1]
            if stride > 1:
                g += stride
        else:
            g += 1
    return q


def place_dma(gaps, load, cap, grps, dg):
    ins = flat(grps)
    idx = [i for i, x in enumerate(ins) if x.kind == 'dma']
    for k, i in enumerate(idx):
        gaps[dg[k]].append(ins[i])
        load[dg[k]] += 2
    pre_ = ins[:idx[0]]
    g = dg[0] - 1
    spots = []
    for x in pre_:
        while load[g] + 1 > cap:
            g -= 1
        load[g] += 1
        spots.append(g)
    for x, g in zip(pre_, sorted(spots)):
        gaps[g].append(x)
    for k, i in enumerate(idx):
        nxt = idx[k + 1] if k + 1 < len(idx) else len(ins)
        g = dg[k] + 1
        for x in ins[i + 1:nxt]:
            while load[g] + 1 > cap:
                g += 1
            assert k + 1 == len(idx) or g < dg[k + 1]
            gaps[g].append(x)
            load[g] += 1


def iteration(lab, p):
    cap = EXP['cap']
    pn = 1 - p
    ms = qk_mfmas(pn) + pv_mfmas()
    NG = 128
    gaps = [[] for _ in range(NG)]
    pre = [[] for _ in range(NG)]
    load = [0.0] * NG
    for j in range(64):
        src = j + D_LEAD
        r = kread(src) if src < 32 else (vread(src - 32) if src < 64 else kread(src - 64))
        gaps[2 * j].append(r)
        load[2 * j] += 1
    for j in range(0, 64, 8):
        g = (2 * j - 2) % NG
        gaps[g].append(I('s_waitcnt lgkmcnt(%d)' % (D_LEAD - 8)))
        load[g] += 1
    pre[64] = [I('s_waitcnt vmcnt(16)'), I('s_barrier'),
               I('s_cmp_ge_u32 s%d, s%d' % (sTile, sEvt)), I('s_cbranch_scc1 %s_mask' % lab), I('%s_mb:' % lab)]
    load[63] += 2
    load[127] += 2
    place_dma(gaps, load, cap, dma_group('K'), EXP.get('kg', [5, 11, 19, 25, 33, 39, 47, 53]))
    place_dma(gaps, load, cap, dma_group('V'), EXP.get('vg', [91, 95, 99, 103, 107, 111, 115, 119]))
    left = fill(gaps, load, [(x, len(x)) for x in rd_advance('K')], 84, 103, cap)
    assert not left
    left = fill(gaps, load, [(x, len(x)) for x in rd_advance('V')], 104, 127, cap)
    assert not left
    def mid():
        left = fill(gaps, load, [(I('s_add_u32 s%d, s%d, 1' % (sTile, sTile)), 1)], 66, 90, cap)
        assert not left
        ex = L('s_cmp_eq_u32 s%d, s%d' % (sTile, sT1), 's_cselect_b32 s%d, -1, 0' % t2, 's_or_b32 s%d, s%d, vcc_lo' % (t2, t2),
               's_or_b32 s%d, s%d, vcc_hi' % (t2, t2))
        left = fill(gaps, load, [(x, 1) for x in max_stream(pn)], 72, 120, cap)
        assert not left, left
        gaps[123] += ex[:2]
        gaps[125] += ex[2:]
        load[123] += 2
        load[125] += 2
    done = place_softmax(gaps, load, p, 0, 94, cap, gsum=127, mid=mid, addstop=66)
    assert done[0] < 63 and done[1] < 95, done
    if EXP.get('show'):
        print('loads', ''.join(str(int(x)) for x in load), done)
    out = []
    for g in range(NG):
        out.extend(pre[g])
        out.append(ms[g])
        out.extend(gaps[g])
    out += L('s_waitcnt vmcnt(16)', 's_barrier')
    if EXP['nodma']:
        out = [x for x in out if x.kind != 'dma']
    if EXP['nobar']:
        out = [x for x in out if x.kind != 'barrier' and not (x.kind == 'wait' and x.vm is not None)]
    if EXP['nosm']:
        out = [x for x in out if not x.op.startswith(('v_exp', 'v_add_f32', 'v_cvt', 'v_max'))]
    if EXP['noread']:
        out = [x for x in out if x.kind != 'dsr']
    if EXP['nosm'] or EXP['noread'] or EXP['nodma'] or EXP['nobar']:
        pass
    out.append(I('s_cbranch_scc1 %s_ev' % lab))
    return out


def tail(p, fin):
    P = []
    exps, plains = softmax_items(p)
    sm = []
    for i in range(9):
        sm += exps[2 * i:2 * i + 2]
        if i > 0:
            sm += [x[0] for x in plains[3 * (i - 1):3 * i]]
    rd = [vread(j) for j in range(D_LEAD)]
    P.append(I('s_waitcnt lgkmcnt(0)'))
    P += interleave(sm, rd, 0.34)
    ms = pv_mfmas()
    gaps = [[] for _ in range(64)]
    pre = [[] for _ in range(64)]
    load = [0.0] * 64
    for j in range(32 - D_LEAD):
        gaps[2 * j].append(vread(j + D_LEAD))
        load[2 * j] += 1
    for j in range(0, 32, 8):
        pre[2 * j].append(I('s_waitcnt lgkmcnt(%d)' % max(0, min(32, j + D_LEAD) - (j + 8))))
    if fin:
        P = FIN_TAIL['setup'] + P
        dg = list(range(1, 64, 4))
        place_dma(gaps, load, 2.0, FIN_TAIL['groups'](), dg)
    else:
        G = seg_loads(None, nosetup=True)
        place_dma(gaps, load, 2.0, G[0], [31, 33, 37, 39, 43, 45, 49, 51])
    done = place_softmax(gaps, load, p, 0, 31, 3.0 if fin else 2.0, e0=18, p0=24, gsum=63)
    assert done[1] < 31
    for g in range(64):
        P.extend(pre[g])
        P.append(ms[g])
        P.extend(gaps[g])
    return P


def seg_loads(loadq, nosetup=False):
    P = L('s_lshl_b32 s%d, s%d, 20' % (t0, sH), 's_lshl_b32 s%d, s%d, 15' % (t1, sT0),
          's_add_u32 s%d, s%d, s%d' % (sKoff, t0, t1), 's_mov_b32 s%d, s%d' % (sVoff, sKoff),
          's_lshl_b32 s%d, s%d, 15' % (t1, sT1), 's_add_u32 s%d, s%d, s%d' % (sEnd, t0, t1),
          's_add_u32 s%d, s%d, s%d' % (sKslot, sNext, sW8), 's_mov_b32 s%d, s%d' % (sVslot, sKslot))
    P += flat(adv(sVslot, 2, t3))
    K0 = dma_group('K', 1, tag='aK0')
    seg_loads.setup = P
    if not nosetup:
        K0[0] = P + K0[0]
    Q = []
    if loadq:
        Q = srd(sQ, P_WS, 16 * MB, off=WS_Q)
        Q += L('s_lshl_b32 s%d, s%d, 20' % (t0, sH), 's_lshl_b32 s%d, s%d, 16' % (t1, sQI), 's_add_u32 s%d, s%d, s%d' % (t0, t0, t1),
               's_lshl_b32 s%d, s%d, 14' % (t1, sWave), 's_add_u32 s%d, s%d, s%d' % (t0, t0, t1))
        for i in range(16):
            if i % 4 == 0 and i:
                Q += L('s_add_u32 s%d, s%d, 4096' % (t0, t0))
            Q.append(I('buffer_load_dwordx4 a[%d:%d], v%d, s[%d:%d], s%d offen offset:%d %s' % (
                Qa + 4 * i, Qa + 4 * i + 3, vL16, sQ, sQ + 3, t0, (i % 4) * 1024, EXP.get('ldflags', ''))))
        Q = [Q]
    return [K0, Q, dma_group('K'), dma_group('V'), dma_group('K'), dma_group('V')]


def as_items(groups, lds):
    R = []
    pre = []
    for g in groups:
        if len(g) == 1 and g[0].kind in ('dma', 'vld'):
            R.append(Item(pre, g[0], [], lds))
            pre = []
        else:
            pre = pre + g
    if pre:
        R[-1].post = [pre]
    return R


def kernel_setup(slot0=0):
    P = srd(sK, P_WS, 16 * MB, off=WS_K) + srd(sV, P_WS, 16 * MB, off=WS_V)
    P += L('s_lshl_b32 s%d, s%d, 13' % (sW8, sWave),
           'v_add_u32 v%d, s%d, v%d' % (vDma, sW8, vL16), 'v_add_u32 v%d, 4096, v%d' % (vDma2, vDma),
           's_mov_b32 s%d, %d' % (sNext, slot0 * 32768), 's_mov_b32 s%d, %d' % (sRing, RINGB), 's_mov_b32 s%d, 0' % sPend)
    return P


def segment(lab, vm0):
    P = []
    A = lambda x: P.append(I(x))
    A('v_add_u32 v%d, s%d, v%d' % (aK, sNext, vL16))
    A('v_mov_b32 v%d, v%d' % (aV, aK))
    P += flat(rd_advance('V'))
    for qb in range(2):
        for i in range(4):
            A('v_mov_b32 v%d, 0' % (NM[qb] + i))
        A('v_mov_b32 v%d, 0' % Lr[qb])
    A('s_mov_b32 s%d, 0x%x' % (sThr, THR))
    A('s_mov_b32 s%d, s%d' % (sTile, sT0))
    A('s_lshl_b32 s%d, s%d, 1' % (sDiag, sQI))
    P += L('s_cmp_gt_u32 s%d, 28' % sT1, 's_cselect_b32 s%d, %d, 64' % (sEt, LATE_TILE), 's_sub_u32 s%d, s%d, 2' % (t0, sT1),
           's_cmp_eq_u32 s%d, 1' % sMode, 's_cselect_b32 s%d, s%d, s%d' % (sEt, sEt, t0), 's_cselect_b32 s%d, 0, 1' % sEk,
           's_add_u32 s%d, s%d, 1' % (sE0, sT0), 's_min_u32 s%d, s%d, s%d' % (sEvt, sEt, sDiag), 's_min_u32 s%d, s%d, s%d' % (sEvt, sEvt, sE0))
    A('s_waitcnt vmcnt(%d)' % vm0)
    A('s_barrier')
    P.append(STAMP(4))
    for j in range(D_LEAD):
        P.append(kread(j))
    ms = qk_mfmas(0)
    z = [I('v_mov_b32 v%d, 0' % (Ov + i)) for i in range(128)]
    for j in range(32):
        if j % 8 == 0:
            A('s_waitcnt lgkmcnt(%d)' % max(0, min(32, j + D_LEAD) - (j + 8)))
        P.append(ms[2 * j])
        if j + D_LEAD < 32:
            P.append(kread(j + D_LEAD))
        P += z[4 * j:4 * j + 2]
        P.append(ms[2 * j + 1])
        P += z[4 * j + 2:4 * j + 4]
    P += flat(rd_advance('K', 1))
    A('s_waitcnt vmcnt(16)')
    A('s_barrier')
    for j in range(D_LEAD):
        P.append(kread(j))
    A('s_cmp_ge_u32 s%d, s%d' % (sTile, sEvt))
    A('s_cbranch_scc1 %s_h_mask' % lab)
    A('%s_h_mb:' % lab)
    P += rescale_block(None, 0, None, first=True)
    A('s_add_u32 s%d, s%d, 1' % (sTile, sTile))
    P.append(STAMP(5))
    A('s_cmp_eq_u32 s%d, s%d' % (sTile, sT1))
    A('s_cbranch_scc1 %s_tail0' % lab)
    A('s_waitcnt lgkmcnt(%d)' % (D_LEAD - 8))
    if 'apad' in EXP:
        A('.p2align 6')
        for i in range(EXP['apad']):
            A('s_nop 0')
    A('%s_loop:' % lab)
    P += iteration(lab + '_i0', 0)
    A('%s_mid:' % lab)
    P += iteration(lab + '_i1', 1)
    A('s_branch %s_loop' % lab)
    for p, cont in ((0, '_mid'), (1, '_loop')):
        P += L('%s_i%d_ev:' % (lab, p), 's_cbranch_vccnz %s_i%d_resc' % (lab, p), '%s_i%d_rb:' % (lab, p),
               's_cmp_lg_u32 s%d, s%d' % (sTile, sT1), 's_cbranch_scc1 %s%s' % (lab, cont), 's_branch %s_tail%d' % (lab, 1 - p))
    for p in range(2):
        P += L('%s_tail%d:' % (lab, p)) + [STAMP(6)] + L('s_cmp_eq_u32 s%d, 1' % sMode, 's_cbranch_scc1 %s_pre%d' % (lab, p))
        P += tail(p, True) + L('s_branch %s_end' % lab)
    for p in range(2):
        P += pretail(lab + '_pre%d' % p) + tail(p, False) + L('s_branch f_part')
    O = []
    O += mask_block(lab + '_h_mask', 0, lab + '_h_mb')
    O += mask_block(lab + '_i0_mask', 1, lab + '_i0_mb')
    O += mask_block(lab + '_i1_mask', 0, lab + '_i1_mb')
    O += rescale_block(lab + '_i0_resc', 1, lab + '_i0_rb')
    O += rescale_block(lab + '_i1_resc', 0, lab + '_i1_rb')
    P += O
    A('%s_end:' % lab)
    return P


def pair_flag(dst):
    return L('s_lshl_b32 s%d, s%d, 2' % (dst, sPair), 's_add_u32 s%d, s%d, s%d' % (dst, dst, sWave), 's_lshl_b32 s%d, s%d, 2' % (dst, dst),
             's_add_u32 s%d, s%d, %d' % (dst, dst, FL_PAIR))


def part_base():
    return srd(sPt, P_WS, 128 * 4 * 17 * 1024, off=WS_PART) + L(
        's_lshl_b32 s%d, s%d, 2' % (t0, sPair), 's_add_u32 s%d, s%d, s%d' % (t0, t0, sWave),
        's_mul_i32 s%d, s%d, %d' % (t0, t0, 17 * 1024))


def gate_load(sblk, dst):
    P = srd(sPt, P_WS, 8192, off=WS_G)
    P += L('s_lshl_b32 s%d, s%d, 2' % (t0, sblk), 's_add_u32 s%d, s%d, s%d' % (t0, t0, sWave), 's_lshl_b32 s%d, s%d, 7' % (t0, t0),
           'v_and_b32 v5, 15, v0', 'v_lshlrev_b32 v5, 2, v5')
    for qb in range(2):
        P.append(I('buffer_load_dword v%d, v5, s[%d:%d], s%d offen offset:%d %s' % (dst + qb, sPt, sPt + 3, t0, qb * 64, EXP.get('ldflags', ''))))
    return P


def pretail(lab):
    P = [I(lab + ':')]
    A = lambda x: P.append(I(x))
    P += L('s_cmp_eq_u32 s%d, 64' % sE0, 's_cbranch_scc1 %s_n0' % lab) + early_event(lab, 0) + L('%s_n0:' % lab)
    A('v_readfirstlane_b32 s%d, v%d' % (sNext, aV))
    P += flat(adv(sNext, 1, t3))
    P += L('s_cmp_lg_u32 s%d, 0' % sP2, 's_cselect_b32 s%d, s%d, s%d' % (sQI, sP2, sOwn), 's_cselect_b32 s%d, %d, 0' % (sT0, SPLIT),
           's_cselect_b32 s%d, 1, 0' % sNm, 's_lshl_b32 s%d, s%d, 1' % (sT1, sQI), 's_add_u32 s%d, s%d, 2' % (sT1, sT1),
           's_mov_b32 s%d, 0' % sP2)
    G = seg_loads(True)
    P += seg_loads.setup + L('s_cmp_eq_u32 s%d, 0' % sNm, 's_cbranch_scc1 %s_own' % lab) + flat(G[1]) + L('s_branch %s_q' % lab, '%s_own:' % lab)
    P += [I('v_accvgpr_mov_b32 a%d, a%d' % (Qa + i, PART + i)) for i in range(64)]
    A('%s_q:' % lab)
    return P


def mix(E, X):
    P = []
    k = 0
    for i, e in enumerate(E):
        P.append(e)
        while k < len(X) and k * len(E) < (i + 1) * len(X) and e.kind != 'salu':
            P += X[k]
            k += 1
    return P + flat(X[k:])


def finish(lab, stflags='', pre=lambda t: [], items=lambda: []):
    P = []
    A = lambda x: P.append(I(x))
    pr = lambda r: 'v[%d:%d]' % (r, r + 1)
    x0, x1 = xlane_reduce(Lr[0], vT[0], 'v_add_f32'), xlane_reduce(Lr[1], vT[1], 'v_add_f32')
    red = [x for ab in zip(x0, x1) for x in ab]
    P += red
    f1 = [vT[2], vT[4]]
    f2 = [vT[6], vT[8]]
    A('s_cmp_eq_u32 s%d, 2' % sMode)
    A('s_cbranch_scc1 %s_comb' % lab)
    for qb in range(2):
        A('v_rcp_f32 v%d, v%d' % (f1[qb], Lr[qb]))

    def ctx_base():
        Q = srd(sQ, P_WS, HC_SIZE, off=WS_HC)
        Q += L('s_lshl_b32 s%d, s%d, 2' % (t0, sQI), 's_add_u32 s%d, s%d, s%d' % (t0, t0, sWave),
               's_mul_i32 s%d, s%d, %d' % (t0, t0, 2 * HC_RB), 's_lshl_b32 s%d, s%d, 13' % (t1, sH),
               's_add_u32 s%d, s%d, s%d' % (t0, t0, t1), 's_add_u32 s%d, s%d, %d' % (t0, t0, 28 * 1024))
        return Q

    def emit(srd_, offf, flags, comb):
        Q = []
        k = 0
        for qb in range(2):
            for pp in range(8):
                a, b = Or(2 * pp, qb), Or(2 * pp + 1, qb)
                for r in (a, a + 2, b, b + 2):
                    Q.append(I('v_pk_mul_f32 %s, %s, %s op_sel_hi:[1,0]' % (pr(r), pr(r), pr(f1[qb]))))
                if comb:
                    t = 32 + (k % 4) * 12
                    for r in range(4):
                        Q.append(I('v_accvgpr_read_b32 v%d, a%d' % (t + 8 + r, PART + 4 * k + r)))
                    for r in range(4):
                        Q.append(I('v_lshlrev_b32 v%d, 16, v%d' % (t + 2 * r, t + 8 + r)))
                        Q.append(I('v_and_b32 v%d, 0xffff0000, v%d' % (t + 2 * r + 1, t + 8 + r)))
                    for r, o in enumerate((a, a + 2, b, b + 2)):
                        Q.append(I('v_pk_fma_f32 %s, %s, %s, %s op_sel_hi:[1,0,1]' % (pr(o), pr(t + 2 * r), pr(f2[qb]), pr(o))))
                for r, o in enumerate((a, a + 2, b, b + 2)):
                    Q.append(I('v_cvt_pk_bf16_f32 v%d, v%d, v%d' % (a + r, o, o + 1)))
                Q += store4(a, vL16, offf(qb, pp, k), flags, soff=t1, base=t0, srd_=srd_)
                Q[-1].wr.add('tag:ctxst')
                k += 1
        return Q

    for qb in range(2):
        A('v_mul_f32 v%d, v%d, v%d' % (f1[qb], f1[qb], Gv[qb]))
    P += ctx_base()
    P += emit(sQ, lambda qb, pp, k: qb * HC_RB + pp * 1024, stflags, False)
    A('s_branch %s_fin' % lab)
    A('%s_part:' % lab)
    P += red + L(*['v_rcp_f32 v%d, v%d' % (f1[qb], Lr[qb]) for qb in range(2)])
    P += part_base()
    G = seg_loads(None, nosetup=True)
    E = emit(sPt, lambda qb, pp, k: k * 1024, 'sc1', False)
    X = G[2] + G[3] + G[4]
    P += mix(E, X)
    st = 80
    P += L('v_mov_b32 v%d, v%d' % (st, NM[0]), 'v_mov_b32 v%d, v%d' % (st + 1, Lr[0]),
           'v_mov_b32 v%d, v%d' % (st + 2, NM[1]), 'v_mov_b32 v%d, v%d' % (st + 3, Lr[1]))
    P += store4(st, vL16, 16384, 'sc1', soff=t1, base=t0, srd_=sPt)
    P += L('s_mov_b32 s%d, s%d' % (sMode, sNm))
    P += pair_flag(sPend) + L('s_barrier')
    P += set_pair() + flat(G[5])
    P += [need('aK0')] + [I('', needs=['a%d' % (Qa + i) for i in range(64)])] + L('s_branch L_seg')
    A('%s_comb:' % lab)
    for i in range(4):
        A('v_accvgpr_read_b32 v%d, a%d' % (80 + i, PART + 64 + i))
    for qb in range(2):
        nm2, l2 = 80 + 2 * qb, 81 + 2 * qb
        mn = vT[10]
        A('v_min_f32 v%d, v%d, v%d' % (mn, NM[qb], nm2))
        A('v_sub_f32 v%d, v%d, v%d' % (f1[qb], mn, NM[qb]))
        A('v_sub_f32 v%d, v%d, v%d' % (f2[qb], mn, nm2))
        A('v_exp_f32 v%d, v%d' % (f1[qb], f1[qb]))
        A('v_exp_f32 v%d, v%d' % (f2[qb], f2[qb]))
        A('v_mul_f32 v%d, v%d, v%d' % (f2[qb], f2[qb], l2))
        A('v_fma_f32 v%d, v%d, v%d, v%d' % (mn, f1[qb], Lr[qb], f2[qb]))
        A('v_rcp_f32 v%d, v%d' % (mn, mn))
        A('v_mul_f32 v%d, v%d, v%d' % (mn, mn, Gv[qb]))
        A('v_mul_f32 v%d, v%d, v%d' % (f1[qb], f1[qb], mn))
        A('v_mul_f32 v%d, v%d, v%d' % (f2[qb], f2[qb], mn))
    P += ctx_base()
    P += emit(sQ, lambda qb, pp, k: qb * HC_RB + pp * 1024, stflags, True)
    A('%s_fin:' % lab)
    return P


OWN = [15, 14, 13, 12, 11, 10, 9, 8, 7, 4, 3, 2, 1, 0, 6, 5]
PT1 = [0] * 8 + [9, 12, 13, 14, 15, 11, 0, 0]
PT2 = [0] * 13 + [10, 0, 0]


def decode():
    def tab(vals, dst):
        v = sum(x << (4 * i) for i, x in enumerate(vals))
        return L('s_mov_b32 s4, 0x%x' % (v & 0xffffffff), 's_mov_b32 s5, 0x%x' % (v >> 32), 's_lshr_b64 s[4:5], s[4:5], s%d' % t0,
                 's_and_b32 s%d, s4, 15' % dst)
    P = L('s_and_b32 s%d, s2, 7' % t2, 's_lshr_b32 s%d, s2, 3' % t0, 's_and_b32 s%d, s%d, 1' % (t1, t0),
          's_lshl_b32 s%d, s%d, 1' % (t2, t2), 's_add_u32 s%d, s%d, s%d' % (sH, t2, t1),
          's_lshr_b32 s%d, s%d, 1' % (t0, t0), 's_lshl_b32 s%d, s%d, 2' % (t0, t0))
    P += tab(OWN, sOwn) + tab(PT1, t1) + tab(PT2, sP2)
    P += L('s_cmp_lg_u32 s%d, 0' % t1, 's_cselect_b32 s%d, s%d, s%d' % (sQI, t1, sOwn), 's_cselect_b32 s%d, %d, 0' % (sT0, SPLIT),
           's_cselect_b32 s%d, 1, 0' % sMode, 's_lshl_b32 s%d, s%d, 1' % (sT1, sQI), 's_add_u32 s%d, s%d, 2' % (sT1, sT1),
           's_cmp_gt_u32 s%d, %d' % (sOwn, 8), 's_cselect_b32 s%d, 2, s%d' % (sMode, sMode),
           's_cselect_b32 s%d, %d, s%d' % (sT1, SPLIT, sT1))
    P += set_pair()
    return P


def set_pair():
    return L('s_lshl_b32 s%d, s%d, 3' % (sPair, sH), 's_add_u32 s%d, s%d, s%d' % (sPair, sPair, sQI), 's_sub_u32 s%d, s%d, 9' % (sPair, sPair))


def own_q(src):
    return [I('v_accvgpr_write_b32 a%d, v%d' % (d + i, src + i)) for d in (Qa, PART) for i in range(64)]


def run(stflags='', **kw):
    P = L('L_seg:')
    P += segment('a', 63)
    P.append(STAMP(7))
    P += finish('f', stflags, **kw)
    P.append(STAMP(8))
    return P
```

```python
from asmlib import *

MF = 'v_mfma_f32_16x16x32_bf16'
WAVE = 35
T0, T1, T2, T3, U0, U1 = 31, 32, 33, 34, 26, 27


def rng(kind, b, n):
    return '%s[%d:%d]' % (kind, b, b + n - 1) if n > 1 else '%s%d' % (kind, b)


class Reg:
    def __init__(self, kind, base):
        self.kind, self.base = kind, base

    def r(self, i=0, n=1):
        return rng(self.kind, self.base + i, n)


def uni(idx):
    return Reg('v', idx) if idx < 256 else Reg('a', idx - 256)


def log2(x):
    n = x.bit_length() - 1
    assert 1 << n == x
    return n


def flat(G):
    return [i for g in G for i in g]


def L(*lines):
    return [I(x) for x in lines]


def nvm(P):
    return sum(1 for b in P if b.kind in ('vld', 'vst', 'dma'))


class Item:
    def __init__(self, pre, d, post, lds):
        self.pre, self.d, self.post, self.lds = pre, d, post, lds

    def all(self):
        return self.pre + [self.d] + flat(self.post)


class Gemm:
    def __init__(self, name, TX, TW, WX, WW, T, xtype, x_stride, w_stride, swap, nX, nW, s, vbase, acc_regs,
                 frag_regs, BK=64, kperm=False, xbase=0, wbase=None, rdpg=1.0, mode='step',
                 xfl='', wfl='', static=False, x0=0, w0=0, xres=False, wmajor=False, gran=None):
        self.__dict__.update(locals())
        del self.self
        assert WX * WW == 4
        self.nxb = TX // WX // 16
        self.nwb = TW // WW // 16
        self.KS = BK // 32
        self.xrow = BK * 2
        self.xsz = TX * BK * 2
        self.wrow = TW * 2
        self.wsz = BK * TW * 2
        self.ndx = self.xsz // 4096
        assert self.xsz % 4096 == 0 and self.wsz % 4096 == 0
        self.ndw = self.wsz // 4096
        if wbase is None:
            self.wbase = xbase + nX * self.xsz
        self.lds_end = max(self.wbase + nW * self.wsz, xbase + nX * self.xsz)
        assert self.lds_end <= 163840, self.lds_end
        self.nm = self.nxb * self.nwb
        v = vbase
        self.vX = list(range(v, v + (self.ndx if xtype == 'rowk' else self.ndx // self.KS)))
        v += len(self.vX)
        self.vW = list(range(v, v + self.ndw))
        v += self.ndw
        self.ws = 15 if gran else 16
        if gran:
            self.xbase = self.wbase = xbase = 0
        self.xwin = -(-nX * self.xsz // (1 << self.ws)) if static else 1
        self.wwin = -(-nW * self.wsz // (1 << self.ws)) if static else 1
        na = self.KS if xtype == 'rowk' else 1
        self.aX = [list(range(v + k * na, v + (k + 1) * na)) for k in range(self.xwin)]
        v += na * self.xwin
        self.naw = min(self.nwb, 1 << len(self.wswz_bits()))
        self.aW = [list(range(v + k * self.naw, v + (k + 1) * self.naw)) for k in range(self.wwin)]
        v += self.naw * self.wwin
        self.vend = v
        self.FS = self.KS if mode == 'tile' else 1
        it = iter(frag_regs)
        if not xres:
            self.fX = [[[uni(next(it)) for b in range(self.nxb)] for k in range(self.FS)] for st in range(2)]
        self.fW = [[[uni(next(it)) for b in range(self.nwb)] for k in range(self.FS)] for st in range(2)]
        self.set_acc(acc_regs)

    def set_acc(self, acc_regs):
        assert len(acc_regs) >= self.nm
        self.acc = [[uni(acc_regs[x * self.nwb + w]) for w in range(self.nwb)] for x in range(self.nxb)]

    def wx_expr(self, dst):
        return L({1: 's_mov_b32 s%d, 0' % dst, 2: 's_and_b32 s%d, s%d, 1' % (dst, WAVE), 4: 's_mov_b32 s%d, s%d' % (dst, WAVE)}[self.WX])

    def ww_expr(self, dst):
        return L({1: 's_mov_b32 s%d, s%d' % (dst, WAVE), 2: 's_lshr_b32 s%d, s%d, 1' % (dst, WAVE), 4: 's_mov_b32 s%d, 0' % dst}[self.WX])

    def wswz_bits(self):
        lowbits = [0, 1, 2] if self.kperm else [0, 1, 3]
        if self.wrow % 256 == 0:
            return list(zip(lowbits, [0, 1, 2]))
        if self.wrow % 256 == 128:
            return list(zip(lowbits[1:], [0, 1]))
        raise ValueError(self.wrow)

    def fk(self, k):
        f = 0
        for kb, sb in self.wswz_bits():
            f |= ((k >> kb) & 1) << sb
        return f

    def voff_x(self, dst, stride, t=(1, 2), st0=U0):
        P = []
        A = lambda x: P.append(I(x))
        t1, t2 = ['v%d' % i for i in t]
        if self.xtype == 'rowk':
            cpr = self.xrow // 16
            rpi = 64 // cpr
            assert self.BK == 64 and self.ndx % 2 == 0 and stride % 128 == 0
            A('v_lshrrev_b32 %s, %d, v0' % (t1, log2(cpr)))
            A('s_mul_i32 s%d, s%d, %d' % (st0, WAVE, self.ndx * rpi * stride))
            A('v_mul_u32_u24 %s, %d, %s' % (t1, stride, t1))
            A('v_lshrrev_b32 %s, 4, v0' % t2)
            A('v_xor_b32 %s, %s, v0' % (t2, t2))
            A('v_and_b32 %s, %d, %s' % (t2, cpr - 1, t2))
            A('v_lshl_add_u32 %s, %s, 4, %s' % (t1, t2, t1))
            A('v_add_u32 v%d, s%d, %s' % (dst[0], st0, t1))
            A('v_xor_b32 %s, 64, v%d' % (t2, dst[0]))
            assert rpi * stride >= 1024
            A('v_add_u32 v%d, %d, %s' % (dst[1], rpi * stride - 1024, t2))
            for j in range(2, self.ndx):
                A('v_add_u32 v%d, %d, v%d' % (dst[j], (j - j % 2) * rpi * stride - (j % 4 - j % 2) * 1024, dst[j % 2]))
        else:
            assert self.ndx <= 4 and self.ndx % self.KS == 0
            A('s_mul_i32 s%d, s%d, %d' % (st0, WAVE, stride * (self.ndx // self.KS)))
            A('v_lshl_add_u32 v%d, v0, 4, s%d' % (dst[0], st0))
            for b in range(1, self.ndx // self.KS):
                A('v_add_u32 v%d, %d, v%d' % (dst[b], b * (stride - self.KS * 1024), dst[0]))
        return P

    def voff_w(self, dst, stride, t=(1, 2, 3), st0=U0):
        P = []
        A = lambda x: P.append(I(x))
        t1, t2, t3 = ['v%d' % i for i in t]
        cw = self.wrow // 16
        rpi = 64 // cw
        assert cw & (cw - 1) == 0 and rpi * stride >= 1024
        assert all(self.fk(w * self.ndw * rpi) == 0 for w in range(4))
        A('v_lshrrev_b32 %s, %d, v0' % (t1, log2(cw)))
        A('v_and_b32 %s, %d, v0' % (t2, cw - 1))
        for kb, sb in self.wswz_bits():
            if (1 << kb) < rpi:
                A('v_bfe_u32 %s, %s, %d, 1' % (t3, t1, kb))
                A('v_lshlrev_b32 %s, %d, %s' % (t3, sb + 1, t3))
                A('v_xor_b32 %s, %s, %s' % (t2, t2, t3))
        A('v_lshlrev_b32 %s, 4, %s' % (t2, t2))
        A('s_mul_i32 s%d, s%d, %d' % (st0, WAVE, self.ndw * rpi * stride))
        A('v_mul_u32_u24 %s, %d, %s' % (t1, stride, t1))
        A('v_add_u32 %s, s%d, %s' % (t1, st0, t1))
        done = {}
        for j in range(self.ndw):
            f = self.fk(j * rpi)
            if f in done:
                A('v_add_u32 v%d, %d, v%d' % (dst[j], (j - done[f]) * rpi * stride - (j % 4 - done[f] % 4) * 1024, dst[done[f]]))
            else:
                done[f] = j
                if f:
                    A('v_xor_b32 %s, %d, %s' % (t3, f * 32, t2))
                    A('v_add_u32 v%d, %s, %s' % (dst[j], t3, t1))
                else:
                    A('v_add_u32 v%d, %s, %s' % (dst[j], t2, t1))
                if j:
                    A('v_add_u32 v%d, %d, v%d' % (dst[j], j * rpi * stride - (j % 4) * 1024, dst[j]))
        return P

    def setup_x(self):
        s = self.s
        P = self.voff_x(self.vX, self.x_stride)
        P += L('s_mul_i32 s%d, s%d, %d' % (s['xslot'], WAVE, self.ndx * 1024))
        if not self.static:
            assert self.xbase == 0 and self.x0 == 0
        return P

    def setup_w(self):
        s = self.s
        P = self.voff_w(self.vW, self.w_stride)
        P += L('s_mul_i32 s%d, s%d, %d' % (s['wslot'], WAVE, self.ndw * 1024))
        return P

    def setup_read(self, t=(1, 2, 3, 4, 5), st0=U0, st1=U1):
        s = self.s
        P = []
        A = lambda x: P.append(I(x))
        t1, t2, t3, t4, t5 = ['v%d' % i for i in t]
        P += self.wx_expr(st0)
        a0 = self.aX[0]
        if self.xtype == 'rowk':
            A('v_and_b32 %s, 15, v0' % t1)
            A('s_mul_i32 s%d, s%d, %d' % (st0, st0, self.nxb * 16 * self.xrow))
            if self.xbase:
                A('s_add_u32 s%d, s%d, %d' % (st0, st0, self.xbase))
            A('v_lshl_add_u32 %s, %s, %d, s%d' % (t1, t1, log2(self.xrow), st0))
            A('v_lshrrev_b32 %s, 4, v0' % t2)
            A('v_bfe_u32 %s, v0, 1, 3' % t3)
            A('v_xor_b32 %s, %s, %s' % (t2, t2, t3))
            A('v_lshl_add_u32 v%d, %s, 4, %s' % (a0[0], t2, t1))
            for kk in range(1, self.KS):
                A('v_xor_b32 v%d, %d, v%d' % (a0[kk], kk * 64, a0[0]))
        else:
            A('s_mul_i32 s%d, s%d, %d' % (st0, st0, self.nxb * self.KS * 1024))
            if self.xbase:
                A('s_add_u32 s%d, s%d, %d' % (st0, st0, self.xbase))
            A('v_lshl_add_u32 v%d, v0, 4, s%d' % (a0[0], st0))
        for k in range(self.xwin - 1, -1 if self.gran else 0, -1):
            for a, b in zip(self.aX[k], a0):
                A('v_add_u32 v%d, %s, v%d' % (a, 's%d' % self.gran[k] if self.gran else 65536 * k, b))
        A('v_bfe_u32 %s, v0, 2, 2' % t1)
        A('v_lshrrev_b32 %s, 4, v0' % t2)
        A('v_lshl_add_u32 %s, %s, %d, %s' % (t2, t2, 2 if self.kperm else 3, t1))
        for i, (kb, sb) in enumerate(self.wswz_bits()):
            if i == 0:
                A('v_bfe_u32 %s, %s, %d, 1' % (t4, t2, kb))
            else:
                A('v_bfe_u32 %s, %s, %d, 1' % (t5, t2, kb))
                A('v_lshl_or_b32 %s, %s, %d, %s' % (t4, t5, sb, t4))
        A('v_mul_u32_u24 %s, %d, %s' % (t2, self.wrow, t2))
        A('v_and_b32 %s, 3, v0' % t3)
        A('v_lshl_add_u32 %s, %s, 3, %s' % (t2, t3, t2))
        A('v_add_u32 %s, %d, %s' % (t2, self.wbase, t2))
        P += self.ww_expr(st0)
        A('s_mul_i32 s%d, s%d, %d' % (st0, st0, self.nwb))
        A('v_xor_b32 %s, s%d, %s' % (t4, st0, t4))
        assert self.WW == 1 or (self.nwb & (self.nwb - 1)) == 0
        for wb in range(self.naw):
            A('v_xor_b32 %s, %d, %s' % (t3, wb, t4))
            A('v_lshl_add_u32 v%d, %s, 5, %s' % (self.aW[0][wb], t3, t2))
        for k in range(self.wwin - 1, -1 if self.gran else 0, -1):
            for a, b in zip(self.aW[k], self.aW[0]):
                A('v_add_u32 v%d, %s, v%d' % (a, 's%d' % self.gran[self.xwin + k] if self.gran else 65536 * k, b))
        if not self.static:
            P += L('s_mov_b32 s%d, 0' % s['xrd'], 's_mov_b32 s%d, 0' % s['wrd'])
        return P

    def wfrag(self, t):
        return False

    def xslot_of(self, t):
        return (t + self.x0) % self.nX

    def wslot_of(self, t):
        return (t + self.w0) % self.nW

    def tag(self, which, t):
        if self.static:
            return '%s%s%d' % (self.name, which, self.xslot_of(t) if which == 'X' else self.wslot_of(t))
        return self.name + which

    def group(self, which, t, vregs=None, wstep=None, pre=None, tag=None):
        s = self.s
        X = which == 'X'
        srd, off, slot = (s['xsrd'], s['xoff'], s['xslot']) if X else (s['wsrd'], s['woff'], s['wslot'])
        nd, sz, ns, base = (self.ndx, self.xsz, self.nX, self.xbase) if X else (self.ndw, self.wsz, self.nW, self.wbase)
        sl = self.xslot_of(t) if X else self.wslot_of(t)
        step = (self.BK * 2 if self.xtype == 'rowk' else self.KS * 1024) if X else (wstep or self.BK * self.w_stride)
        fl = self.xfl if X else self.wfl
        cst = base + (sl * sz if self.static else 0)
        lds = (base + sl * sz, base + (sl + 1) * sz)
        if self.gran:
            slot = s['xslots' if X else 'wslots'][cst >> 15]
            cst &= 32767
        vv = vregs or (self.vX if X else self.vW)
        items = []
        for j in range(nd):
            m = list(pre or []) if j == 0 else []
            if (X and self.xtype == 'frag') or (not X and self.wfrag(t)):
                if j == 0:
                    m.append(I('s_add_u32 m0, s%d, %d' % (slot, cst)))
                d = I('buffer_load_dwordx4 v%d, s[%d:%d], s%d offen offset:%d %s lds' % (vv[j // self.KS if X else 0], srd, srd + 3, off, j * 1024, fl), tag=tag or self.tag(which, t))
            else:
                if j % 4 == 0:
                    m.append(I('s_add_u32 m0, s%d, %d' % (slot, cst + j * 1024)))
                d = I('buffer_load_dwordx4 v%d, s[%d:%d], s%d offen offset:%d %s lds' % (vv[j], srd, srd + 3, off, (j % 4) * 1024, fl), tag=tag or self.tag(which, t))
            post = []
            if j == nd - 1:
                post = [L('s_add_u32 s%d, s%d, %d' % (off, off, step))]
                if not self.static:
                    post += [L('s_add_u32 s%d, s%d, %d' % (slot, slot, sz)),
                             L('s_sub_u32 s%d, s%d, %d' % (T3, slot, ns * sz), 's_min_u32 s%d, s%d, s%d' % (slot, slot, T3))]
            items.append(Item(m, d, post, lds))
        return items

    def order(self):
        return ['W', 'X'] if self.nX >= self.nW else ['X', 'W']

    def G(self, t):
        R = []
        for wch in self.order():
            tt = t + (self.nX if wch == 'X' else self.nW)
            if tt < self.T and not (wch == 'X' and self.xres):
                R += self.group(wch, tt)
        return R

    def first_groups(self):
        R = []
        for t in range(max(self.nX, self.nW) - 1):
            if t < self.nX - 1 and not self.xres:
                R.append(self.group('X', t, tag=None if (self.static or t) else self.name + 'X0'))
            if t < self.nW - 1:
                R.append(self.group('W', t, tag=None if (self.static or t) else self.name + 'W0'))
        return R

    def live_ranges(self, b):
        R = []
        for t in range(b + 1, min(self.T, b + 1 + max(self.nX, self.nW))):
            if not self.xres and t < b + 1 + self.nX:
                R.append((self.xbase + self.xslot_of(t) * self.xsz, self.xbase + (self.xslot_of(t) + 1) * self.xsz))
            if t < b + 1 + self.nW:
                R.append((self.wbase + self.wslot_of(t) * self.wsz, self.wbase + (self.wslot_of(t) + 1) * self.wsz))
        return R

    def reads(self, t, kks, st):
        out = []
        xo = self.xslot_of(t) * self.xsz if self.static else 0
        wo = self.wslot_of(t) * self.wsz if self.static else 0
        for fi, kk in enumerate(kks):
            rx = []
            if not self.xres:
                for b in range(self.nxb):
                    o = xo + (b * 16 * self.xrow if self.xtype == 'rowk' else (b * self.KS + kk) * 1024)
                    rx.append(I('ds_read_b128 %s, v%d offset:%d' % (self.fX[st][fi][b].r(0, 4),
                                                                    self.aX[o >> self.ws][kk if self.xtype == 'rowk' else 0], o & ((1 << self.ws) - 1))))
            rw = []
            for b in range(self.nwb):
                if self.wfrag(t):
                    rw.append(I('ds_read_b128 %s, v%d offset:%d' % (self.fW[st][fi][b].r(0, 4), self.aWf, wo + (kk * self.TW // 16 + b) * 1024)))
                    continue
                for h in range(2):
                    o = wo + (32 * kk + (16 if self.kperm else 4) * h) * self.wrow + (b // self.naw) * self.naw * 32
                    rw.append(I('ds_read_b64_tr_b16 %s, v%d offset:%d' % (self.fW[st][fi][b].r(2 * h, 2), self.aW[o >> self.ws][b % self.naw], o & ((1 << self.ws) - 1))))
            out += (rx + rw) if self.wmajor else (rx[:1] + rw + rx[1:])
        return out

    def xfrag(self, t, st, fi, x):
        return self.fX[st][fi][x]

    def mfmas(self, t, st, zero=False):
        R = []
        for fi in range(self.FS):
            for x, w in ([(x, w) for w in range(self.nwb) for x in range(self.nxb)] if self.wmajor else
                         [(x, w) for x in range(self.nxb) for w in range(self.nwb)]):
                if True:
                    xa, wa = self.xfrag(t, st, fi, x).r(0, 4), self.fW[st][fi][w].r(0, 4)
                    a, b = (wa, xa) if self.swap else (xa, wa)
                    c = self.acc[x][w].r(0, 4)
                    R.append(I('%s %s, %s, %s, %s' % (MF, c, a, b, '0' if (zero and fi == 0) else c)))
        return R

    def geom(self):
        tile = self.mode == 'tile'
        nsteps = 1 if tile else self.KS
        nm = self.nm * self.FS
        return tile, nsteps, nm, nsteps * nm, (nsteps - 1) * nm

    def rdgap(self, i, stp=0):
        r = self.rdpg[stp] if isinstance(self.rdpg, (list, tuple)) else self.rdpg
        return int(i / r)

    def positions(self, n):
        tile, nsteps, nm, NG, bar = self.geom()
        nrd = len(self.reads(0, range(self.FS), 0))
        cnt = [0] * NG
        for stp in range(nsteps):
            for i in range(nrd):
                cnt[stp * nm + self.rdgap(i, stp)] += 1
        end = NG + bar - (0 if tile else max(2, nm // 4))
        cand = [g for g in range(bar, end - 1) if cnt[g % NG] == 0]
        if len(cand) < n:
            cand = [g for g in range(bar, end - 1) if cnt[g % NG] <= 1]
        if len(cand) < n:
            cand = list(range(bar, end - 1))
        return [cand[i * len(cand) // n] for i in range(n)]

    def split(self, items):
        NG = self.geom()[3]
        pos = self.positions(len(items))
        n3 = sum(1 for p in pos if p < NG)
        return list(zip(items[:n3], pos[:n3])), [(it, p - NG) for it, p in zip(items[n3:], pos[n3:])]

    def iter(self, t, late, early, extra=(), zero=False, last=False, tailcode=(), extra_mf=(), needs=None, xg=None, cap=2.0):
        s = self.s
        tile, nsteps, nm, NG, bar = self.geom()
        head = [[] for _ in range(NG)]
        gaps = [[] for _ in range(NG)]
        pre_gap = [[] for _ in range(NG)]
        load = [0.0] * NG
        par = t % 2 if tile else 0
        nrd = len(self.reads(0, range(self.FS), 0))
        lastrd = self.rdgap(nrd - 1, max(0, nsteps - 2))
        rds = [[] for _ in range(NG)]
        for stp in range(nsteps):
            cur = (stp + par) % 2
            nxt_tile = tile or stp == nsteps - 1
            if not (last and nxt_tile):
                rl = self.reads(t + 1 if nxt_tile else t, range(self.KS) if tile else [(stp + 1) % self.KS], 1 - cur)
                for i, r in enumerate(rl):
                    g = stp * nm + self.rdgap(i, stp)
                    assert g < (stp + 1) * nm
                    rds[g].append(r)
                    load[g] += 1 if len(rds[g]) == 1 else 2
            if not self.wmajor:
                pre_gap[stp * nm].append(I('s_waitcnt lgkmcnt(0)'))
            else:
                for w in range(0, self.nwb, 4):
                    regs = [self.fW[cur][0][u] for u in range(w, min(self.nwb, w + 4))] + (self.fX[cur][0] if w == 0 else [])
                    pre_gap[stp * nm + w * self.nxb].append(I('', needs=[r.r(k) for r in regs for k in range(4)]))
        if not self.static and not last:
            upd = []
            for rd, sz, n, d in ((s['xrd'], self.xsz, self.nX, T0), (s['wrd'], self.wsz, self.nW, T1)):
                upd += [L('s_add_u32 s%d, s%d, %d' % (d, rd, sz), 's_sub_u32 s%d, s%d, %d' % (T2, d, n * sz)),
                        L('s_min_u32 s%d, s%d, s%d' % (T2, d, T2), 's_sub_u32 s%d, s%d, s%d' % (d, T2, rd)),
                        L('s_mov_b32 s%d, s%d' % (rd, T2))]
            updv = [I('v_add_u32 v%d, s%d, v%d' % (a, T0, a)) for a in self.aX[0]]
            updv += [I('v_add_u32 v%d, s%d, v%d' % (a, T1, a)) for a in self.aW[0]]
            ub = max(0, nsteps - 2) * nm
            for i, u in enumerate(upd):
                gaps[ub + 1 + 2 * i].extend(u)
                load[ub + 1 + 2 * i] += len(u)
            room = nm - 1 - lastrd
            for i, u in enumerate(updv):
                g = ub + lastrd + 1 + (i * room // len(updv))
                gaps[g].append(u)
                load[g] += 1
        if needs is None:
            needs = []
            if not last:
                if self.static:
                    needs = [self.tag('W', t + 1)] + ([] if self.xres else [self.tag('X', t + 1)])
                else:
                    assert self.nW == 2 and self.nX == 3
                    needs = [self.tag('W', t + 1)]
        pre_gap[bar] = ([need(*needs)] if needs else []) + [I('s_waitcnt lgkmcnt(0)'), I('s_barrier')]
        for lst, lo, hi in ((late, 0, bar), (early, bar, NG)):
            prev = -1
            for i, (it, gi) in enumerate(lst):
                assert lo <= gi < hi or (not tile and lo <= gi < NG), (gi, lo, hi)
                if gi > lo and gi > prev:
                    gaps[gi - 1].extend(it.pre)
                    load[gi - 1] += len(it.pre)
                    head[gi].append(it.d)
                else:
                    head[gi].extend(it.pre + [it.d])
                    load[gi] += len(it.pre)
                load[gi] += 2
                prev = gi
                nxt = lst[i + 1][1] if i + 1 < len(lst) else gi + 6
                lim = min(nxt - 1, hi - 1)
                for q, pp in enumerate(it.post):
                    gq = min(gi + 1 + q, lim - 1)
                    if gq <= gi:
                        head[gi].extend(pp)
                        load[gi] += len(pp)
                    else:
                        gaps[gq].extend(pp)
                        load[gq] += len(pp)
        ex = [e if isinstance(e, (list, tuple)) else [e] for e in extra]
        g0, g1 = xg or (0, NG)
        g = g0
        for i, e in enumerate(ex):
            tgt = max(g, g0 + i * (g1 - g0) // len(ex))
            k = tgt
            room = g0 + (i + 1) * (g1 - g0) // len(ex) + 2
            c = sum(2 if x.kind in ('vst', 'vld', 'dma', 'trans') else 1 for x in e)
            while k < min(g1 - 1, room) and load[k] + min(c, cap) > cap:
                k += 1
            gaps[k].extend(e)
            load[k] += c
            g = k
        ms = []
        for stp in range(nsteps):
            ms += self.mfmas(t, (stp + par) % 2, zero=zero and stp == 0)
        out = []
        for g in range(NG):
            out.extend(pre_gap[g])
            out.append(ms[g])
            out.extend(rds[g])
            out.extend(head[g])
            out.extend(gaps[g])
        out += list(extra_mf) + list(tailcode)
        return out

    def zero_acc(self):
        P = []
        for x in range(self.nxb):
            for w in range(self.nwb):
                a = self.acc[x][w]
                for r in range(4):
                    P.append(I(('v_accvgpr_write_b32 %s, 0' if a.kind == 'a' else 'v_mov_b32 %s, 0') % a.r(r)))
        return P

    def start(self, needs=None):
        if needs is None:
            needs = [self.tag('W', 0)] + ([] if self.xres else [self.tag('X', 0)])
            if not self.static:
                needs = [self.name + 'W0', self.name + 'X0']
        return [need(*needs), I('s_barrier')] + self.reads(0, range(self.FS), 0)


def disjoint(r, ranges):
    return all(r[1] <= a or r[0] >= b for a, b in ranges)


def graft(g, b, own, queue, maxn):
    live = g.live_ranges(b)
    R = list(own)
    assert not (own and queue) or any('m0' in x.wr for x in queue[0].pre), 'grafted item would inherit a foreign m0'
    while queue and len(R) < maxn and disjoint(queue[0].lds, live):
        R.append(queue.pop(0))
    return R


def run_static(g, lab, cnt, Gf, opts=None, loop=None, late0=None):
    P = []
    late = late0 if late0 is not None else g.split(Gf(-1))[1]
    t = 0
    while t < g.T:
        if loop and t == loop[0]:
            a, b, per = loop
            assert (b - a) % per == 0
            P += L('s_mov_b32 s%d, %d' % (cnt, (b - a) // per), lab + '_loop:')
            for u in range(a, a + per):
                early, nl = g.split(Gf(u))
                tc = L('s_sub_u32 s%d, s%d, 1' % (cnt, cnt), 's_cmp_lg_u32 s%d, 0' % cnt, 's_cbranch_scc1 %s_loop' % lab) if u == a + per - 1 else []
                P += g.iter(u, late, early, tailcode=tc, **(opts(u) if opts else {}))
                late = nl
            t = b
            continue
        early, nl = g.split(Gf(t))
        kw = dict(opts(t)) if opts else {}
        if t == g.T - 1:
            kw['last'] = True
        P += g.iter(t, late, early, **kw)
        late = nl
        t += 1
    return P, [it for it, p in late]
```

```python
from asmlib import *
from engine import *

MB = 1 << 20
WS_K, WS_V, WS_Q, WS_HC, WS_Z2N, WS_G, WS_PART = 0, 16 * MB, 32 * MB, 48 * MB, 68 * MB, 72 * MB, 73 * MB
HC_KS = 156
HC_RB = HC_KS * 1024
HC_SIZE = 128 * HC_RB
P_X, P_CKV, P_WQ, P_WUK, P_WUV, P_WO, P_BX, P_WIN, P_WSP, P_BSP, P_WOUT, P_GATE, P_OUT, P_DBG, P_WS = [40 + 2 * i for i in range(15)]

SA = dict(xsrd=8, wsrd=12, xoff=20, woff=21, xslot=22, wslot=23, xrd=24, wrd=25)
SB = dict(xsrd=88, wsrd=92, xoff=36, woff=37, xslot=38, wslot=39)
OSRD, AUX, CNT = 16, 4, 28
QSRD = 88
E0, E1, E2, E3 = 84, 85, 29, 30
BANK = (8, 38)
MISC = 68
ACC0 = 72
VL16 = 6
VSTAMP = 7
LOG2E = 1.4426950408889634


def f2u(x):
    import struct
    return struct.unpack('<I', struct.pack('<f', x))[0]


def entry(nwg, endlab):
    return L('s_cmp_ge_u32 s2, %d' % nwg, 's_cbranch_scc1 %s' % endlab,
             's_load_dwordx16 s[40:55], s[0:1], 0', 's_load_dwordx8 s[56:63], s[0:1], 64',
             's_load_dwordx4 s[64:67], s[0:1], 96', 's_load_dwordx2 s[68:69], s[0:1], 112',
             'v_lshrrev_b32 v1, 6, v0', 'v_readfirstlane_b32 s%d, v1' % WAVE, 'v_and_b32 v0, 63, v0',
             'v_lshlrev_b32 v%d, 4, v0' % VL16)


def srd(dst, ptr, size, off=0):
    if off:
        P = L('s_add_u32 s%d, s%d, %d' % (dst, ptr, off), 's_addc_u32 s%d, s%d, 0' % (dst + 1, ptr + 1))
    else:
        P = L('s_mov_b32 s%d, s%d' % (dst, ptr), 's_mov_b32 s%d, s%d' % (dst + 1, ptr + 1))
    return P + L('s_mov_b32 s%d, %d' % (dst + 2, size), 's_mov_b32 s%d, 0x20000' % (dst + 3))


def store4(src, va, off, flags='', soff=E1, base=E0, srd_=OSRD):
    src = src if isinstance(src, Reg) else Reg('v', src)
    hi, lo = off & ~4095, off & 4095
    P = L('s_add_u32 s%d, s%d, %d' % (soff, base, hi)) if hi else []
    P.append(I('buffer_store_dwordx4 %s, v%d, s[%d:%d], s%d offen offset:%d %s' % (
        src.r(0, 4), va, srd_, srd_ + 3, soff if hi else base, lo, flags)))
    return P


def with_pre(items, pre):
    items[0].pre = list(pre) + items[0].pre
    return items


pr = lambda r: 'v[%d:%d]' % (r, r + 1)


def items_code(items):
    return flat([it.all() for it in items])


class KV:
    NV = 14
    DA = 152

    def __init__(self, sSB, sH, sKV, stflags=''):
        self.__dict__.update(locals())
        frags = [256 + 4 * i for i in range(32)]
        self.g2 = []
        for isK in (True, False):
            pairs = [((x, 2 * p), (x, 2 * p + 1)) for x in range(8) for p in range(4)] if isK else \
                    [((2 * p, w), (2 * p + 1, w)) for p in range(4) for w in range(8)]
            amap = {}
            vlo = list(range(ACC0, 200, 4))
            for k, (a, b) in enumerate(pairs):
                if k < 14:
                    amap[a], amap[b] = 200 + 4 * k, vlo.pop(0)
                elif k < 23:
                    amap[a], amap[b] = vlo.pop(0), vlo.pop(0)
                else:
                    amap[a], amap[b] = 256 + 184 + 8 * (k - 23), 256 + 188 + 8 * (k - 23)
            accs = [amap[x, w] for x in range(8) for w in range(8)]
            g = Gemm('kv', 256, 256, 2, 2, 16, 'rowk', 2048, 8192, isK, 3, 2, SA, BANK[0], accs, frags, rdpg=0.5)
            g.pairs = pairs
            self.g2.append(g)
        self.g = self.g2[0]
        assert self.g.vend <= BANK[0] + 30

    def prologue(self):
        g = self.g
        G = g.first_groups()
        with_pre(G[0], srd(SA['xsrd'], P_CKV, 4 * MB) + L('s_lshl_b32 s%d, s%d, 19' % (SA['xoff'], self.sSB)) + g.setup_x())
        with_pre(G[1], L('s_cmp_eq_u32 s%d, 0' % self.sKV,
                         's_cselect_b32 s%d, s%d, s%d' % (SA['wsrd'], P_WUK, P_WUV),
                         's_cselect_b32 s%d, s%d, s%d' % (SA['wsrd'] + 1, P_WUK + 1, P_WUV + 1),
                         's_mov_b32 s%d, %d' % (SA['wsrd'] + 2, 8 * MB), 's_mov_b32 s%d, 0x20000' % (SA['wsrd'] + 3),
                         's_lshl_b32 s%d, s%d, 9' % (SA['woff'], self.sH)) + g.setup_w())
        return G

    def off(self, isK, k):
        return (k // 4) * 8192 + (k % 4) * 1024 if isK else (k // 8) * 16384 + (k % 8) * 1024

    def pack(self, isK, tmp):
        g = self.g2[0 if isK else 1]
        P = srd(OSRD, P_WS, 32 * MB) + g.wx_expr(E1)
        P += L('s_lshl_b32 s%d, s%d, 1' % (E0, self.sSB), 's_add_u32 s%d, s%d, s%d' % (E0, E0, E1), 's_lshl_b32 s%d, s%d, 16' % (E0, E0))
        P += g.ww_expr(E1)
        P += L('s_lshl_b32 s%d, s%d, %d' % (E1, E1, 12 if isK else 13), 's_add_u32 s%d, s%d, s%d' % (E0, E0, E1),
               's_lshl_b32 s%d, s%d, 20' % (E1, self.sH), 's_add_u32 s%d, s%d, s%d' % (E0, E0, E1))
        if not isK:
            P += L('s_add_u32 s%d, s%d, %d' % (E0, E0, WS_V))
        P += L('s_mov_b32 s%d, %d' % (E2, 8192 - 4096 if isK else 0), 's_mov_b32 s%d, %d' % (E3, 8192 - 4096 if isK else 16384 - 8192))
        order = list(range(23, 32)) + list(range(14, 23)) + list(range(14))
        dslot = 0
        self.qloc = {}
        for n, k in enumerate(order):
            a, b = g.acc[g.pairs[k][0][0]][g.pairs[k][0][1]], g.acc[g.pairs[k][1][0]][g.pairs[k][1][1]]
            t = tmp[n % len(tmp)]
            if a.kind == 'a':
                for u, tl in enumerate((a, b)):
                    for r in range(4):
                        P.append(I('v_accvgpr_read_b32 v%d, %s' % (t + 4 + 4 * u + r, tl.r(r))))
                src = [t + 4 + i for i in range(8)]
                d = t
            else:
                src = [a.base + i for i in range(4)] + [b.base + i for i in range(4)]
                d = a.base
            for r in range(4):
                P.append(I('v_cvt_pk_bf16_f32 v%d, v%d, v%d' % (d + r, src[2 * r], src[2 * r + 1])))
            if k >= 23:
                P += store4(d, VL16, self.off(isK, k), self.stflags)
                P[-1].wr.add('tag:kvst')
            elif k >= 14:
                da = self.DA + 4 * dslot
                dslot += 1
                for r in range(4):
                    P.append(I('v_accvgpr_write_b32 a%d, v%d' % (da + r, d + r)))
                self.qloc[k] = Reg('a', da)
            else:
                self.qloc[k] = Reg('v', d)
        return P

    def stores(self):
        R = []
        for k in range(23):
            grp = []
            if k and k % 4 == 0:
                grp += L('s_add_u32 s%d, s%d, 4096' % (E0, E0), 's_add_u32 s%d, s%d, s%d' % (E0, E0, E3 if k % 8 == 0 else E2))
            grp.append(I('buffer_store_dwordx4 %s, v%d, s[%d:%d], s%d offen offset:%d %s' % (
                self.qloc[k].r(0, 4), VL16, OSRD, OSRD + 3, E0, (k % 4) * 1024, self.stflags), tag='kvst'))
            R.append(grp)
        return R


class QJ:
    QP = 136

    def __init__(self, sQB, sH, stflags=''):
        self.__dict__.update(locals())
        amap = {}
        for x in range(2):
            for p in range(8):
                amap[x, 2 * p], amap[x, 2 * p + 1] = self.QP + 4 * (x * 8 + p), ACC0 + 4 * (x * 8 + p)
        accs = [amap[x, w] for x in range(2) for w in range(16)]
        frags = [256 + 4 * i for i in range(36)]
        self.g = Gemm('q', 128, 256, 4, 1, 7, 'rowk', 896, 8192, True, 4, 3, SB, BANK[1], accs, frags, static=True, x0=2, rdpg=(1.25, 1.1), wmajor=True)
        assert self.g.vend <= BANK[1] + 30

    def prologue(self):
        g = self.g
        G = g.first_groups()
        return [G[0], G[2], G[1], G[3], G[4]]

    def setup(self):
        g = self.g
        return srd(SB['xsrd'], P_X, 2048 * 896) + L('s_mul_i32 s%d, s%d, %d' % (SB['xoff'], self.sQB, 128 * 896)) + g.setup_x() + \
            srd(SB['wsrd'], P_WQ, 448 * 8192) + L('s_lshl_b32 s%d, s%d, 9' % (SB['woff'], self.sH)) + g.setup_w()

    def pack(self):
        g = self.g
        P = L('v_mov_b32 v4, 0x%x' % f2u(LOG2E / 16))
        for x in range(2):
            for p in range(8):
                a, b = g.acc[x][2 * p].base, g.acc[x][2 * p + 1].base
                for r in (a, a + 2, b, b + 2):
                    P.append(I('v_pk_mul_f32 %s, %s, %s op_sel_hi:[1,0]' % (pr(r), pr(r), pr(4))))
                for i, r in enumerate((a, a + 2, b, b + 2)):
                    P.append(I('v_cvt_pk_bf16_f32 v%d, v%d, v%d' % (a + i, r, r + 1)))
        return P

    def store_setup(self, sbase, enable):
        P = srd(QSRD, P_WS, 16 * MB, off=WS_Q) + L(*enable) + L('s_cselect_b32 s%d, %d, 0' % (QSRD + 2, 16 * MB))
        P += L('s_lshl_b32 s%d, s%d, 2' % (sbase, self.sQB), 's_add_u32 s%d, s%d, s%d' % (sbase, sbase, WAVE), 's_lshl_b32 s%d, s%d, 14' % (sbase, sbase),
               's_lshl_b32 s%d, s%d, 20' % (U0, self.sH), 's_add_u32 s%d, s%d, s%d' % (sbase, sbase, U0))
        return P

    def stores(self, sbase):
        R = []
        for k in range(16):
            grp = L('s_add_u32 s%d, s%d, 4096' % (sbase, sbase)) if (k and k % 4 == 0) else []
            grp.append(I('buffer_store_dwordx4 v[%d:%d], v%d, s[%d:%d], s%d offen offset:%d %s' % (
                self.QP + 4 * k, self.QP + 4 * k + 3, VL16, QSRD, QSRD + 3, sbase, (k % 4) * 1024, self.stflags), tag='kvst'))
            R.append(grp)
        return R


GC0 = -2.0 * LOG2E * 0.7978845608028654
GC1 = GC0 * 0.044715


def gelu_regs(regs, vC0, vC1, tmps):
    P = []
    n = len(tmps)
    for i0 in range(0, len(regs), n):
        grp = list(zip(regs[i0:i0 + n], tmps))
        g2 = grp[0::2]
        P += [I('v_pk_mul_f32 %s, %s, %s' % (pr(t), pr(x), pr(x))) for x, t in g2]
        P += [I('v_pk_fma_f32 %s, %s, %s, %s' % (pr(t), pr(t), pr(vC1), pr(vC0))) for x, t in g2]
        P += [I('v_pk_mul_f32 %s, %s, %s' % (pr(t), pr(t), pr(x))) for x, t in g2]
        P += [I('v_exp_f32 v%d, v%d' % (t, t)) for x, t in grp]
        P += [I('v_pk_add_f32 %s, %s, 1.0 op_sel_hi:[1,0]' % (pr(t), pr(t))) for x, t in g2]
        P += [I('v_rcp_f32 v%d, v%d' % (t, t)) for x, t in grp]
        P += [I('v_pk_mul_f32 %s, %s, %s' % (pr(x), pr(x), pr(t))) for x, t in g2]
    return P


def gelu_consts(vC0, vC1):
    return L('v_mov_b32 v%d, 0x%x' % (vC0, f2u(GC0)), 'v_mov_b32 v%d, 0x%x' % (vC0 + 1, f2u(GC0)),
             'v_mov_b32 v%d, 0x%x' % (vC1, f2u(GC1)), 'v_mov_b32 v%d, 0x%x' % (vC1 + 1, f2u(GC1)))


def xlane_reduce(reg, tmp, op):
    return L('v_mov_b32 v%d, v%d' % (tmp, reg), 'v_permlane32_swap_b32 v%d, v%d' % (reg, tmp),
             '%s v%d, v%d, v%d' % (op, reg, reg, tmp),
             'v_mov_b32 v%d, v%d' % (tmp, reg), 'v_permlane16_swap_b32 v%d, v%d' % (reg, tmp),
             '%s v%d, v%d, v%d' % (op, reg, reg, tmp))


class Z2:
    XST = 104 * 1024
    RED = 65536 + 6144

    def __init__(self, sRB, stflags=''):
        self.__dict__.update(locals())
        self.A = [ACC0 + 4 * i for i in range(8)]
        self.TM = list(range(104, 112))
        self.ZP = 112
        self.ST = 224
        self.XF = 256 + 32
        g = self.g = Gemm('z', 64, 128, 1, 4, 49, 'rowk', 896, 3584, False, 7, 10, SB, BANK[1], self.A, [256 + 4 * i for i in range(8)],
                          mode='tile', static=True, xres=True, xbase=self.XST, wbase=0, rdpg=1)
        g.xfrag = lambda t, st, fi, x: uni(self.XF + 4 * (x * 14 + 2 * (t % 7) + fi))
        assert g.vend <= 58
        self.C0, self.C1 = 58, 60

    def wg(self, t):
        return self.g.group('W', t, wstep=(64 * 3584 if t % 7 != 6 else (256 - 6 * 64 * 3584) & 0xffffffff))

    def zq(self, c, p, w):
        return self.ZP + ((c * 2 + p) * 2 + w) * 4

    def post_chunk(self, c):
        P = []
        for x in range(4):
            regs = [self.A[x * 2 + w] + r for w in range(2) for r in range(4)]
            P += gelu_regs(regs, self.C0, self.C1, self.TM)
            for i in range(0, 8, 2):
                s1, s2 = self.ST + 4 * x + (i & 2), self.ST + 16 + 4 * x + (i & 2)
                P.append(I('v_pk_add_f32 %s, %s, %s' % (pr(s1), pr(s1), pr(regs[i]))))
                P.append(I('v_pk_fma_f32 %s, %s, %s, %s' % (pr(s2), pr(regs[i]), pr(regs[i]), pr(s2))))
                P.append(I('v_cvt_pk_bf16_f32 v%d, v%d, v%d' % (self.zq(c, x // 2, i // 4) + 2 * (x % 2) + (i & 2) // 2, regs[i], regs[i] + 1)))
        return P

    def run(self, between, nxt_queue):
        g = self.g
        P = srd(SB['wsrd'], P_WIN, 448 * 3584) + L('s_mov_b32 s%d, 1792' % SB['woff']) + g.setup_w() + items_code(self.wg(0))
        P += srd(SB['xsrd'], P_X, 2048 * 896) + L('s_mul_i32 s%d, s%d, %d' % (SB['xoff'], self.sRB, 64 * 896)) + g.setup_x()
        for t in range(7):
            P += items_code(g.group('X', t, tag='zX'))
        for t in range(1, 6):
            P += items_code(self.wg(t))
        P += between
        P += g.setup_read() + gelu_consts(self.C0, self.C1) + [I('v_mov_b32 v%d, 0' % (self.ST + i)) for i in range(32)]
        P += [need('zX', g.tag('W', 0)), I('s_barrier')]
        P += g.reads(0, range(2), 0)
        for t in range(7):
            for kk in range(2):
                for x in range(4):
                    P.append(I('ds_read_b128 %s, v%d offset:%d' % (g.xfrag(t, 0, kk, x).r(0, 4), g.aX[0][kk], t * 8192 + x * 2048)))
        P.append(STAMP(41))

        def Gf(t):
            own = []
            if t == 0:
                own = flat([self.wg(u) for u in range(6, 11)])
            elif 0 < t and t + 10 < 49:
                own = self.wg(t + 10)
            if t + 10 >= 49:
                own = graft(g, t, own, nxt_queue, 6)
            return own
        for t in range(49):
            c = t // 7
            early, _ = g.split(Gf(t))
            P += g.iter(t, [], early, zero=(t % 7 == 0), last=(t == 48),
                        tailcode=((self.post_chunk(c) if c < 6 else []) + [STAMP(42 + c)]) if t % 7 == 6 else [])
        return P

    def epi(self):
        g = self.g
        P = self.post_chunk(6)
        A = lambda x: P.append(I(x))
        ST = self.ST
        for sh in (8, 4, 2, 1):
            for i in range(32):
                A('v_add_f32_dpp v%d, v%d, v%d row_ror:%d row_mask:0xf bank_mask:0xf' % (ST + i, ST + i, ST + i, sh))
        P += L('v_lshrrev_b32 v2, 4, v0', 'v_lshlrev_b32 v2, 4, v2', 'v_add_u32 v2, %d, v2' % self.RED,
               's_lshl_b32 s%d, s%d, 9' % (U0, WAVE), 'v_add_u32 v3, s%d, v2' % U0)
        for i in range(8):
            A('ds_write_b128 v3, v[%d:%d] offset:%d' % (ST + 4 * i, ST + 4 * i + 3, 64 * i))
        P += L('s_waitcnt lgkmcnt(0)', 's_barrier')
        T = ACC0
        for i in range(8):
            A('ds_read_b128 v[%d:%d], v2 offset:%d' % (ST + 4 * i, ST + 4 * i + 3, 64 * i))
        for w in range(1, 4):
            for i in range(8):
                A('ds_read_b128 v[%d:%d], v2 offset:%d' % (T + 4 * i, T + 4 * i + 3, 512 * w + 64 * i))
            for i in range(0, 32, 2):
                A('v_pk_add_f32 %s, %s, %s' % (pr(ST + i), pr(ST + i), pr(T + i)))
        seqs = []
        for i in range(16):
            m, v = ST + i, ST + 16 + i
            seqs.append(L('v_mul_f32 v%d, 0x%x, v%d' % (m, f2u(1.0 / 896), m), 'v_mul_f32 v%d, 0x%x, v%d' % (v, f2u(1.0 / 896), v),
                          'v_fma_f32 v%d, -v%d, v%d, v%d' % (v, m, m, v), 'v_max_f32 v%d, 0, v%d' % (v, v),
                          'v_add_f32 v%d, 0x%x, v%d' % (v, f2u(1e-5), v), 'v_rsq_f32 v%d, v%d' % (v, v),
                          'v_mul_f32 v%d, -v%d, v%d' % (m, m, v)))
        for k in range(7):
            P += [q_[k] for q_ in seqs]
        P.append(STAMP(49))
        P += srd(OSRD, P_WS, 2048 * 1792, off=WS_Z2N)
        P += L('v_and_b32 v1, 15, v0', 'v_bfe_u32 v2, v0, 5, 1', 'v_bfe_u32 v3, v0, 4, 1', 'v_lshl_add_u32 v2, v3, 1, v2',
               'v_lshl_add_u32 v2, v2, 4, v1', 'v_lshlrev_b32 v5, 4, v2',
               's_mul_i32 s%d, s%d, %d' % (E0, self.sRB, 2 * 57344), 's_lshl_b32 s%d, s%d, 11' % (E1, WAVE),
               's_add_u32 s%d, s%d, s%d' % (E0, E0, E1))
        k = 0
        for c in range(7):
            for p in range(2):
                for w in range(2):
                    z = self.zq(c, p, w)
                    t = ACC0 + 8 * (k % 4)
                    k += 1
                    for r in range(4):
                        A('v_lshlrev_b32 v%d, 16, v%d' % (t + 2 * r, z + r))
                        A('v_and_b32 v%d, 0xffff0000, v%d' % (t + 2 * r + 1, z + r))
                    for r in range(4):
                        A('v_pk_fma_f32 %s, %s, %s, %s' % (pr(t + 2 * r), pr(t + 2 * r), pr(ST + 16 + 8 * p + 2 * r), pr(ST + 8 * p + 2 * r)))
                    for r in range(4):
                        A('v_cvt_pk_bf16_f32 v%d, v%d, v%d' % (z + r, t + 2 * r, t + 2 * r + 1))
                    A('v_permlane16_swap_b32 v%d, v%d' % (z, z + 2))
                    A('v_permlane16_swap_b32 v%d, v%d' % (z + 1, z + 3))
                    P += store4(z, 5, p * 57344 + c * 8192 + w * 1024, self.stflags)
        P.append(STAMP(50))
        return P


class GH:
    def __init__(self, sTB, sFB, stflags='', wfl=''):
        self.__dict__.update(locals())
        accs = [ACC0 + 4 * i for i in range(8)]
        g = self.g = Gemm('g', 128, 64, 2, 2, 39, 'rowk', 896, 3584, True, 6, 6, SA, BANK[0], accs, [256 + 4 * i for i in range(24)],
                          mode='tile', static=True, rdpg=1.15, wfl=wfl, x0=1, w0=3)
        v = g.vend
        self.vX2 = list(range(v, v + g.ndx))
        self.vW2 = [v + g.ndx]
        g.aWf = v + g.ndx + 1
        g.wfrag = lambda t: t >= 7
        assert v + g.ndx + g.ndw <= BANK[0] + 30
        self.Z, self.GA, self.bias, self.C0, self.C1, self.TM = 104, 200, 216, 220, 222, list(range(224, 232))
        self.GF = [144, 148] + [224 + 4 * i for i in range(8)] + [96 + 4 * i for i in range(4)]

    def grp(self, which, t, wait_z2=()):
        g = self.g
        if which == 'X':
            pre = (srd(SA['xsrd'], P_WSP, 8 * MB) + L('s_lshl_b32 s%d, s%d, 19' % (SA['xoff'], self.sTB))) if t == 7 else None
            return g.group('X', t, vregs=self.vX2 if t >= 7 else None, pre=pre)
        pre = (list(wait_z2) + srd(SA['wsrd'], P_WS, 2048 * 1792, off=WS_Z2N) + L('s_lshl_b32 s%d, s%d, 12' % (SA['woff'], self.sFB))) if t == 7 else None
        return g.group('W', t, vregs=self.vW2 if t >= 7 else None, wstep=64 * (1792 if t >= 7 else 3584), pre=pre)

    def prologue(self):
        g = self.g
        G = []
        for t in range(6):
            G += [self.grp('X', t), self.grp('W', t)]
        return [G[i] for i in (0, 1, 2, 3, 4, 5, 7, 9, 11, 6, 8, 10)]

    def side_loads(self, part):
        P = srd(AUX, P_GATE, 896) + L('v_lshrrev_b32 v1, 4, v0', 'v_lshlrev_b32 v1, 4, v1')
        for k in (range(10) if part == 0 else range(10, 14)):
            P.append(I('buffer_load_dwordx4 a[%d:%d], v1, s[4:7], 0 offen offset:%d' % (self.GF[k], self.GF[k] + 3, 64 * k)))
        if part == 0:
            return P
        P += srd(AUX, P_BSP, 4096) + self.g.wx_expr(U1)
        P += L('v_and_b32 v1, 15, v0', 's_lshl_b32 s%d, s%d, 7' % (U0, self.sTB), 's_lshl_b32 s%d, s%d, 6' % (U1, U1),
               's_add_u32 s%d, s%d, s%d' % (U0, U0, U1), 'v_add_lshl_u32 v1, s%d, v1, 1' % U0)
        for x in range(4):
            P.append(I('buffer_load_ushort v%d, v1, s[4:7], 0 offen offset:%d' % (self.bias + x, x * 32)))
        return P

    def setup(self):
        g = self.g
        return srd(SA['xsrd'], P_X, 2048 * 896) + L('s_mul_i32 s%d, s%d, %d' % (SA['xoff'], self.sTB, 128 * 896)) + g.setup_x() + \
            srd(SA['wsrd'], P_WIN, 448 * 3584) + L('s_lshl_b32 s%d, s%d, 7' % (SA['woff'], self.sFB)) + g.setup_w()

    def prep(self):
        g = self.g
        W = L('s_lshr_b32 s%d, s%d, 1' % (U0, WAVE), 's_mul_i32 s%d, s%d, 57344' % (U1, U0), 's_lshl_b32 s%d, s%d, 11' % (U0, U0),
              's_add_u32 s%d, s%d, %d' % (U0, U0, g.wbase), 'v_add_u32 v%d, s%d, v%d' % (g.aWf, U0, VL16),
              's_and_b32 s%d, s%d, 1' % (U0, WAVE), 's_lshl_b32 s%d, s%d, 11' % (U0, U0), 's_add_u32 s%d, s%d, s%d' % (U0, U0, U1),
              'v_add_u32 v%d, s%d, v%d' % (self.vW2[0], U0, VL16))
        return g.setup_read() + g.voff_x(self.vX2, 4096) + W

    def gate_mf(self, t):
        g = self.g
        R = []
        for kk in range(2):
            gf = self.GF[2 * t + kk]
            for x in range(4):
                c = 'v[%d:%d]' % (self.GA + 4 * x, self.GA + 4 * x + 3)
                R.append(I('%s %s, a[%d:%d], %s, %s' % (MF, c, gf, gf + 3, g.fX[t % 2][kk][x].r(0, 4), '0' if (t == 0 and kk == 0) else c)))
        return R

    def switch(self):
        g = self.g
        P = gelu_consts(self.C0, self.C1)
        acc = [g.acc[x][w].base + r for x in range(4) for w in range(2) for r in range(4)]
        P += gelu_regs(acc, self.C0, self.C1, self.TM)
        for k in range(5):
            for x in range(4):
                a = self.GA + 4 * x
                P.append(I(['v_mul_f32 v%d, 0x%x, v%d' % (a, f2u(-LOG2E), a), 'v_exp_f32 v%d, v%d' % (a, a), 'v_add_f32 v%d, 1.0, v%d' % (a, a),
                            'v_rcp_f32 v%d, v%d' % (a, a), 'v_sub_f32 v%d, 1.0, v%d' % (a + 2, a)][k]))
        for i in range(0, 32, 2):
            P.append(I('v_pk_mul_f32 %s, %s, %s op_sel_hi:[1,0]' % (pr(self.Z + i), pr(acc[i]), pr(self.GA + 4 * (i // 8) + 2))))
        P += g.ww_expr(U1) + L('s_or_b32 s%d, s%d, s%d' % (U1, U1, self.sFB), 's_cmp_lg_u32 s%d, 0' % U1, 's_cbranch_scc1 gh_ng')
        P += srd(AUX, P_WS, 8192, off=WS_G) + g.wx_expr(U1)
        P += L('s_lshl_b32 s%d, s%d, 1' % (U0, self.sTB), 's_add_u32 s%d, s%d, s%d' % (U0, U0, U1), 's_lshl_b32 s%d, s%d, 8' % (U0, U0),
               'v_and_b32 v1, 15, v0', 'v_lshlrev_b32 v1, 2, v1')
        for x in range(4):
            P.append(I('buffer_store_dword v%d, v1, s[4:7], s%d offen offset:%d %s' % (self.GA + 4 * x, U0, x * 64, self.stflags), tag='gst'))
        P += L('gh_ng:')
        return P

    def epi(self):
        g = self.g
        P = srd(OSRD, P_WS, HC_SIZE, off=WS_HC) + g.wx_expr(E1)
        P += L('s_lshl_b32 s%d, s%d, 1' % (E0, self.sTB), 's_add_u32 s%d, s%d, s%d' % (E0, E0, E1),
               's_mul_i32 s%d, s%d, %d' % (E0, E0, 4 * HC_KS), 's_lshl_b32 s%d, s%d, 1' % (E1, self.sFB),
               's_add_u32 s%d, s%d, s%d' % (E0, E0, E1))
        P += g.ww_expr(E1) + L('s_add_u32 s%d, s%d, s%d' % (E0, E0, E1), 's_lshl_b32 s%d, s%d, 10' % (E0, E0))
        for x in range(4):
            P.append(I('v_lshlrev_b32 v%d, 16, v%d' % (self.C0, self.bias + x)))
            a = g.acc[x][0].base
            for r in range(0, 8, 2):
                P += L('v_pk_add_f32 %s, %s, %s op_sel_hi:[1,0]' % (pr(a + r), pr(a + r), pr(self.C0)),
                       'v_pk_mul_f32 %s, %s, %s' % (pr(a + r), pr(a + r), pr(self.Z + x * 8 + r)))
            for r in range(4):
                P.append(I('v_cvt_pk_bf16_f32 v%d, v%d, v%d' % (a + r, a + 2 * r, a + 2 * r + 1)))
            P += store4(a, VL16, x * HC_RB, self.stflags)
        return P


XSLEEP = [8]
OUTFL = ['']
WS_XP = 84 * MB


class FIN:
    NH = 4

    def __init__(self, sTB, sMB, sS, xfl=''):
        S = dict(xsrd=8, wsrd=12, xoff=20, woff=21, xslot=22, wslot=23, xslots=[22, 24], wslots=[23, 25])
        self.__dict__.update(locals())
        self.AC = 128
        self.GR = [88, 89, 90, 91]
        g = self.g = Gemm('f', 128, 128, 2, 2, 20, 'frag', HC_RB, 896, True, 4, 4, S, 118, [self.AC + 4 * i for i in range(16)],
                          [256 + 4 * i for i in range(32)], BK=64, kperm=True, mode='tile', static=True, rdpg=1, xfl=xfl, gran=self.GR)
        assert g.vW[-1] <= 123
        g.aX = [[84], [85]]
        g.aW = [[86, 87, 88, 89], [90, 91, 92, 93]]

    def grp(self, which, t):
        S = self.S
        pre = None
        if which == 'W' and t == self.NH:
            pre = srd(S['wsrd'], P_WO, 4096 * 896) + L('s_mul_i32 s%d, s%d, %d' % (S['woff'], self.sS, 1024 * 896),
                                                       's_lshl_b32 s%d, s%d, 8' % (T3, self.sMB), 's_add_u32 s%d, s%d, s%d' % (S['woff'], S['woff'], T3))
        if which == 'X' and t == 2:
            pre = L('s_cmp_eq_u32 s%d, 3' % self.sS, 's_cselect_b32 s%d, 0, s%d' % (S['xsrd'] + 2, S['xsrd'] + 2))
        if which == 'X' and t == self.NH:
            pre = L('s_mov_b32 s%d, %d' % (S['xsrd'] + 2, HC_SIZE), 's_mul_i32 s%d, s%d, %d' % (S['xoff'], self.sTB, 8 * HC_RB),
                    's_lshl_b32 s%d, s%d, 15' % (T3, self.sS), 's_add_u32 s%d, s%d, s%d' % (S['xoff'], S['xoff'], T3),
                    's_add_u32 s%d, s%d, %d' % (S['xoff'], S['xoff'], 28 * 1024))
        return self.g.group(which, t, pre=pre)

    def setup_dma(self, vcur):
        g, S, GR = self.g, self.S, self.GR
        P = L('v_readfirstlane_b32 s%d, v%d' % (GR[3], vcur))
        for k in range(4):
            P += L('s_add_u32 s%d, s%d, 32768' % (GR[k], GR[k - 1]), 's_sub_u32 s%d, s%d, 163840' % (T3, GR[k]),
                   's_min_u32 s%d, s%d, s%d' % (GR[k], GR[k], T3))
        P += srd(S['xsrd'], P_WS, HC_SIZE, off=WS_HC) + L('s_mul_i32 s%d, s%d, %d' % (S['xoff'], self.sTB, 8 * HC_RB),
                                                          's_lshl_b32 s%d, s%d, 13' % (T3, self.sS),
                                                          's_add_u32 s%d, s%d, s%d' % (S['xoff'], S['xoff'], T3))
        P += g.voff_x(g.vX, HC_RB, t=(124, 125), st0=T3)
        P += srd(S['wsrd'], P_WOUT, 896 * 896) + L('s_mul_i32 s%d, s%d, %d' % (S['woff'], self.sS, 256 * 896),
                                                   's_lshl_b32 s%d, s%d, 8' % (T3, self.sMB),
                                                   's_add_u32 s%d, s%d, s%d' % (S['woff'], S['woff'], T3))
        P += g.voff_w(g.vW, 896, t=(124, 125, 126), st0=T3)
        P += L('s_lshl_b32 s%d, s%d, 12' % (T3, WAVE))
        for k, r in enumerate(S['xslots'] + S['wslots']):
            P += L('s_add_u32 s%d, s%d, s%d' % (r, GR[k], T3))
        return P

    def loop(self, hooks={}, pre12=()):
        NH = self.NH

        def Gf(t):
            if t < 0 or t + 4 >= 20:
                return []
            R = self.grp('W', t + 4)
            if t + 4 >= NH + 4:
                R += with_pre(self.grp('X', t + 4), pre12 if t + 4 == 12 else [])
            return R

        def opts(t):
            kw = dict(zero=(t == 0))
            kw.update(hooks.get(t, {}))
            if t == NH - 1:
                kw['last'] = True
                kw['tailcode'] = kw.get('tailcode', []) + items_code(flat([self.grp('X', u) for u in range(NH, NH + 4)])) + \
                    [need(self.g.tag('X', NH), self.g.tag('W', NH)), I('s_barrier')] + self.g.reads(NH, range(2), NH % 2)
            return kw
        P, _ = run_static(self.g, 'fin', CNT, Gf, opts=opts)
        return P

    def slot_base(self, dst, tmp):
        return L('s_lshl_b32 s%d, s%d, 2' % (dst, self.sTB), 's_add_u32 s%d, s%d, s%d' % (dst, dst, self.sMB), 's_lshl_b32 s%d, s%d, 2' % (dst, dst),
                 's_add_u32 s%d, s%d, s%d' % (dst, dst, self.sS), 's_lshl_b32 s%d, s%d, 2' % (dst, dst),
                 's_add_u32 s%d, s%d, s%d' % (dst, dst, WAVE), 's_lshl_b32 s%d, s%d, 13' % (dst, dst))

    def clear(self, v):
        R = [srd(AUX, P_WS, 64 * 16 * 8192, off=WS_XP) + self.slot_base(T0, None) + L(*['v_mov_b32 v%d, -1' % (v + i) for i in range(4)])]
        for k in range(8):
            R.append(store4(v, VL16, k * 1024, 'sc1', soff=T1, base=T0, srd_=AUX))
        return R

    def epi(self, end):
        g = self.g
        A = lambda x: P.append(I(x))
        P = srd(OSRD, P_WS, 64 * 16 * 8192, off=WS_XP) + self.slot_base(E0, None)
        for x in range(4):
            for p in range(2):
                a, b = g.acc[x][2 * p].base, g.acc[x][2 * p + 1].base
                for i, r in enumerate((a, a + 2, b, b + 2)):
                    A('v_cvt_pk_bf16_f32 v%d, v%d, v%d' % (a + i, r, r + 1))
                P += store4(a, VL16, (x * 2 + p) * 1024, 'sc1')
        P.append(STAMP(55))
        P += g.ww_expr(T3) + L('s_lshl_b32 s%d, s%d, 1' % (T1, self.sMB), 's_add_u32 s%d, s%d, s%d' % (T1, T1, T3),
                               's_cmp_ge_u32 s%d, 7' % T1, 's_cbranch_scc1 %s' % end)
        P += L('s_lshl_b32 s%d, s%d, 15' % (T3, self.sS), 's_sub_u32 s%d, s%d, s%d' % (E0, E0, T3),
               's_lshl_b32 s%d, s%d, 11' % (T3, self.sS), 's_add_u32 s%d, s%d, s%d' % (E0, E0, T3),
               'v_and_b32 v2, 15, v0', 'v_mul_u32_u24 v2, 896, v2', 'v_bfe_u32 v3, v0, 4, 1', 'v_lshl_add_u32 v2, v3, 5, v2',
               'v_lshrrev_b32 v3, 5, v0', 'v_lshl_add_u32 v5, v3, 4, v2', 's_mov_b32 s%d, 0' % T0, 'fx_again:')
        for sp in range(4):
            if sp:
                A('s_add_u32 s%d, s%d, %d' % (E1, E0, 32768 * sp))
            for p in range(2):
                d = 16 + (sp * 2 + p) * 4
                A('buffer_load_dwordx4 v[%d:%d], v%d, s[%d:%d], s%d offen offset:%d sc1' % (d, d + 3, VL16, OSRD, OSRD + 3, E1 if sp else E0, p * 1024))
        A('v_max3_u32 v8, v16, v17, v18')
        for r in range(19, 47, 2):
            A('v_max3_u32 v8, v8, v%d, v%d' % (r, r + 1))
        P += L('v_max_u32 v8, v8, v47', 'v_cmp_eq_u32 vcc, -1, v8', 's_add_u32 s%d, s%d, 1' % (T0, T0), 's_cmp_ge_u32 s%d, 400000' % T0,
               's_cbranch_scc1 fx_go', 's_cbranch_vccz fx_go', 's_sleep %d' % XSLEEP[0], 's_branch fx_again', 'fx_go:')
        P.append(STAMP(56))
        P += srd(AUX, P_OUT, 2048 * 896) + g.wx_expr(T3)
        P += L('s_lshl_b32 s%d, s%d, 1' % (E0, self.sTB), 's_add_u32 s%d, s%d, s%d' % (E0, E0, T3), 's_lshl_b32 s%d, s%d, 2' % (E0, E0),
               's_add_u32 s%d, s%d, s%d' % (E0, E0, self.sS), 's_mul_i32 s%d, s%d, %d' % (E0, E0, 16 * 896),
               's_lshl_b32 s%d, s%d, 7' % (T1, T1), 's_add_u32 s%d, s%d, s%d' % (E0, E0, T1))
        for p in range(2):
            acc = 64 + 8 * p
            for sp in range(4):
                d = 16 + (sp * 2 + p) * 4
                t = acc if sp == 0 else 48
                for r in range(4):
                    A('v_lshlrev_b32 v%d, 16, v%d' % (t + 2 * r, d + r))
                    A('v_and_b32 v%d, 0xffff0000, v%d' % (t + 2 * r + 1, d + r))
                if sp:
                    for r in range(4):
                        A('v_pk_add_f32 %s, %s, %s' % (pr(acc + 2 * r), pr(acc + 2 * r), pr(t + 2 * r)))
            for r in range(4):
                A('v_cvt_pk_bf16_f32 v%d, v%d, v%d' % (acc + r, acc + 2 * r, acc + 2 * r + 1))
            A('v_permlane16_swap_b32 v%d, v%d' % (acc, acc + 2))
            A('v_permlane16_swap_b32 v%d, v%d' % (acc + 1, acc + 3))
            P += store4(acc, 5, p * 64, OUTFL[0], srd_=AUX)
        return P


WS_FL = 96 * MB
FL_GRP, FL_G, FL_TB, FL_PAIR, FL_H, FL_X, FL_SIZE = 0, 1024, 1152, 2176 + 128, 4352 + 128, 8704, 16384
FSRD = 0


def flag_srd():
    return srd(FSRD, P_WS, FL_SIZE, off=WS_FL)


def z2_signal(lab):
    return L('s_cmp_lg_u32 s%d, 0' % WAVE, 's_cbranch_scc1 %s_ns' % lab, 'v_mov_b32 v1, 0', 'v_mov_b32 v2, 1', 's_mov_b64 exec, 1',
             'global_atomic_add v1, v2, s[%d:%d]' % (P_DBG, P_DBG + 1), 's_mov_b64 exec, -1', lab + '_ns:')


def signal(lab, off_sreg, only_wave0=True, va=1, vb=2):
    P = L('s_cmp_lg_u32 s%d, 0' % WAVE, 's_cbranch_scc1 %s_ns' % lab) if only_wave0 else []
    P += L('v_mov_b32 v%d, 0' % va, 'v_mov_b32 v%d, 1' % vb, 's_mov_b64 exec, 1',
           'buffer_store_dword v%d, v%d, s[%d:%d], s%d offen sc1' % (vb, va, FSRD, FSRD + 3, off_sreg), 's_mov_b64 exec, -1')
    return P + (L(lab + '_ns:') if only_wave0 else [])


def poll_load(vaddr, vdst, dbg=False):
    if dbg:
        return I('global_load_dword v%d, v%d, s[%d:%d] sc1' % (vdst, vaddr, P_DBG, P_DBG + 1))
    return I('buffer_load_dword v%d, v%d, s[%d:%d], 0 offen sc1' % (vdst, vaddr, FSRD, FSRD + 3))


def poll_check(lab, vaddr, vdst, tgt, sc=U1, maxit=400000, dbg=False):
    return L('s_mov_b32 s%d, 0' % sc, lab + '_chk:', 'v_cmp_le_u32 vcc, %d, v%d' % (tgt, vdst),
             's_cmp_eq_u64 vcc, -1', 's_cbranch_scc1 %s_ok' % lab,
             's_add_u32 s%d, s%d, 1' % (sc, sc), 's_cmp_ge_u32 s%d, %d' % (sc, maxit), 's_cbranch_scc1 %s_ok' % lab,
             's_sleep 1') + [poll_load(vaddr, vdst, dbg)] + L('s_waitcnt vmcnt(0)', 's_branch %s_chk' % lab, lab + '_ok:')


def lanes_addr(vaddr, base_s, first, count, tmp):
    return L('v_min_u32 v%d, %s, v0' % (tmp, count - 1 if isinstance(count, int) else count), 'v_lshlrev_b32 v%d, 2, v%d' % (tmp, tmp),
             'v_add_u32 v%d, s%d, v%d' % (vaddr, base_s, tmp)) + (L('v_add_u32 v%d, %d, v%d' % (vaddr, 4 * first, vaddr)) if first else [])
```

```python
import sys, json
from asmlib import *
from engine import *
from jobs import *
import attn

HDR = open('gated_mix__compressed_kv_cla__mixer_gmlp__prompt.s.ref').read().split('; Override')[0]

sPF = 87
sID = 52


def relabel(Q, tag):
    return [I(x.text.replace('@', tag)) if '@' in x.text else x for x in Q]


def retag(Q, tag):
    return [I(x.text.replace('@', tag)) if '@' in x.text else x for x in Q]


def pf_switch(ptr, size, n):
    return srd(AUX, ptr, size) + L('s_lshl_b32 s%d, s%d, 2' % (sPF, sID), 's_add_u32 s%d, s%d, s%d' % (sPF, sPF, WAVE),
                                   's_lshl_b32 s%d, s%d, %d' % (sPF, sPF, 6 + PFS[0]))


def pf_seq(dst, n):
    R = []
    for i in range(n):
        R += [pf_load(dst, sPF, 0, sparse=True)] + L('s_add_u32 s%d, s%d, %d' % (sPF, sPF, 65536 << PFS[0]))
    return R


PFS = [4]
VPS = 37


def pf_load(dst, soff, o, sparse=False):
    if sparse and PFS[0] > 4:
        d = I('buffer_load_dword %s, v%d, s[4:7], s%d offen offset:%d' % (dst[0] + dst[2:].split(':')[0], VPS, soff, o))
    else:
        d = I('buffer_load_dwordx4 %s, v%d, s[4:7], s%d offen offset:%d' % (dst, VL16, soff, o))
    d.wr = {'tag:pf'}
    return d


def mega(name, opt):
    XSLEEP[0] = opt.get('xsleep', 8)
    st = opt.get('st', 'sc1')
    ld = opt.get('ld', 'sc1')
    npf = opt.get('npf', 1)
    PFS[0] = opt.get('pfs', 4)
    nld = lambda size: -(-size // (65536 << PFS[0]))
    ALLPF = {c: (p, sz, nld(sz)) for c, p, sz in (('q', P_WQ, 448 * 8192), ('s', P_WSP, 8 * MB), ('o', P_WO, 4096 * 896), ('u', P_WOUT, 896 * 896))}
    UP = [ALLPF[c] for c in opt.get('up', '')]
    PF = [ALLPF[c] for c in opt.get('inl', 'qs')]
    HD = [ALLPF[c] for c in opt.get('hd', 'ou')]
    inloop = npf if PF else 0
    sSB, sH, sKV, sIDX, sTB, sFB, sFl, sQst = 70, 71, 72, 73, 82, 83, 100, 101
    attn.EXP['ldflags'] = ld
    end = 'L_end_' + name
    P = entry(256, end)
    if opt.get('cpf', 1):
        P += L('s_getpc_b64 s[4:5]', 'L_pc:', 's_lshr_b32 s6, s2, 3', 's_lshl_b32 s6, s6, 2', 's_add_u32 s6, s6, s%d' % WAVE,
               's_lshl_b32 s6, s6, 10', 'v_add_u32 v1, s6, v%d' % VL16, 's_mov_b32 s7, L_codeend-L_pc-16')
        for k in range(2):
            P += L('v_min_u32 v2, s7, v1')
            d = I('global_load_dwordx4 v[%d:%d], v2, s[4:5]' % (MISC, MISC + 3))
            d.wr = {'tag:pf'}
            P += [d] + L('v_add_u32 v1, 131072, v1')
    P += L('s_and_b32 s3, s2, 7', 's_lshr_b32 s%d, s2, 3' % sIDX, 's_lshr_b32 s%d, s%d, 2' % (sSB, sIDX),
           's_and_b32 s%d, s%d, 1' % (sKV, sIDX), 's_bfe_u32 s6, s%d, 0x10001' % sIDX, 's_lshl_b32 s%d, s3, 1' % sH,
           's_add_u32 s%d, s%d, s6' % (sH, sH),
           's_lshr_b32 s%d, s3, 1' % sTB, 's_lshl_b32 s%d, s%d, 2' % (sTB, sTB), 's_and_b32 s6, s%d, 3' % sIDX,
           's_add_u32 s%d, s%d, s6' % (sTB, sTB),
           's_and_b32 s6, s3, 1', 's_mul_i32 s6, s6, 7', 's_min_u32 s%d, s%d, 6' % (sFB, sSB), 's_add_u32 s%d, s%d, s6' % (sFB, sFB),
           's_lshl_b32 s%d, s3, 7' % sFl, 's_mov_b32 s%d, s2' % 26)
    fTB, fMB, fS = 53, 98, 99
    fin = FIN(fTB, fMB, fS, xfl=ld)
    P += L('v_lshlrev_b32 v%d, %d, v0' % (VPS, PFS[0]))
    P += attn.decode()
    P += L('s_waitcnt lgkmcnt(0)', 's_mov_b32 s%d, s2' % sID) + flag_srd()
    TLB = []
    if opt.get('tlb', 0):
        sh = opt['tlb']
        dst = 'v%d' % MISC
        def touch(ptr, size):
            n = -(-size // (64 << sh))
            R = srd(AUX, ptr, size)
            for k in range(n):
                d = I('buffer_load_dword %s, v1, s[4:7], s%d offen sc1' % (dst, U0))
                d.wr = {'tag:pf'}
                R += L('s_mov_b32 s%d, %d' % (U0, k * (64 << sh))) + [d]
            return R
        TLB = L('v_lshlrev_b32 v1, %d, v0' % sh) + touch(P_WS, 100 * MB)
        for ptr, size in ((P_WQ, 448 * 8192), (P_WSP, 8 * MB), (P_WO, 4096 * 896), (P_WOUT, 896 * 896), (P_OUT, 2048 * 896), (P_X, 2048 * 896),
                          (P_WUK, 8 * MB), (P_WUV, 8 * MB), (P_CKV, 4 * MB)):
            TLB += touch(ptr, size)
        if opt.get('tlbw0', 1):
            TLB = L('s_cmp_lg_u32 s%d, 3' % WAVE, 's_cbranch_scc1 @_notlb') + TLB + L('@_notlb:')
    FIN_IDS = L('s_lshr_b32 s%d, s%d, 8' % (fS, sFl), 's_bfe_u32 s%d, s%d, 0x10007' % (fTB, sFl), 's_lshl_b32 s%d, s%d, 3' % (fTB, fTB),
                's_lshr_b32 s%d, s%d, 2' % (fMB, sIDX), 's_add_u32 s%d, s%d, s%d' % (fTB, fTB, fMB), 's_and_b32 s%d, s%d, 3' % (fMB, sIDX))
    z2 = Z2(sQst, stflags=st)
    kv = KV(sSB, sH, sKV, stflags=st)
    for g_ in kv.g2:
        g_.wfl = opt.get('kvwfl', '')
    OUTFL[0] = opt.get('outfl', '')
    q = QJ(attn.sOwn, attn.sH, stflags=st)
    gh = GH(sTB, sFB, stflags=st, wfl=opt.get('ghld', ld))
    if 'ghrd' in opt:
        gh.g.rdpg = opt['ghrd']
    vPA, vPD, vPZA, vPZ = MISC, MISC + 1, MISC + 2, MISC + 3
    sWG = 29
    addr_k = lanes_addr(vPA, sFl, 0, 28, vPD) + L('v_and_b32 v%d, 15, v0' % vPD, 'v_lshlrev_b32 v%d, 2, v%d' % (vPD, vPD),
                                                   'v_add_u32 v%d, %d, v%d' % (vPD, FL_G, vPD), 'v_cmp_gt_u32 vcc, 32, v0',
                                                   'v_cndmask_b32 v%d, v%d, v%d, vcc' % (vPA, vPD, vPA))
    own_flag = lambda d: L('s_lshl_b32 s%d, s%d, 2' % (d, sIDX), 's_add_u32 s%d, s%d, s%d' % (d, d, sFl))
    a10, a11 = attn.vT[10], attn.vT[11]
    attn.LATE_CHECK[:] = lanes_addr(a10, sFl, 28, 4, a11) + [poll_load(a10, a11)] + poll_check('@_l', a10, a11, 1, sc=attn.t1)

    if npf:
        R = L('s_cmp_eq_u32 s%d, 0' % sPF, 's_cbranch_scc1 @_nopf')
        assert PFS[0] == 4 or not HD
        for ptr, size, n in HD:
            R += pf_switch(ptr, size, n) + pf_seq('a[252:255]', n)
        attn.HEAD_EXTRA[:] = R + L('s_mov_b32 s%d, 0' % sPF, '@_nopf:')

    def win_prefetch(dst):
        if not npf:
            return []
        R = pf_switch(P_WIN, 448 * 3584, 2) + pf_seq(dst, nld(448 * 3584))
        R += srd(AUX, P_CKV, 4 * MB) + L('s_lshl_b32 s%d, s%d, 2' % (U0, sID), 's_add_u32 s%d, s%d, s%d' % (U0, U0, WAVE),
                                         's_lshl_b32 s%d, s%d, 10' % (U0, U0), 's_add_u32 s%d, s%d, %d' % (U0, U0, 7 * 524288))
        R.append(pf_load(dst, U0, 0))
        R += upfront(dst)
        return R

    def upfront(dst, lst=None):
        R = []
        for ptr, size, n in (UP if lst is None else lst):
            R += pf_switch(ptr, size, n) + pf_seq(dst, n)
        return R

    g = kv.g
    pfi = lambda: [Item([], pf_load('v[%d:%d]' % (MISC, MISC + 3), sPF, 0, sparse=True),
                        [L('s_add_u32 s%d, s%d, %d' % (sPF, sPF, 65536 << PFS[0]))], (0, 0)) for i in range(inloop)]
    vWP = BANK[0] + 28
    wpd = opt.get('wpd', 2)

    def wpf(dist):
        d = I('buffer_load_dwordx4 v[%d:%d], v%d, s[%d:%d], s%d offen %s' % (MISC, MISC + 3, vWP, SA['wsrd'], SA['wsrd'] + 3, E1, opt.get('wpfl', '')))
        d.wr = {'tag:pf'}
        return Item(L('s_add_u32 s%d, s%d, %d' % (E1, SA['woff'], dist * 64 * 8192)), d, [], (0, 0))
    wp_setup = L('s_lshl_b32 s%d, s%d, 2' % (U0, sSB), 's_add_u32 s%d, s%d, s%d' % (U0, U0, WAVE), 's_lshl_b32 s%d, s%d, 14' % (U0, U0),
                 'v_lshrrev_b32 v1, 5, v0', 'v_lshlrev_b32 v1, 13, v1', 'v_and_b32 v2, 31, v0', 'v_lshl_add_u32 v1, v2, 4, v1',
                 'v_add_u32 v%d, s%d, v1' % (vWP, U0))
    def clr_item():
        return [Item([], I('buffer_store_dwordx4 v[%d:%d], v%d, s[%d:%d], s%d offen sc1' % (BANK[1], BANK[1] + 3, VL16, OSRD, OSRD + 3, E2)),
                     [L('s_add_u32 s%d, s%d, 1024' % (E2, E2))], (0, 0))]
    clr_setup = FIN_IDS + srd(OSRD, P_WS, 0, off=WS_XP) + fin.slot_base(E2, None) + \
        L('s_add_u32 s%d, s%d, 8192' % (OSRD + 2, E2)) + L(*['v_mov_b32 v%d, -1' % (BANK[1] + i) for i in range(4)])
    kvG = lambda gg, t: (gg.G(t)[:8] + [] + pfi() + ([wpf(wpd)] if wpd else []) + gg.G(t)[8:]) if opt.get('pfe', 1) else (gg.G(t) + pfi() + ([wpf(wpd)] if wpd else []))
    early_m1, late_m1 = g.split(kvG(g, -1))
    assert len([1 for it, p in early_m1 if it.d.kind == 'dma']) <= 14
    early_m1 = [(it, p) for it, p in early_m1 if it.d.kind == 'dma']
    kv_mid = g.setup_read() + kv.g2[0].zero_acc()
    if opt.get('exit') == 0:
        P += L('s_branch %s' % end)
    P += L('s_cmp_ge_u32 s%d, 28' % sIDX, 's_cbranch_scc1 L_roleZ')
    wp0 = (wp_setup + items_code([wpf(k) for k in range(wpd)])) if wpd else []
    P += items_code(flat(kv.prologue())) + items_code([it for it, p in early_m1]) + wp0 + win_prefetch('v[%d:%d]' % (MISC, MISC + 3)) + retag(TLB, 'tg')
    PG = P
    P = L('L_roleZ:', 's_lshr_b32 s%d, s%d, 5' % (sQst, sFl), 's_and_b32 s6, s%d, 3' % sIDX, 's_add_u32 s%d, s%d, s6' % (sQst, sQst))
    P += L('s_cmp_lg_u32 s%d, 224' % sID, 's_cbranch_scc1 L_noclr', 's_lshl_b32 s%d, s%d, 12' % (U0, WAVE))
    P += L(*['v_mov_b32 v%d, 0' % (ACC0 + i) for i in range(4)])
    P += L(*['buffer_store_dwordx4 v[%d:%d], v%d, s[0:3], s%d offen offset:%d sc1' % (ACC0, ACC0 + 3, VL16, U0, o) for o in (0, 1024, 2048, 3072)])
    P += L('L_noclr:')
    kp = kv.prologue()
    queue = kp[0] + kp[2] + kp[1]
    P += z2.run(pf_switch(P_WIN, 448 * 3584, 2) + pf_seq('v[68:71]', nld(448 * 3584)) + upfront('v[68:71]', PF + UP) + retag(TLB, 'tz'), queue) + [STAMP(9)]
    P += items_code(queue) + items_code([it for it, p in g.split(kvG(g, -1))[0] if it.d.kind == 'dma']) + z2.epi() + (wp_setup if wpd else [])
    PZ = P + L('s_branch L_kv')
    P = PG + L('L_kv:') + kv_mid + g.start()
    hooks = {}
    if inloop:
        it = 0
        for k, (ptr, size, n) in enumerate(PF):
            if k:
                hooks[it] = pf_switch(ptr, size, n)
            else:
                P += pf_switch(ptr, size, n)
            it += n // npf
        hooks[it] = L('s_mov_b32 s6, 0')
        assert it <= 13
    hooks[2] = hooks.get(2, []) + L('s_cmp_lt_u32 s%d, 28' % sIDX, 's_cbranch_scc1 @_nz') + z2_signal('@') + L('@_nz:')
    P += FIN_IDS
    P += L('s_mov_b32 s%d, 0' % CNT) + [STAMP(0)]
    P += L('s_cmp_eq_u32 s%d, 1' % sKV, 's_cbranch_scc1 L_V')
    ool = []
    qg = q.g
    for vi, gg in enumerate(kv.g2):
        lab = 'kv%d' % vi
        if vi:
            P += L('L_V:')
        early, late = gg.split(kvG(gg, 0))
        mask = sum(1 << c for c in hooks) | (1 << 13)
        tc = L('s_bitcmp0_b32 s%d, s%d' % (E0, CNT), 's_cbranch_scc1 %s' % lab, 's_branch %s_hk' % lab, '%s_x:' % lab)
        P += L('s_mov_b32 s%d, %d' % (E0, mask), lab + ':')
        P += gg.iter(0, late, early, tailcode=tc, extra=L('s_add_u32 s%d, s%d, 1' % (CNT, CNT)), xg=(40, 60))
        ool += L('%s_hk:' % lab)
        for cval, ins in sorted(hooks.items()):
            ool += L('s_cmp_lg_u32 s%d, %d' % (CNT, cval), 's_cbranch_scc1 %s_n%d' % (lab, cval)) + relabel(ins, lab) + L('s_branch %s' % lab, '%s_n%d:' % (lab, cval))
        ool += L('s_branch %s_x' % lab)
        late = gg.split(kvG(gg, 12))[1]
        qe, qlate = qg.split(qg.G(-1))
        queue = flat(q.prologue()) + [it for it, p in qe]
        for t in range(13, 16):
            early, nl = gg.split(graft(gg, t, gg.G(t), queue, 18))
            ex = {13: q.setup(), 14: qg.setup_read()}.get(t, [])
            P += gg.iter(t, late, early, last=(t == 15), extra=ex, xg=(0, 62) if t == 13 else None)
            late = nl
        P += [STAMP(1)] + items_code([it for it, p in late] + queue)
        P += kv.pack(vi == 0, [BANK[0], BANK[0] + 12])
        if vi == 0:
            P += L('s_branch L_q')
    kst = kv.stores()
    P += L('L_q:', 's_cmp_lt_u32 s%d, 28' % sIDX, 's_cbranch_scc1 L_q2') + flat(kv.stores()) + L('s_mov_b32 s%d, 0' % (OSRD + 2), 'L_q2:')
    if opt.get('exit') == 1:
        P += L('s_branch %s' % end)
    P += qg.start() + [STAMP(10)]
    if opt.get('nost'):
        kst = [[x for x in g_ if x.kind != 'vst'] or [I('s_nop 0')] for g_ in kst]
    queue = flat(gh.prologue())
    nq = opt.get('nqst', 2)

    def q_opts(t):
        ex = kst[nq * t:nq * t + nq]
        if t == 1:
            ex = ex + gh.setup()
        if t == 2:
            ex = ex + gh.prep()
        if t == 4:
            ex = ex + [gh.side_loads(0)]
        return dict(zero=(t == 0), extra=ex, tailcode=[STAMP(12 + t)])
    C, left = run_static(qg, 'q', CNT, lambda t: graft(qg, t, qg.G(t), queue, 14) if t >= 0 else qg.G(t), opts=q_opts)
    P += C + [STAMP(2)] + items_code(left + queue)
    rest = kst[7 * nq:]
    assert 7 * nq >= KV.NV
    npk = opt.get('npk', 6)
    P += attn.mix(q.pack(), rest[:npk])
    P += q.store_setup(sQst, ['s_cmp_eq_u32 s%d, 2' % attn.sMode])
    rest = rest[npk:] + q.stores(sQst)
    nsw = opt.get('nsw', 10)
    P += L('s_cmp_ge_u32 s%d, 28' % sIDX, 's_cbranch_scc1 L_roleZ2')
    gg = gh.g
    P += L('v_mov_b32 v%d, 0' % vPZA) + [poll_load(vPZA, vPZ, True)] + gh.side_loads(1) + gg.start() + [STAMP(11)]
    S0 = 2
    sl = attn.seg_loads(True)
    rngs = [((S0 + k) % 5 * 32768, ((S0 + k) % 5 + 1) * 32768) for k in range(5)]
    aq = attn.as_items(sl[0], rngs[0]) + attn.as_items(sl[2], rngs[1]) + attn.as_items(sl[3], rngs[2]) + \
        attn.as_items(sl[4], rngs[3]) + attn.as_items(sl[5], rngs[4])
    with_pre(aq, attn.kernel_setup(S0) + attn.gate_load(attn.sOwn, 232))
    aq[7].post = aq[7].post + [L('s_cmp_lg_u32 s%d, 1' % attn.sMode, 's_cbranch_scc1 L_noq') + sl[1][0] + L('L_noq:')]
    oq = attn.own_q(QJ.QP)
    ng = opt.get('ngst', 1)
    sw_st = rest[6 * ng:6 * ng + nsw]
    rest = rest[:6 * ng] + [[]] * ng + rest[6 * ng + nsw:]
    tsig = -(-len(rest) // ng) + opt.get('sigd', 5)
    if tsig == 12:
        tsig = 13

    def ghG(t):
        if t < 0:
            return []
        if t + 6 < 39:
            return gh.grp('W', t + 6, poll_check('wz', vPZA, vPZ, 32, dbg=True)) + gh.grp('X', t + 6)
        return graft(gg, t, [], aq, 8) if t >= 34 else []

    def gh_opts(t):
        kw = dict(zero=(t in (0, 7)), extra=[e for e in rest[ng * t:ng * t + ng] if e])
        tc = []
        if 23 <= t < 33:
            kw['extra'] = oq[13 * (t - 23):13 * (t - 22)]
        if t < 7:
            kw['extra_mf'] = gh.gate_mf(t)
        if t == 6:
            sw = gh.switch()
            tc = attn.mix(sw[:150], sw_st) + sw[150:]
        if t == 12:
            kw['needs'] = [gg.tag('W', t + 1), gg.tag('X', t + 1), 'gst']
            tc = L('s_cmp_lg_u32 s%d, 0' % sFB, 's_cbranch_scc1 gs_n', 's_lshl_b32 s%d, s%d, 2' % (U0, sTB),
                   's_add_u32 s%d, s%d, %d' % (U0, U0, FL_G)) + signal('gs', U0) + L('gs_n:')
        if t == tsig:
            kw['needs'] = [gg.tag('W', t + 1), gg.tag('X', t + 1), 'kvst']
            tc = own_flag(U0) + signal('ks', U0)
        if t == 30:
            tc = addr_k + [poll_load(vPA, vPD)]
        if t == 33:
            tc = poll_check('wk', vPA, vPD, 1)
        if t < 14 or t % 4 == 1:
            tc = tc + [STAMP(20 + (t if t < 14 else 14 + (t - 14) // 4))]
        kw['tailcode'] = tc
        return kw
    assert tsig not in (6, 12, 30, 33) and tsig <= 23
    C, left = run_static(gg, 'gh', CNT, ghG, opts=gh_opts)
    P += C + [STAMP(3)] + items_code(left + aq)
    P += gh.epi()
    P += L('v_mov_b32 v%d, v232' % attn.Gv[0], 'v_mov_b32 v%d, v233' % attn.Gv[1])
    P += L('s_lshl_b32 s%d, s%d, 4' % (U0, sTB), 's_add_u32 s%d, s%d, s%d' % (U0, U0, sFB), 's_lshl_b32 s%d, s%d, 2' % (U0, U0),
           's_add_u32 s%d, s%d, s%d' % (U0, U0, WAVE), 's_lshl_b32 s%d, s%d, 2' % (U0, U0), 's_add_u32 s%d, s%d, %d' % (attn.sPend, U0, FL_H))
    P += [need('aK0')] + [I('', needs=['a%d' % (attn.Qa + i) for i in range(64)])] + L('s_branch L_seg')
    P += L('L_roleZ2:', 'v_mov_b32 v%d, 0' % vPZA) + [poll_load(vPZA, vPZ, True)] + L('s_waitcnt vmcnt(0)', 's_barrier')
    P += poll_check('wzz', vPZA, vPZ, 32, dbg=True) + own_flag(U0) + signal('kz', U0)
    P += addr_k + [poll_load(vPA, vPD)] + poll_check('wkz', vPA, vPD, 1)
    sl = attn.seg_loads(None)
    P += attn.kernel_setup() + attn.gate_load(attn.sOwn, attn.Gv[0]) + flat(flat(sl))
    P += attn.own_q(QJ.QP)[:64] + [need('aK0')]
    vFA, vFD = 114, 115
    t0_, t1_ = attn.t0, attn.t1
    ctx_flag = L('s_lshl_b32 s%d, s%d, 4' % (U0, attn.sOwn), 's_add_u32 s%d, s%d, s%d' % (U0, U0, attn.sH), 's_lshl_b32 s%d, s%d, 2' % (U0, U0),
                 's_add_u32 s%d, s%d, %d' % (U0, U0, FL_TB))
    attn.PRE_FIN[:] = L('s_lshl_b32 s%d, s%d, 8' % (t0_, fTB), 's_lshl_b32 s%d, s%d, 6' % (t1_, fS), 's_add_u32 s%d, s%d, s%d' % (t0_, t0_, t1_),
                        's_add_u32 s%d, s%d, %d' % (t0_, t0_, FL_H), 's_cmp_eq_u32 s%d, 3' % fS, 's_cselect_b32 s%d, 7, 15' % t1_) + \
        lanes_addr(vFA, t0_, 0, 's%d' % t1_, vFD) + [poll_load(vFA, vFD)] + flat(fin.clear(124))
    attn.PRE_FIN2[:] = poll_check('@_h', vFA, vFD, 1, sc=t1_)
    attn.FIN_TAIL['setup'] = fin.setup_dma(attn.aV)
    attn.FIN_TAIL['groups'] = lambda: [it.all() for it in fin.grp('W', 0) + fin.grp('X', 0) + fin.grp('W', 1) + fin.grp('X', 1)]
    P += attn.run(stflags=st)
    fg = fin.g
    cbase = L('s_lshl_b32 s%d, s%d, 6' % (U0, fTB), 's_lshl_b32 s%d, s%d, 4' % (U1, fS), 's_add_u32 s%d, s%d, s%d' % (U0, U0, U1),
              's_add_u32 s%d, s%d, %d' % (U0, U0, FL_TB))
    hk = {1: dict(needs=[fg.tag('W', 2), fg.tag('X', 2), 'ctxst'], tailcode=ctx_flag + signal('cs', U0)),
          2: dict(tailcode=cbase + lanes_addr(vFA, U0, 0, 2, vFD) + [poll_load(vFA, vFD)]),
          3: dict(tailcode=[STAMP(52)] + poll_check('wc', vFA, vFD, 1) + [STAMP(53)]),
          6: dict(tailcode=L('v_add_u32 v%d, 8, v%d' % (vFA, vFA), 's_lshl_b32 s%d, s%d, 4' % (U0, attn.sOwn), 's_and_b32 s%d, s%d, 3' % (U1, attn.sH),
                             's_add_u32 s%d, s%d, s%d' % (U0, U0, U1), 's_lshl_b32 s%d, s%d, 2' % (U0, U0), 's_add_u32 s%d, s%d, %d' % (U0, U0, FL_TB),
                             'v_and_b32 v116, 3, v0', 'v_lshlrev_b32 v116, 4, v116', 'v_add_u32 v116, s%d, v116' % U0,
                             'v_cmp_gt_u32 vcc, 32, v0', 'v_cndmask_b32 v%d, v116, v%d, vcc' % (vFA, vFA)) + [poll_load(vFA, 116)])}
    if opt.get('exit') == 2:
        P += L('s_branch %s' % end)
    P += items_code(fin.grp('X', 2) + fin.grp('W', 2) + fin.grp('X', 3) + fin.grp('W', 3)) + fg.setup_read() + fg.start()
    P += [STAMP(51)] + fin.loop(hk, pre12=poll_check('wd', vFA, 116, 1)) + [STAMP(54)] + fin.epi(end) + L('s_branch %s' % end)
    P += ool + PZ
    P += L(end + ':', 's_endpgm', 'L_codeend:')
    return P, 163840


RT = '--rt' in sys.argv


def add_stamps(P, idx):
    out = L('s_memrealtime s[98:99]', 's_memtime s[52:53]')
    K = 0
    for i, p in enumerate(P):
        if p.kind == 'smem' and K == 0:
            out = out[:-0] if False else out
        if p.kind == 'dir' and p.op == '.stamp' and '--span' in sys.argv:
            continue
        if p.kind == 'dir' and p.op == '.stamp':
            out += L('s_memrealtime vcc' if RT else 's_memtime vcc', 's_waitcnt lgkmcnt(0)', 'v_writelane_b32 v%d, vcc_lo, %d' % (VSTAMP, 3 + p.ops[0]))
            continue
        if p.kind == 'branch' and p.target.startswith('L_end_') and i > 2:
            p = I(p.text.replace('L_end_', 'L_stamp_'))
        if p.kind == 'label' and p.op.startswith('L_end_'):
            out += L(p.op.replace('L_end_', 'L_stamp_') + ':',
                     's_waitcnt vmcnt(0)', 's_memrealtime s[98:99]', 's_memtime s[0:1]', 's_waitcnt lgkmcnt(0)',
                     'v_writelane_b32 v%d, s98, 1' % VSTAMP, 'v_writelane_b32 v%d, s0, 2' % VSTAMP,
                     's_lshl_b32 s3, s%d, 10' % sID, 's_lshl_b32 s4, s35, 8', 's_add_u32 s3, s3, s4', 's_add_u32 s3, s3, %d' % (100 * MB + idx * 262144),
                     'v_lshlrev_b32 v2, 2, v0', 'v_add_u32 v2, s3, v2', 'global_store_dword v2, v%d, s[68:69]' % VSTAMP)
        out.append(p)
        if p.kind == 'smem' and p.text.startswith('s_load_dwordx16'):
            pass
        if K == 0 and p.kind == 'wait' and p.lgkm == 0:
            K = 1
            out += L('v_mov_b32 v%d, 0' % VSTAMP, 'v_writelane_b32 v%d, s98, 0' % VSTAMP, 'v_writelane_b32 v%d, s96, 63' % VSTAMP)
    out[1] = I('s_memrealtime s[96:97]' if RT else 's_memtime s[96:97]')
    return out


def build(kernels, stamp=False):
    txt = HDR
    body = ''
    kds = ''
    for idx, (name, grid, fn) in enumerate(kernels):
        P, lds = fn(name)
        if stamp:
            P = add_stamps(P, idx)
        else:
            P = [p for p in P if not (p.kind == 'dir' and p.op == '.stamp')]
        prog = finalize(P)
        txt += '; @launch %sgrid=(%d,1,1) block=(256,1,1) lds=%d\n' % ('kernel=%s ' % name if len(kernels) > 1 else '', grid, lds)
        body += kernel_text(name, prog, 512)
        kds += kd_text(name, 512, 256)
    return txt + '.amdgcn_target "amdgcn-amd-amdhsa--gfx950"\n' + body + kds


if __name__ == '__main__':
    opt = {}
    for a_ in sys.argv:
        if a_.startswith('--exp='):
            attn.EXP.update(json.loads(a_[6:]))
        if a_.startswith('--opt='):
            opt = json.loads(a_[6:])
    ks = [('gated_mix__compressed_kv_cla__mixer_gmlp__prompt_kernel', 256, lambda n: mega(n, opt))]
    open(sys.argv[1], 'w').write(build(ks, stamp='--stamp' in sys.argv or '--span' in sys.argv))
```

```python
import re

TRANS = ('v_exp_f32', 'v_log_f32', 'v_rcp_f32', 'v_rsq_f32', 'v_sqrt_f32', 'v_sin_f32', 'v_cos_f32',
         'v_rcp_iflag_f32')
_REG = re.compile(r'^(-|abs\(|\|)?([vas])(\d+)\)?\|?$')
_RNG = re.compile(r'^(-|abs\(|\|)?([vas])\[(\d+):(\d+)\]\)?\|?$')


def regs_of(tok):
    tok = tok.strip()
    m = _REG.match(tok)
    if m:
        return [m.group(2) + m.group(3)]
    m = _RNG.match(tok)
    if m:
        return [m.group(2) + str(i) for i in range(int(m.group(3)), int(m.group(4)) + 1)]
    if tok in ('vcc', 'exec'):
        return [tok]
    if tok in ('vcc_lo', 'vcc_hi'):
        return ['vcc']
    if tok in ('exec_lo', 'exec_hi'):
        return ['exec']
    if tok == 'm0':
        return ['m0']
    return []


class Ins:
    __slots__ = ('text', 'op', 'wr', 'rd', 'kind', 'passes', 'ops', 'target', 'srcc', 'srcab', 'wide',
                 'vm', 'lgkm', 'dpp', 'cost', 'data')

    def __init__(self, text, tag=None, needs=None):
        self.text = text
        self.wr = set()
        self.rd = set()
        self.passes = 0
        self.target = None
        self.srcc = set()
        self.srcab = set()
        self.wide = False
        self.vm = None
        self.lgkm = None
        self.dpp = False
        self.data = set()
        t = text.split(';')[0].strip()
        if t.endswith(':'):
            self.kind = 'label'
            self.op = t[:-1]
            self.ops = []
            return
        if t == '' or t.startswith('.'):
            self.kind = 'dir'
            self.op = t
            self.ops = []
            if needs:
                self.kind = 'need'
                self.rd = set(needs)
            return
        parts = t.split(None, 1)
        op = parts[0]
        self.op = op
        rest = parts[1] if len(parts) > 1 else ''
        ops = []
        depth = 0
        cur = ''
        for ch in rest:
            if ch in '[(':
                depth += 1
            if ch in '])':
                depth -= 1
            if ch == ',' and depth == 0:
                ops.append(cur.strip())
                cur = ''
            else:
                cur += ch
        if cur.strip():
            ops.append(cur.strip())
        mods = []
        if ops:
            last = ops[-1].split()
            ops[-1] = last[0]
            mods = last[1:]
        self.ops = ops
        R = [regs_of(o) for o in ops]
        base = op
        for suf in ('_e32', '_e64', '_dpp', '_sdwa'):
            if base.endswith(suf):
                base = base[:-len(suf)]
        if op.endswith('_dpp') or any(m.startswith(('quad_perm', 'row_', 'wave_')) for m in mods):
            self.dpp = True
        if op.startswith('v_mfma'):
            self.kind = 'mfma'
            self.wr = set(R[0])
            self.srcab = set(R[1]) | set(R[2])
            self.srcc = set(R[3])
            self.rd = self.srcab | self.srcc
            self.passes = 8 if '32x32x16' in op else (4 if '16x16x32' in op else 16)
        elif op.startswith('ds_read') or op.startswith('ds_bpermute') or op.startswith('ds_swizzle') or op.startswith('ds_permute'):
            self.kind = 'dsr'
            self.wr = set(R[0])
            for r in R[1:]:
                self.rd |= set(r)
        elif op.startswith('ds_write') or op.startswith('ds_add') or op.startswith('ds_max'):
            self.kind = 'dsw'
            for r in R:
                self.rd |= set(r)
        elif op.startswith('buffer_load') or op.startswith('global_load'):
            if 'lds' in mods or op.startswith('global_load_lds'):
                self.kind = 'dma'
                for r in R:
                    self.rd |= set(r)
                self.rd.add('m0')
            else:
                self.kind = 'vld'
                self.wr = set(R[0])
                for r in R[1:]:
                    self.rd |= set(r)
        elif op.startswith('buffer_store') or op.startswith('global_store'):
            self.kind = 'vst'
            for r in R:
                self.rd |= set(r)
            d = R[0] if op.startswith('buffer') else R[1]
            self.data = set(d)
            self.wide = len(d) >= 3
        elif op.startswith('buffer_atomic') or op.startswith('global_atomic'):
            self.kind = 'vst'
            if 'sc0' in mods:
                self.kind = 'vld'
                self.wr = set(R[0])
                if op.startswith('buffer'):
                    for r in R:
                        self.rd |= set(r)
                else:
                    for r in R[1:]:
                        self.rd |= set(r)
            else:
                for r in R:
                    self.rd |= set(r)
        elif op in ('buffer_wbl2', 'buffer_inv'):
            self.kind = 'vst'
        elif op.startswith('s_load') or op.startswith('s_buffer_load') or op in ('s_memtime', 's_memrealtime') or op.startswith('s_atomic'):
            self.kind = 'smem'
            self.wr = set(R[0])
            for r in R[1:]:
                self.rd |= set(r)
            if op.startswith('s_atomic'):
                self.rd |= set(R[0])
        elif op == 's_waitcnt':
            self.kind = 'wait'
            m = re.search(r'vmcnt\((\d+)\)', t)
            self.vm = int(m.group(1)) if m else None
            m = re.search(r'lgkmcnt\((\d+)\)', t)
            self.lgkm = int(m.group(1)) if m else None
        elif op == 's_nop':
            self.kind = 'nop'
        elif op == 's_barrier':
            self.kind = 'barrier'
        elif op == 's_endpgm':
            self.kind = 'end'
        elif op == 's_branch' or op.startswith('s_cbranch'):
            self.kind = 'branch'
            self.target = ops[0]
            if 'vcc' in op:
                self.rd.add('vcc')
            if 'exec' in op:
                self.rd.add('exec')
            if 'scc' in op:
                self.rd.add('scc')
        elif op.startswith('s_'):
            self.kind = 'salu'
            if op.startswith('s_cmp') or op.startswith('s_bitcmp'):
                self.wr = {'scc'}
                for r in R:
                    self.rd |= set(r)
            elif op in ('s_setprio', 's_sleep', 's_setreg_imm32_b32', 's_setreg_b32', 's_sethalt'):
                pass
            else:
                if R:
                    self.wr = set(R[0])
                for r in R[1:]:
                    self.rd |= set(r)
                if 'saveexec' in op:
                    self.wr.add('exec')
                    self.rd.add('exec')
                if op in ('s_addk_i32', 's_mulk_i32', 's_cmov_b32', 's_cmov_b64'):
                    self.rd |= set(R[0])
                self.wr.add('scc')
        elif op.startswith('v_'):
            self.kind = 'trans' if base in TRANS else 'valu'
            self.wr = set(R[0])
            for r in R[1:]:
                self.rd |= set(r)
            if base.startswith('v_permlane') and 'swap' in base:
                self.wr |= set(R[1])
                self.rd |= set(R[0])
            if base in ('v_fmac_f32', 'v_dot2c_f32_bf16', 'v_pk_fmac_f16', 'v_writelane_b32') or self.dpp:
                self.rd |= set(R[0])
            if base in ('v_add_co_u32', 'v_sub_co_u32', 'v_addc_co_u32', 'v_subb_co_u32', 'v_subrev_co_u32',
                        'v_div_scale_f32', 'v_mad_u64_u32'):
                self.wr |= set(R[1])
                self.rd -= set(R[1]) if base not in ('v_addc_co_u32', 'v_subb_co_u32') else set()
            if base == 'v_div_fmas_f32':
                self.rd.add('vcc')
            if base.startswith('v_cmpx'):
                self.wr.add('exec')
        else:
            raise ValueError('unknown instruction: ' + text)
        if tag:
            self.wr |= {'tag:' + tag}
        if needs:
            self.rd |= set(needs)

    def is_valu(self):
        return self.kind in ('valu', 'trans')

    def states(self):
        if self.kind == 'nop':
            return int(self.ops[0], 0) + 1
        if self.kind in ('label', 'dir', 'need'):
            return 0
        return 1

    def __repr__(self):
        return self.text


def I(text, tag=None, needs=None):
    return Ins(text, tag, needs)


def need(*tags):
    return Ins('', needs=['tag:' + t for t in tags])


def _isv(r):
    return r[0] in 'va' and r[1:].isdigit()


def _iss(r):
    return (r[0] == 's' and r[1:].isdigit()) or r == 'vcc'


def req_states(p, c):
    n = 0
    pv = p.is_valu()
    cv = c.is_valu()
    if pv:
        wv = {r for r in p.wr if _isv(r)}
        ws = {r for r in p.wr if _iss(r)}
        if c.kind == 'mfma' and wv & c.rd:
            n = max(n, 2)
        if p.kind == 'trans' and cv and c.kind != 'trans' and (wv & c.rd):
            n = max(n, 1)
        if p.kind == 'trans' and (not cv) and (wv & c.rd):
            n = max(n, 1)
        if cv and ws & c.rd:
            n = max(n, 2)
            if c.op.startswith(('v_readlane', 'v_writelane', 'v_div_fmas')):
                n = max(n, 4)
        if c.kind in ('dma', 'vld', 'vst') and ws & c.rd:
            n = max(n, 5)
        if c.kind in ('salu', 'branch', 'smem') and ws & c.rd:
            n = max(n, 2)
        if cv and c.op.startswith(('v_readlane', 'v_readfirstlane')) and wv & c.rd:
            n = max(n, 1)
        if cv and c.dpp and wv & c.rd:
            n = max(n, 2)
        if cv and c.op.startswith('v_permlane') and wv & c.rd:
            n = max(n, 2)
        if 'exec' in p.wr:
            n = max(n, 5)
        if ('op_sel' in p.text or 'sdwa' in p.op or 'dst_sel' in p.text) and cv and (wv & (c.rd | c.wr)) and not p.op.startswith('v_pk_'):
            n = max(n, 1)
    if p.kind == 'salu' and 'm0' in p.wr and c.kind == 'dma':
        n = max(n, 1)
    if p.kind == 'salu' and 'exec' in p.wr and cv and c.dpp:
        n = max(n, 1)
    if p.kind == 'vst' and p.wide and (p.data & c.wr):
        n = max(n, 2)
    if p.kind == 'mfma':
        big = {2: 0, 4: 1, 8: 2, 16: 3}[p.passes]
        d = p.wr
        if c.kind == 'mfma':
            if d & c.srcc:
                if d == c.srcc and c.passes == p.passes:
                    n = max(n, (2, 0, 0, 0)[big])
                else:
                    n = max(n, (4, 6, 10, 18)[big])
            if d & c.srcab:
                n = max(n, (5, 8, 12, 20)[big])
            if (d & c.wr) and not (d & c.srcc):
                n = max(n, (4, 6, 10, 18)[big])
        else:
            if d & (c.rd | c.wr):
                n = max(n, (5, 8, 12, 20)[big])
            if cv and (p.srcc & c.wr):
                n = max(n, (1, 3, 7, 15)[big])
            if c.kind in ('dsr', 'vld') and (p.srcc & c.wr):
                n = max(n, (1, 3, 7, 15)[big])
    return n


MAXWIN = 20


def build_cfg(prog):
    labels = {ins.op: i for i, ins in enumerate(prog) if ins.kind == 'label'}
    succ = []
    for i, ins in enumerate(prog):
        s = []
        if ins.kind == 'end':
            pass
        elif ins.kind == 'branch':
            s.append(labels[ins.target])
            if ins.op != 's_branch' and i + 1 < len(prog):
                s.append(i + 1)
        elif i + 1 < len(prog):
            s.append(i + 1)
        succ.append(s)
    return labels, succ


VM_MAX = 63
LG_MAX = 15


def _merge(a, b):
    if a is None:
        return b, True
    ch = False
    out = []
    for x, y in ((a[0], b[0]), (a[1], b[1])):
        d = dict(x)
        for k, v in y.items():
            if k not in d or v < d[k]:
                d[k] = v
                ch = True
        out.append(d)
    sm = a[2] | b[2]
    if sm != a[2]:
        ch = True
    return (out[0], out[1], sm), ch


def _transfer(ins, st):
    vm, lg, sm = dict(st[0]), dict(st[1]), set(st[2])
    wv = wl = None
    touch = ins.rd | ins.wr
    if ins.kind in ('dsr', 'vld', 'dma', 'smem'):
        touch = ins.rd | {r for r in ins.wr if not r.startswith('tag:')}
    if ins.kind in ('vst', 'dsw'):
        touch = ins.rd
    for r in touch:
        if r in vm:
            wv = vm[r] if wv is None else min(wv, vm[r])
        if r in lg:
            wl = lg[r] if wl is None else min(wl, lg[r])
        if r in sm:
            wl = 0
    if wl is not None and sm:
        wl = 0
    if wv is not None:
        wv = min(wv, VM_MAX)
        vm = {k: v for k, v in vm.items() if v < wv}
    if wl is not None:
        wl = min(wl, LG_MAX)
        lg = {k: v for k, v in lg.items() if v < wl}
        if wl == 0:
            sm = set()
    if ins.kind == 'wait':
        if ins.vm is not None:
            vm = {k: v for k, v in vm.items() if v < ins.vm}
        if ins.lgkm is not None:
            if ins.lgkm == 0:
                lg = {}
                sm = set()
            elif not sm:
                lg = {k: v for k, v in lg.items() if v < ins.lgkm}
    if ins.kind in ('vld', 'vst', 'dma'):
        vm = {k: min(v + 1, 200) for k, v in vm.items()}
        for r in ins.wr:
            vm[r] = 0
    if ins.kind in ('dsr', 'dsw'):
        lg = {k: min(v + 1, 200) for k, v in lg.items()}
        for r in ins.wr:
            lg[r] = 0
    if ins.kind == 'smem':
        sm |= ins.wr
        sm.add('*smem*')
    return (vm, lg, sm), (wv, wl)


def insert_waits(prog):
    labels, succ = build_cfg(prog)
    n = len(prog)
    instate = [None] * n
    instate[0] = ({}, {}, set())
    work = [0]
    inwork = {0}
    while work:
        i = work.pop()
        inwork.discard(i)
        st = instate[i]
        while True:
            st, _ = _transfer(prog[i], st)
            ss = succ[i]
            if len(ss) == 1 and ss[0] == i + 1 and prog[i + 1].kind != 'label':
                i += 1
                instate[i] = st
                continue
            for s in ss:
                m, ch = _merge(instate[s], st)
                if ch:
                    instate[s] = m
                    if s not in inwork:
                        work.append(s)
                        inwork.add(s)
            break
    out = []
    for i, ins in enumerate(prog):
        if instate[i] is None:
            out.append(ins)
            continue
        _, (wv, wl) = _transfer(ins, instate[i])
        if wv is not None or wl is not None:
            t = 's_waitcnt'
            if wv is not None:
                t += ' vmcnt(%d)' % wv
            if wl is not None:
                t += ' lgkmcnt(%d)' % wl
            out.append(Ins(t))
        if ins.kind != 'need':
            out.append(ins)
    return out


def _preds(prog):
    labels, succ = build_cfg(prog)
    pred = [[] for _ in prog]
    for i, ss in enumerate(succ):
        for s in ss:
            pred[s].append(i)
    return pred


def fix_hazards(prog, verbose=False):
    total = 0
    changed = True
    while changed:
        changed = False
        pred = _preds(prog)
        out = []
        for i, c in enumerate(prog):
            if c.kind in ('label', 'dir', 'nop', 'wait', 'barrier', 'end'):
                out.append(c)
                continue
            needn = 0
            stack = [(p, 0) for p in pred[i]]
            seen = {}
            while stack:
                j, dist = stack.pop()
                if j in seen and seen[j] <= dist:
                    continue
                seen[j] = dist
                p = prog[j]
                r = req_states(p, c)
                if r > dist:
                    needn = max(needn, r - dist)
                nd = dist + p.states()
                if nd < MAXWIN:
                    for q in pred[j]:
                        stack.append((q, nd))
            if needn > 0:
                total += needn
                if verbose:
                    print('hazard pad %d before: %s' % (needn, c.text))
                while needn > 0:
                    k = min(needn, 16)
                    out.append(Ins('s_nop %d' % (k - 1)))
                    needn -= k
                changed = True
            out.append(c)
        prog = out
    return prog


def finalize(prog, verbose=False):
    prog = [p if isinstance(p, Ins) else Ins(p) for p in prog]
    prog = insert_waits(prog)
    prog = fix_hazards(prog, verbose)
    return prog


SHORT = {'v_mfma_f32_16x16x32_bf16': 'MM', 'ds_read_b128': 'RQ', 'ds_read_b64_tr_b16': 'RT', 'buffer_load_dwordx4': 'BL',
         'v_cvt_pk_bf16_f32': 'CV', 'v_accvgpr_write_b32': 'AW', 'v_accvgpr_read_b32': 'AR', 'buffer_store_dwordx4': 'BS',
         'v_pk_mul_f32': 'PM'}
MACROS = ''.join('.macro %s a:vararg\n %s \\a\n.endm\n' % (v, k) for k, v in SHORT.items())


def render(prog):
    out = []
    for p in prog:
        if p.kind == 'label':
            out.append(p.text)
        elif p.kind == 'need':
            continue
        else:
            t = p.text
            if p.op in SHORT:
                t = SHORT[p.op] + t[len(p.op):]
            out.append(' ' + t.replace(' offset:0 ', ' ').replace(' offset:0', '').replace(', ', ',').rstrip())
    return '\n'.join(out) + '\n'


def interleave(spine, fillers, per_gap, start=0):
    out = []
    q = list(fillers)
    acc = 0.0
    for k, m in enumerate(spine):
        out.append(m)
        if k >= start:
            acc += per_gap
            while acc >= 1.0 - 1e-9 and q:
                f = q.pop(0)
                if isinstance(f, (list, tuple)):
                    out.extend(f)
                else:
                    out.append(f)
                acc -= 1.0
    for f in q:
        if isinstance(f, (list, tuple)):
            out.extend(f)
        else:
            out.append(f)
    return out


def kernel_text(name, prog, vgpr, agpr_off=None, sgpr=102, extra=''):
    s = '.text\n.globl %s\n.p2align 8\n.type %s,@function\n%s:\n' % (name, name, name)
    s += render(prog)
    return s


def kd_text(name, nfv, accum, sgpr=102):
    return ('.section .rodata,"a"\n.p2align 6\n.amdhsa_kernel %s\n  .amdhsa_next_free_vgpr %d\n'
            '  .amdhsa_next_free_sgpr %d\n  .amdhsa_accum_offset %d\n  .amdhsa_group_segment_fixed_size 0\n'
            '  .amdhsa_kernarg_size 120\n  .amdhsa_user_sgpr_count 2\n  .amdhsa_user_sgpr_kernarg_segment_ptr 1\n'
            '  .amdhsa_system_sgpr_workgroup_id_x 1\n  .amdhsa_float_denorm_mode_32 3\n'
            '.end_amdhsa_kernel\n') % (name, nfv, sgpr, accum)


def STAMP(k):
    x = Ins('.stamp')
    x.ops = [k]
    return x
```

```python
from asmlib import *
from engine import *
from jobs import *

NEG = f2u(-1.0e9 * LOG2E)
THR = f2u(8.0)
SPLIT = 22
LDS_DROP = 0x30000

sK, sV, sQ, sPt = 8, 12, 16, 4
sKoff, sVoff, sKslot, sVslot, sEnd, sRing, sTile, t0, t1, t2, t3 = 20, 21, 22, 23, 24, 25, 27, 31, 32, 33, 34
sWave = 35
sThr, sPend, sDiag, sEvt, sEt, sEk, sE0 = 36, 37, 38, 26, 29, 30, 85
sH, sQI, sT0, sT1, sMode, sPair, sP2, sW8, sOwn, sNm = 74, 75, 76, 77, 78, 79, 80, 81, 86, 28
CMP = [88, 90, 92, 94]
sNext = 39

EXP = dict(nodma=False, nobar=False, nosm=False, noread=False, cap=2.0)
D_LEAD = 12
RING = 16
RINGB = 5 * 32768

vDma, aK, aV, vL16, vDma2 = 2, 3, 4, VL16, 1
NM = [8, 12]
Lr = [16, 17]
vT = list(range(18, 32))
Sreg = [32, 64]
Preg = 96
Gv = [112, 113]
vPF = 116
Ov = 128
Qa, Fa, PART, PST = 128, 0, 192, 64


def Sr(p, kb, qb):
    return Sreg[p] + (kb * 2 + qb) * 4


def Pr(ks, qb):
    return Preg + (ks * 2 + qb) * 4


def Or(db, qb):
    return Ov + (db * 2 + qb) * 4


def frag(j):
    b = Fa + (j % RING) * 4
    return 'a[%d:%d]' % (b, b + 3)


def kread(j):
    return I('ds_read_b128 %s, v%d offset:%d' % (frag(j), aK, j * 1024))


def vread(j):
    return I('ds_read_b128 %s, v%d offset:%d' % (frag(32 + j), aV, j * 1024))


def qk_mfmas(pn):
    R = []
    for j in range(32):
        kb, ds = j // 8, j % 8
        for qb in range(2):
            d = 'v[%d:%d]' % (Sr(pn, kb, qb), Sr(pn, kb, qb) + 3)
            c = 'v[%d:%d]' % (NM[qb], NM[qb] + 3) if ds == 0 else d
            q = Qa + (qb * 8 + ds) * 4
            R.append(I('%s %s, %s, a[%d:%d], %s' % (MF, d, frag(j), q, q + 3, c)))
    return R


def pv_mfmas():
    R = []
    for j in range(32):
        ks, db = j // 16, j % 16
        for qb in range(2):
            o = 'v[%d:%d]' % (Or(db, qb), Or(db, qb) + 3)
            R.append(I('%s %s, %s, v[%d:%d], %s' % (MF, o, frag(32 + j), Pr(ks, qb), Pr(ks, qb) + 3, o)))
    return R


def softmax_items(pc):
    exps, plains = [], []
    for ks in range(2):
        for qb in range(2):
            for u in range(4):
                kb = 2 * ks + u // 2
                a = Sr(pc, kb, qb) + 2 * (u % 2)
                p = Pr(ks, qb) + u
                exps.append(I('v_exp_f32 v%d, v%d' % (a, a)))
                exps.append(I('v_exp_f32 v%d, v%d' % (a + 1, a + 1)))
                n = len(exps)
                plains.append((I('v_add_f32 v%d, v%d, v%d' % (Lr[qb], Lr[qb], a)), n - 2, ks))
                plains.append((I('v_cvt_pk_bf16_f32 v%d, v%d, v%d' % (p, a, a + 1)), n - 1, ks))
                plains.append((I('v_add_f32 v%d, v%d, v%d' % (Lr[qb], Lr[qb], a + 1)), n - 1, ks))
    return exps, plains


def place_softmax(gaps, load, pc, g0, g1, cap, e0=0, p0=0, gsum=None, mid=None, addstop=None):
    exps, plains = softmax_items(pc)
    plains = plains[p0:]
    cv = [x for x in plains if 'cvt' in x[0].op]
    ad = [x for x in plains if 'cvt' not in x[0].op]
    epos = [-1] * e0
    ei = e0
    done = {}
    gsum = gsum or g1
    for g in range(g0, max(g1, gsum)):
        while True:
            if ei < len(exps) and load[g] + 2 <= cap:
                gaps[g].append(exps[ei])
                epos.append(g)
                load[g] += 2
                ei += 1
            elif cv and cv[0][1] < len(epos) and epos[cv[0][1]] < g and load[g] + 1 <= cap:
                x = cv.pop(0)
                gaps[g].append(x[0])
                load[g] += 1
                done[x[2]] = g
            elif ad and ad[0][1] < len(epos) and epos[ad[0][1]] < g and load[g] + 1 <= cap and (addstop is None or g < addstop):
                x = ad.pop(0)
                gaps[g].append(x[0])
                load[g] += 1
            else:
                break
    if mid:
        mid()
        for c2 in (cap, cap + 1):
            for g in range(addstop, gsum):
                while ad and epos[ad[0][1]] < g and load[g] + 1 <= c2 and (c2 == cap or load[g] == cap):
                    gaps[g].append(ad.pop(0)[0])
                    load[g] += 1
                    if c2 > cap:
                        break
    assert ei == len(exps) and not cv and not ad, (ei, len(cv), len(ad))
    return done


def max_stream(pn):
    r = [Sreg[pn] + i for i in range(32)]
    m = vT[0]
    out = [I('v_max3_f32 v%d, v%d, v%d, v%d' % (m, r[0], r[1], r[2]))]
    for i in range(3, 31, 2):
        out.append(I('v_max3_f32 v%d, v%d, v%d, v%d' % (m, m, r[i], r[i + 1])))
    out.append(I('v_max_f32 v%d, v%d, v%d' % (m, m, r[31])))
    out.append(I('v_cmp_lt_f32 vcc, s%d, v%d' % (sThr, m)))
    return out


def adv(reg, step, tmp):
    return [[I('s_add_u32 s%d, s%d, %d' % (reg, reg, step * 32768))],
            [I('s_sub_u32 s%d, s%d, %d' % (tmp, reg, RINGB)), I('s_min_u32 s%d, s%d, s%d' % (reg, reg, tmp))]]


def dma_group(which, step=2, tag=None):
    srd_, off, end, slot = (sK, sKoff, sEnd, sKslot) if which == 'K' else (sV, sVoff, sEnd, sVslot)
    G = [[I('s_cmp_lt_u32 s%d, s%d' % (off, end)), I('s_cselect_b32 s%d, %d, 0' % (srd_ + 2, 16 * MB)),
          I('s_cselect_b32 m0, s%d, %d' % (slot, LDS_DROP))]]
    for j in range(8):
        if j == 4:
            G.append([I('s_add_u32 m0, m0, 4096')])
        G.append([I('buffer_load_dwordx4 v%d, s[%d:%d], s%d offen offset:%d %s lds' % (vDma if j < 4 else vDma2, srd_, srd_ + 3, off, (j % 4) * 1024, EXP.get('ldflags', '')), tag=tag)])
    G.append([I('s_add_u32 s%d, s%d, 32768' % (off, off))])
    G += adv(slot, step, t3)
    return G


def rd_advance(which, step=2):
    a = aK if which == 'K' else aV
    return [[I('v_add_u32 v%d, %d, v%d' % (a, step * 32768, a))], [I('v_subrev_u32 v%d, s%d, v%d' % (vT[13], sRing, a))],
            [I('v_min_u32 v%d, v%d, v%d' % (a, a, vT[13]))]]


PRE_FIN = []
PRE_FIN2 = []
FIN_TAIL = dict(setup=[], groups=[])
HEAD_EXTRA = []
LATE_CHECK = []
LATE_TILE = 24


def early_event(lab, vm):
    P = L('s_mov_b32 s%d, 64' % sE0, 's_cmp_eq_u32 s%d, 0' % sPend, 's_cbranch_scc1 %s_np0' % lab, 's_waitcnt vmcnt(%d)' % vm)
    P += signal(None, sPend, only_wave0=False, va=vT[10], vb=vT[11]) + L('%s_np0:' % lab)
    return P + [I(x.text.replace('@', lab)) if '@' in x.text else x for x in HEAD_EXTRA]


def mask_block(lab, pn, back):
    P = [I(lab + ':')]
    A = lambda x: P.append(I(x))
    rl = lambda Q: [I(x.text.replace('@', lab)) if '@' in x.text else x for x in Q]
    P += L('s_cmp_lt_u32 s%d, s%d' % (sTile, sE0), 's_cbranch_scc1 %s_n0' % lab) + early_event(lab, 8) + L('%s_n0:' % lab)
    P += L('s_cmp_lt_u32 s%d, s%d' % (sTile, sEt), 's_cbranch_scc1 %s_d' % lab,
           's_cmp_eq_u32 s%d, 1' % sEk, 's_cbranch_scc1 %s_e1' % lab, 's_cmp_eq_u32 s%d, 2' % sEk, 's_cbranch_scc1 %s_e2' % lab)
    P += rl(LATE_CHECK) + L('s_mov_b32 s%d, 64' % sEt, 's_branch %s_d' % lab, '%s_e1:' % lab)
    P += pair_flag(t0) + L('v_mov_b32 v%d, s%d' % (vPF, t0)) + [poll_load(vPF, vPF + 1)] + rl(PRE_FIN)
    P += L('s_mov_b32 s%d, 2' % sEk, 's_add_u32 s%d, s%d, 1' % (sEt, sEt), 's_branch %s_d' % lab, '%s_e2:' % lab,
           's_cmp_lg_u32 s%d, 2' % sMode, 's_cbranch_scc1 %s_np' % lab)
    P += poll_check(lab + '_p', vPF, vPF + 1, 1, sc=t1) + part_base()
    for i in range(17):
        if i % 4 == 0 and i:
            A('s_add_u32 s%d, s%d, 4096' % (t0, t0))
        d = PART + 4 * i if i < 16 else PST
        A('buffer_load_dwordx4 a[%d:%d], v%d, s[%d:%d], s%d offen offset:%d sc1' % (d, d + 3, vL16, sPt, sPt + 3, t0, (i % 4) * 1024))
    P += L('%s_np:' % lab) + rl(PRE_FIN2) + L('s_mov_b32 s%d, 64' % sEt, '%s_d:' % lab,
           's_min_u32 s%d, s%d, s%d' % (sEvt, sEt, sDiag), 's_min_u32 s%d, s%d, s%d' % (sEvt, sEvt, sE0),
           's_cmp_lt_u32 s%d, s%d' % (sTile, sDiag), 's_cbranch_scc1 %s' % back)
    A('s_lshl_b32 s%d, s%d, 7' % (t0, sQI))
    A('s_lshl_b32 s%d, s%d, 5' % (t1, sWave))
    A('s_add_u32 s%d, s%d, s%d' % (t0, t0, t1))
    A('s_lshl_b32 s%d, s%d, 6' % (t1, sTile))
    A('s_sub_u32 s%d, s%d, s%d' % (t0, t0, t1))
    u, ng = vT[1], vT[2]
    A('v_and_b32 v%d, 15, v0' % u)
    A('v_lshrrev_b32 v%d, 4, v0' % ng)
    A('v_lshlrev_b32 v%d, 2, v%d' % (ng, ng))
    A('v_sub_u32 v%d, v%d, v%d' % (u, u, ng))
    A('v_add_u32 v%d, s%d, v%d' % (u, t0, u))
    A('v_mov_b32 v%d, 0x%x' % (ng, NEG))
    items = [(16 * (kb - qb) + r, Sr(pn, kb, qb) + r) for kb in range(4) for qb in range(2) for r in range(4)]
    for i in range(0, 32, 4):
        for k in range(4):
            A('v_cmp_gt_i32 s[%d:%d], %d, v%d' % (CMP[k], CMP[k] + 1, items[i + k][0], u))
        for k in range(4):
            reg = items[i + k][1]
            A('v_cndmask_b32 v%d, v%d, v%d, s[%d:%d]' % (reg, reg, ng, CMP[k], CMP[k] + 1))
    A('s_branch %s' % back)
    return P


def rescale_block(lab, pn, back, first=False):
    P = [I(lab + ':')] if lab else []
    A = lambda x: P.append(I(x))
    dl = [vT[1], vT[2]]
    al = [vT[4], vT[6]]
    pr = lambda r: 'v[%d:%d]' % (r, r + 1)
    for qb in range(2):
        r = [Sr(pn, kb, qb) + i for kb in range(4) for i in range(4)]
        m = dl[qb]
        A('v_max3_f32 v%d, v%d, v%d, v%d' % (m, r[0], r[1], r[2]))
        for i in range(3, 15, 2):
            A('v_max3_f32 v%d, v%d, v%d, v%d' % (m, m, r[i], r[i + 1]))
        A('v_max_f32 v%d, v%d, v%d' % (m, m, r[15]))
    x0, x1 = xlane_reduce(dl[0], vT[8], 'v_max_f32'), xlane_reduce(dl[1], vT[9], 'v_max_f32')
    for a, b in zip(x0, x1):
        P.extend([a, b])
    for qb in range(2):
        r = [Sr(pn, kb, qb) + i for kb in range(4) for i in range(4)]
        m = dl[qb]
        if not first:
            A('v_max_f32 v%d, 0, v%d' % (m, m))
        for x in r:
            A('v_sub_f32 v%d, v%d, v%d' % (x, x, m))
        for i in range(4):
            A('v_sub_f32 v%d, v%d, v%d' % (NM[qb] + i, NM[qb] + i, m))
    if not first:
        for qb in range(2):
            A('v_exp_f32 v%d, -v%d' % (al[qb], dl[qb]))
        for qb in range(2):
            A('v_mul_f32 v%d, v%d, v%d' % (Lr[qb], Lr[qb], al[qb]))
        for db in range(16):
            for qb in range(2):
                for r in (0, 2):
                    A('v_pk_mul_f32 %s, %s, %s op_sel_hi:[1,0]' % (pr(Or(db, qb) + r), pr(Or(db, qb) + r), pr(al[qb])))
        A('s_branch %s' % back)
    return P


def fill(gaps, load, stream, g0, g1, cap, stride=1):
    q = list(stream)
    g = g0
    while g < g1 and q:
        if load[g] + q[0][1] <= cap + 1e-9:
            it = q.pop(0)
            gaps[g].extend(it[0] if isinstance(it[0], list) else [it[0]])
            load[g] += it[1]
            if stride > 1:
                g += stride
        else:
            g += 1
    return q


def place_dma(gaps, load, cap, grps, dg):
    ins = flat(grps)
    idx = [i for i, x in enumerate(ins) if x.kind == 'dma']
    for k, i in enumerate(idx):
        gaps[dg[k]].append(ins[i])
        load[dg[k]] += 2
    pre_ = ins[:idx[0]]
    g = dg[0] - 1
    spots = []
    for x in pre_:
        while load[g] + 1 > cap:
            g -= 1
        load[g] += 1
        spots.append(g)
    for x, g in zip(pre_, sorted(spots)):
        gaps[g].append(x)
    for k, i in enumerate(idx):
        nxt = idx[k + 1] if k + 1 < len(idx) else len(ins)
        g = dg[k] + 1
        for x in ins[i + 1:nxt]:
            while load[g] + 1 > cap:
                g += 1
            assert k + 1 == len(idx) or g < dg[k + 1]
            gaps[g].append(x)
            load[g] += 1


def iteration(lab, p):
    cap = EXP['cap']
    pn = 1 - p
    ms = qk_mfmas(pn) + pv_mfmas()
    NG = 128
    gaps = [[] for _ in range(NG)]
    pre = [[] for _ in range(NG)]
    load = [0.0] * NG
    for j in range(64):
        src = j + D_LEAD
        r = kread(src) if src < 32 else (vread(src - 32) if src < 64 else kread(src - 64))
        gaps[2 * j].append(r)
        load[2 * j] += 1
    for j in range(0, 64, 8):
        g = (2 * j - 2) % NG
        gaps[g].append(I('s_waitcnt lgkmcnt(%d)' % (D_LEAD - 8)))
        load[g] += 1
    pre[64] = [I('s_waitcnt vmcnt(16)'), I('s_barrier'),
               I('s_cmp_ge_u32 s%d, s%d' % (sTile, sEvt)), I('s_cbranch_scc1 %s_mask' % lab), I('%s_mb:' % lab)]
    load[63] += 2
    load[127] += 2
    place_dma(gaps, load, cap, dma_group('K'), EXP.get('kg', [5, 11, 19, 25, 33, 39, 47, 53]))
    place_dma(gaps, load, cap, dma_group('V'), EXP.get('vg', [91, 95, 99, 103, 107, 111, 115, 119]))
    left = fill(gaps, load, [(x, len(x)) for x in rd_advance('K')], 84, 103, cap)
    assert not left
    left = fill(gaps, load, [(x, len(x)) for x in rd_advance('V')], 104, 127, cap)
    assert not left
    def mid():
        left = fill(gaps, load, [(I('s_add_u32 s%d, s%d, 1' % (sTile, sTile)), 1)], 66, 90, cap)
        assert not left
        ex = L('s_cmp_eq_u32 s%d, s%d' % (sTile, sT1), 's_cselect_b32 s%d, -1, 0' % t2, 's_or_b32 s%d, s%d, vcc_lo' % (t2, t2),
               's_or_b32 s%d, s%d, vcc_hi' % (t2, t2))
        left = fill(gaps, load, [(x, 1) for x in max_stream(pn)], 72, 120, cap)
        assert not left, left
        gaps[123] += ex[:2]
        gaps[125] += ex[2:]
        load[123] += 2
        load[125] += 2
    done = place_softmax(gaps, load, p, 0, 94, cap, gsum=127, mid=mid, addstop=66)
    assert done[0] < 63 and done[1] < 95, done
    if EXP.get('show'):
        print('loads', ''.join(str(int(x)) for x in load), done)
    out = []
    for g in range(NG):
        out.extend(pre[g])
        out.append(ms[g])
        out.extend(gaps[g])
    out += L('s_waitcnt vmcnt(16)', 's_barrier')
    if EXP['nodma']:
        out = [x for x in out if x.kind != 'dma']
    if EXP['nobar']:
        out = [x for x in out if x.kind != 'barrier' and not (x.kind == 'wait' and x.vm is not None)]
    if EXP['nosm']:
        out = [x for x in out if not x.op.startswith(('v_exp', 'v_add_f32', 'v_cvt', 'v_max'))]
    if EXP['noread']:
        out = [x for x in out if x.kind != 'dsr']
    if EXP['nosm'] or EXP['noread'] or EXP['nodma'] or EXP['nobar']:
        pass
    out.append(I('s_cbranch_scc1 %s_ev' % lab))
    return out


def tail(p, fin):
    P = []
    exps, plains = softmax_items(p)
    sm = []
    for i in range(9):
        sm += exps[2 * i:2 * i + 2]
        if i > 0:
            sm += [x[0] for x in plains[3 * (i - 1):3 * i]]
    rd = [vread(j) for j in range(D_LEAD)]
    P.append(I('s_waitcnt lgkmcnt(0)'))
    P += interleave(sm, rd, 0.34)
    ms = pv_mfmas()
    gaps = [[] for _ in range(64)]
    pre = [[] for _ in range(64)]
    load = [0.0] * 64
    for j in range(32 - D_LEAD):
        gaps[2 * j].append(vread(j + D_LEAD))
        load[2 * j] += 1
    for j in range(0, 32, 8):
        pre[2 * j].append(I('s_waitcnt lgkmcnt(%d)' % max(0, min(32, j + D_LEAD) - (j + 8))))
    if fin:
        P = FIN_TAIL['setup'] + P
        dg = list(range(1, 64, 4))
        place_dma(gaps, load, 2.0, FIN_TAIL['groups'](), dg)
    else:
        G = seg_loads(None, nosetup=True)
        if EXP.get('k1tail', 1):
            place_dma(gaps, load, 2.0, G[0] + G[2], [3, 7, 11, 15, 19, 23, 27, 29, 35, 39, 43, 47, 51, 55, 57, 59])
        else:
            place_dma(gaps, load, 2.0, G[0], [31, 33, 37, 39, 43, 45, 49, 51])
    done = place_softmax(gaps, load, p, 0, 31, 3.0 if (fin or EXP.get('k1tail', 1)) else 2.0, e0=18, p0=24, gsum=63)
    assert done[1] < 31
    for g in range(64):
        P.extend(pre[g])
        P.append(ms[g])
        P.extend(gaps[g])
    return P


def seg_loads(loadq, nosetup=False):
    P = L('s_lshl_b32 s%d, s%d, 20' % (t0, sH), 's_lshl_b32 s%d, s%d, 15' % (t1, sT0),
          's_add_u32 s%d, s%d, s%d' % (sKoff, t0, t1), 's_mov_b32 s%d, s%d' % (sVoff, sKoff),
          's_lshl_b32 s%d, s%d, 15' % (t1, sT1), 's_add_u32 s%d, s%d, s%d' % (sEnd, t0, t1),
          's_add_u32 s%d, s%d, s%d' % (sKslot, sNext, sW8), 's_mov_b32 s%d, s%d' % (sVslot, sKslot))
    P += flat(adv(sVslot, 2, t3))
    K0 = dma_group('K', 1, tag='aK0')
    seg_loads.setup = P
    if not nosetup:
        K0[0] = P + K0[0]
    Q = []
    if loadq:
        Q = srd(sQ, P_WS, 16 * MB, off=WS_Q)
        Q += L('s_lshl_b32 s%d, s%d, 20' % (t0, sH), 's_lshl_b32 s%d, s%d, 16' % (t1, sQI), 's_add_u32 s%d, s%d, s%d' % (t0, t0, t1),
               's_lshl_b32 s%d, s%d, 14' % (t1, sWave), 's_add_u32 s%d, s%d, s%d' % (t0, t0, t1))
        for i in range(16):
            if i % 4 == 0 and i:
                Q += L('s_add_u32 s%d, s%d, 4096' % (t0, t0))
            Q.append(I('buffer_load_dwordx4 a[%d:%d], v%d, s[%d:%d], s%d offen offset:%d %s' % (
                Qa + 4 * i, Qa + 4 * i + 3, vL16, sQ, sQ + 3, t0, (i % 4) * 1024, EXP.get('ldflags', ''))))
        Q = [Q]
    return [K0, Q, dma_group('K'), dma_group('V'), dma_group('K'), dma_group('V')]


def as_items(groups, lds):
    R = []
    pre = []
    for g in groups:
        if len(g) == 1 and g[0].kind in ('dma', 'vld'):
            R.append(Item(pre, g[0], [], lds))
            pre = []
        else:
            pre = pre + g
    if pre:
        R[-1].post = [pre]
    return R


def kernel_setup(slot0=0):
    P = srd(sK, P_WS, 16 * MB, off=WS_K) + srd(sV, P_WS, 16 * MB, off=WS_V)
    P += L('s_lshl_b32 s%d, s%d, 13' % (sW8, sWave),
           'v_add_u32 v%d, s%d, v%d' % (vDma, sW8, vL16), 'v_add_u32 v%d, 4096, v%d' % (vDma2, vDma),
           's_mov_b32 s%d, %d' % (sNext, slot0 * 32768), 's_mov_b32 s%d, %d' % (sRing, RINGB), 's_mov_b32 s%d, 0' % sPend)
    return P


def segment(lab, vm0):
    P = []
    A = lambda x: P.append(I(x))
    A('v_add_u32 v%d, s%d, v%d' % (aK, sNext, vL16))
    A('v_mov_b32 v%d, v%d' % (aV, aK))
    P += flat(rd_advance('V'))
    for qb in range(2):
        for i in range(4):
            A('v_mov_b32 v%d, 0' % (NM[qb] + i))
        A('v_mov_b32 v%d, 0' % Lr[qb])
    A('s_mov_b32 s%d, 0x%x' % (sThr, THR))
    A('s_mov_b32 s%d, s%d' % (sTile, sT0))
    A('s_lshl_b32 s%d, s%d, 1' % (sDiag, sQI))
    P += L('s_cmp_gt_u32 s%d, 28' % sT1, 's_cselect_b32 s%d, %d, 64' % (sEt, LATE_TILE), 's_sub_u32 s%d, s%d, 2' % (t0, sT1),
           's_cmp_eq_u32 s%d, 1' % sMode, 's_cselect_b32 s%d, s%d, s%d' % (sEt, sEt, t0), 's_cselect_b32 s%d, 0, 1' % sEk,
           's_add_u32 s%d, s%d, 1' % (sE0, sT0), 's_min_u32 s%d, s%d, s%d' % (sEvt, sEt, sDiag), 's_min_u32 s%d, s%d, s%d' % (sEvt, sEvt, sE0))
    A('s_waitcnt vmcnt(%d)' % vm0)
    A('s_barrier')
    P.append(STAMP(4))
    for j in range(D_LEAD):
        P.append(kread(j))
    ms = qk_mfmas(0)
    z = [I('v_mov_b32 v%d, 0' % (Ov + i)) for i in range(128)]
    gaps = [[] for _ in range(64)]
    load = [0.0] * 64
    for j in range(32 - D_LEAD):
        gaps[2 * j].append(kread(j + D_LEAD))
        load[2 * j] += 1
    if EXP.get('hd2', 1):
        G = seg_loads(None, nosetup=True)
        place_dma(gaps, load, 2.0, G[4] + G[5], [3, 7, 11, 15, 19, 23, 27, 29, 35, 39, 43, 47, 51, 55, 57, 59])
    for g in range(64):
        if g % 16 == 0:
            A('s_waitcnt lgkmcnt(%d)' % max(0, min(32, g // 2 + D_LEAD) - (g // 2 + 8)))
        P.append(ms[g])
        P += gaps[g] + z[2 * g:2 * g + 2]
    P += flat(rd_advance('K', 1))
    A('s_waitcnt vmcnt(16)')
    A('s_barrier')
    for j in range(D_LEAD):
        P.append(kread(j))
    A('s_cmp_ge_u32 s%d, s%d' % (sTile, sEvt))
    A('s_cbranch_scc1 %s_h_mask' % lab)
    A('%s_h_mb:' % lab)
    P += rescale_block(None, 0, None, first=True)
    A('s_add_u32 s%d, s%d, 1' % (sTile, sTile))
    P.append(STAMP(5))
    A('s_cmp_eq_u32 s%d, s%d' % (sTile, sT1))
    A('s_cbranch_scc1 %s_tail0' % lab)
    A('s_waitcnt lgkmcnt(%d)' % (D_LEAD - 8))
    if 'apad' in EXP:
        A('.p2align 6')
        for i in range(EXP['apad']):
            A('s_nop 0')
    A('%s_loop:' % lab)
    P += iteration(lab + '_i0', 0)
    A('%s_mid:' % lab)
    P += iteration(lab + '_i1', 1)
    A('s_branch %s_loop' % lab)
    for p, cont in ((0, '_mid'), (1, '_loop')):
        P += L('%s_i%d_ev:' % (lab, p), 's_cbranch_vccnz %s_i%d_resc' % (lab, p), '%s_i%d_rb:' % (lab, p),
               's_cmp_lg_u32 s%d, s%d' % (sTile, sT1), 's_cbranch_scc1 %s%s' % (lab, cont), 's_branch %s_tail%d' % (lab, 1 - p))
    for p in range(2):
        P += L('%s_tail%d:' % (lab, p)) + [STAMP(6)] + L('s_cmp_eq_u32 s%d, 1' % sMode, 's_cbranch_scc1 %s_pre%d' % (lab, p))
        P += tail(p, True) + L('s_branch %s_end' % lab)
    for p in range(2):
        P += pretail(lab + '_pre%d' % p) + tail(p, False) + L('s_branch f_part')
    O = []
    O += mask_block(lab + '_h_mask', 0, lab + '_h_mb')
    O += mask_block(lab + '_i0_mask', 1, lab + '_i0_mb')
    O += mask_block(lab + '_i1_mask', 0, lab + '_i1_mb')
    O += rescale_block(lab + '_i0_resc', 1, lab + '_i0_rb')
    O += rescale_block(lab + '_i1_resc', 0, lab + '_i1_rb')
    P += O
    A('%s_end:' % lab)
    return P


def pair_flag(dst):
    return L('s_lshl_b32 s%d, s%d, 2' % (dst, sPair), 's_add_u32 s%d, s%d, s%d' % (dst, dst, sWave), 's_lshl_b32 s%d, s%d, 2' % (dst, dst),
             's_add_u32 s%d, s%d, %d' % (dst, dst, FL_PAIR))


def part_base():
    return srd(sPt, P_WS, 128 * 4 * 17 * 1024, off=WS_PART) + L(
        's_lshl_b32 s%d, s%d, 2' % (t0, sPair), 's_add_u32 s%d, s%d, s%d' % (t0, t0, sWave),
        's_mul_i32 s%d, s%d, %d' % (t0, t0, 17 * 1024))


def gate_load(sblk, dst):
    P = srd(sPt, P_WS, 8192, off=WS_G)
    P += L('s_lshl_b32 s%d, s%d, 2' % (t0, sblk), 's_add_u32 s%d, s%d, s%d' % (t0, t0, sWave), 's_lshl_b32 s%d, s%d, 7' % (t0, t0),
           'v_and_b32 v5, 15, v0', 'v_lshlrev_b32 v5, 2, v5')
    for qb in range(2):
        P.append(I('buffer_load_dword v%d, v5, s[%d:%d], s%d offen offset:%d %s' % (dst + qb, sPt, sPt + 3, t0, qb * 64, EXP.get('ldflags', ''))))
    return P


def pretail(lab):
    P = [I(lab + ':')]
    A = lambda x: P.append(I(x))
    P += L('s_cmp_eq_u32 s%d, 64' % sE0, 's_cbranch_scc1 %s_n0' % lab) + early_event(lab, 0) + L('%s_n0:' % lab)
    A('v_readfirstlane_b32 s%d, v%d' % (sNext, aV))
    P += flat(adv(sNext, 1, t3))
    P += L('s_cmp_lg_u32 s%d, 0' % sP2, 's_cselect_b32 s%d, s%d, s%d' % (sQI, sP2, sOwn), 's_cselect_b32 s%d, %d, 0' % (sT0, SPLIT),
           's_cselect_b32 s%d, 1, 0' % sNm, 's_lshl_b32 s%d, s%d, 1' % (sT1, sQI), 's_add_u32 s%d, s%d, 2' % (sT1, sT1),
           's_mov_b32 s%d, 0' % sP2)
    G = seg_loads(True)
    return P + seg_loads.setup + flat(G[1])


def mix(E, X):
    P = []
    k = 0
    for i, e in enumerate(E):
        P.append(e)
        while k < len(X) and k * len(E) < (i + 1) * len(X) and e.kind != 'salu':
            P += X[k]
            k += 1
    return P + flat(X[k:])


def finish(lab, stflags='', pre=lambda t: [], items=lambda: []):
    P = []
    A = lambda x: P.append(I(x))
    pr = lambda r: 'v[%d:%d]' % (r, r + 1)
    x0, x1 = xlane_reduce(Lr[0], vT[0], 'v_add_f32'), xlane_reduce(Lr[1], vT[1], 'v_add_f32')
    red = [x for ab in zip(x0, x1) for x in ab]
    P += red
    f1 = [vT[2], vT[4]]
    f2 = [vT[6], vT[8]]
    A('s_cmp_eq_u32 s%d, 2' % sMode)
    A('s_cbranch_scc1 %s_comb' % lab)
    for qb in range(2):
        A('v_rcp_f32 v%d, v%d' % (f1[qb], Lr[qb]))

    def ctx_base():
        Q = srd(sQ, P_WS, HC_SIZE, off=WS_HC)
        Q += L('s_lshl_b32 s%d, s%d, 2' % (t0, sQI), 's_add_u32 s%d, s%d, s%d' % (t0, t0, sWave),
               's_mul_i32 s%d, s%d, %d' % (t0, t0, 2 * HC_RB), 's_lshl_b32 s%d, s%d, 13' % (t1, sH),
               's_add_u32 s%d, s%d, s%d' % (t0, t0, t1), 's_add_u32 s%d, s%d, %d' % (t0, t0, 28 * 1024))
        return Q

    def emit(srd_, offf, flags, comb):
        Q = []
        k = 0
        for qb in range(2):
            for pp in range(8):
                a, b = Or(2 * pp, qb), Or(2 * pp + 1, qb)
                for r in (a, a + 2, b, b + 2):
                    Q.append(I('v_pk_mul_f32 %s, %s, %s op_sel_hi:[1,0]' % (pr(r), pr(r), pr(f1[qb]))))
                if comb:
                    t = 32 + (k % 4) * 12
                    for r in range(4):
                        Q.append(I('v_accvgpr_read_b32 v%d, a%d' % (t + 8 + r, PART + 4 * k + r)))
                    for r in range(4):
                        Q.append(I('v_lshlrev_b32 v%d, 16, v%d' % (t + 2 * r, t + 8 + r)))
                        Q.append(I('v_and_b32 v%d, 0xffff0000, v%d' % (t + 2 * r + 1, t + 8 + r)))
                    for r, o in enumerate((a, a + 2, b, b + 2)):
                        Q.append(I('v_pk_fma_f32 %s, %s, %s, %s op_sel_hi:[1,0,1]' % (pr(o), pr(t + 2 * r), pr(f2[qb]), pr(o))))
                for r, o in enumerate((a, a + 2, b, b + 2)):
                    Q.append(I('v_cvt_pk_bf16_f32 v%d, v%d, v%d' % (a + r, o, o + 1)))
                Q += store4(a, vL16, offf(qb, pp, k), flags, soff=t1, base=t0, srd_=srd_)
                Q[-1].wr.add('tag:ctxst')
                k += 1
        return Q

    for qb in range(2):
        A('v_mul_f32 v%d, v%d, v%d' % (f1[qb], f1[qb], Gv[qb]))
    P += ctx_base()
    P += emit(sQ, lambda qb, pp, k: qb * HC_RB + pp * 1024, stflags, False)
    A('s_branch %s_fin' % lab)
    A('%s_part:' % lab)
    P += red + L(*['v_rcp_f32 v%d, v%d' % (f1[qb], Lr[qb]) for qb in range(2)])
    P += part_base()
    G = seg_loads(None, nosetup=True)
    E = emit(sPt, lambda qb, pp, k: k * 1024, 'sc1', False)
    X = G[3] if EXP.get('hd2', 1) else G[3] + G[4]
    P += mix(E, X)
    st = 80
    P += L('v_mov_b32 v%d, v%d' % (st, NM[0]), 'v_mov_b32 v%d, v%d' % (st + 1, Lr[0]),
           'v_mov_b32 v%d, v%d' % (st + 2, NM[1]), 'v_mov_b32 v%d, v%d' % (st + 3, Lr[1]))
    P += store4(st, vL16, 16384, 'sc1', soff=t1, base=t0, srd_=sPt)
    P += L('s_mov_b32 s%d, s%d' % (sMode, sNm))
    P += pair_flag(sPend) + L('s_barrier')
    P += set_pair() + (flat(G[5]) if not EXP.get('hd2', 1) else [])
    P += [need('aK0')] + [I('', needs=['a%d' % (Qa + i) for i in range(64)])] + L('s_branch L_seg')
    A('%s_comb:' % lab)
    for i in range(4):
        A('v_accvgpr_read_b32 v%d, a%d' % (80 + i, PST + i))
    for qb in range(2):
        nm2, l2 = 80 + 2 * qb, 81 + 2 * qb
        mn = vT[10]
        A('v_min_f32 v%d, v%d, v%d' % (mn, NM[qb], nm2))
        A('v_sub_f32 v%d, v%d, v%d' % (f1[qb], mn, NM[qb]))
        A('v_sub_f32 v%d, v%d, v%d' % (f2[qb], mn, nm2))
        A('v_exp_f32 v%d, v%d' % (f1[qb], f1[qb]))
        A('v_exp_f32 v%d, v%d' % (f2[qb], f2[qb]))
        A('v_mul_f32 v%d, v%d, v%d' % (f2[qb], f2[qb], l2))
        A('v_fma_f32 v%d, v%d, v%d, v%d' % (mn, f1[qb], Lr[qb], f2[qb]))
        A('v_rcp_f32 v%d, v%d' % (mn, mn))
        A('v_mul_f32 v%d, v%d, v%d' % (mn, mn, Gv[qb]))
        A('v_mul_f32 v%d, v%d, v%d' % (f1[qb], f1[qb], mn))
        A('v_mul_f32 v%d, v%d, v%d' % (f2[qb], f2[qb], mn))
    P += ctx_base()
    P += emit(sQ, lambda qb, pp, k: qb * HC_RB + pp * 1024, stflags, True)
    A('%s_fin:' % lab)
    return P


TABLES = {
    'a': dict(split=22, own=[15, 14, 13, 12, 11, 10, 9, 8, 7, 6, 5, 2, 1, 0, 4, 3], p1=[0] * 10 + [11, 14, 15, 13, 0, 0], p2=[0] * 13 + [12, 0, 0]),
    'b': dict(split=22, own=[15, 14, 13, 12, 11, 10, 9, 8, 7, 6, 3, 2, 1, 0, 5, 4], p1=[0] * 9 + [11, 12, 13, 14, 15, 0, 0], p2=[0] * 16),
    'c': dict(split=23, own=[15, 14, 13, 12, 11, 10, 9, 8, 7, 6, 3, 2, 1, 0, 5, 4], p1=[0] * 9 + [11, 12, 13, 14, 15, 0, 0], p2=[0] * 16),
    'd': dict(split=21, own=[15, 14, 13, 12, 11, 10, 9, 8, 7, 6, 3, 2, 1, 0, 5, 4], p1=[0] * 8 + [10, 11, 12, 13, 14, 15, 0, 0], p2=[0] * 16),
    'e': dict(split=22, fs=12, own=[15, 14, 13, 12, 11, 10, 9, 8, 7, 6, 3, 2, 1, 0, 5, 4], p1=[0] * 10 + [12, 13, 14, 15, 0, 0], p2=[0] * 16),
    'f': dict(split=21, fs=12, own=[15, 14, 13, 12, 11, 10, 9, 8, 7, 6, 3, 2, 1, 0, 5, 4], p1=[0] * 10 + [12, 13, 14, 15, 0, 0], p2=[0] * 16),
    'g': dict(split=23, fs=12, own=[15, 14, 13, 12, 11, 10, 9, 8, 7, 6, 3, 2, 1, 0, 5, 4], p1=[0] * 10 + [12, 13, 14, 15, 0, 0], p2=[0] * 16),
}


def use_table(name):
    global SPLIT, OWN, PT1, PT2, QB2, FS
    t = TABLES[name]
    SPLIT, OWN, PT1, PT2 = t['split'], t['own'], t['p1'], t['p2']
    QB2 = sorted(OWN[7:14]) + [0] * 9
    FS = t.get('fs', (SPLIT - 2) // 2 + 1)
    split_blocks = list(range(FS, 16))
    assert sorted(x for x in PT1 + PT2 if x) == split_blocks and sorted(OWN) == list(range(16))


use_table('f')


def decode(sQ1):
    def tab(vals, dst):
        v = sum(x << (4 * i) for i, x in enumerate(vals))
        return L('s_mov_b32 s4, 0x%x' % (v & 0xffffffff), 's_mov_b32 s5, 0x%x' % (v >> 32), 's_lshr_b64 s[4:5], s[4:5], s%d' % t0,
                 's_and_b32 s%d, s4, 15' % dst)
    P = L('s_and_b32 s%d, s2, 7' % t2, 's_lshr_b32 s%d, s2, 3' % t0, 's_and_b32 s%d, s%d, 1' % (t1, t0),
          's_lshl_b32 s%d, s%d, 1' % (t2, t2), 's_add_u32 s%d, s%d, s%d' % (sH, t2, t1),
          's_lshr_b32 s%d, s%d, 1' % (t0, t0), 's_lshl_b32 s%d, s%d, 2' % (t0, t0))
    P += tab(OWN, sOwn) + tab(PT1, t1) + tab(PT2, sP2) + tab(QB2[:7] + [0] * 7 + OWN[14:], sQ1)
    P += L('s_cmp_lg_u32 s%d, 0' % t1, 's_cselect_b32 s%d, s%d, s%d' % (sQI, t1, sOwn), 's_cselect_b32 s%d, %d, 0' % (sT0, SPLIT),
           's_cselect_b32 s%d, 1, 0' % sMode, 's_lshl_b32 s%d, s%d, 1' % (sT1, sQI), 's_add_u32 s%d, s%d, 2' % (sT1, sT1),
           's_cmp_gt_u32 s%d, %d' % (sOwn, FS - 1), 's_cselect_b32 s%d, 2, s%d' % (sMode, sMode),
           's_cselect_b32 s%d, %d, s%d' % (sT1, SPLIT, sT1))
    P += set_pair()
    return P


def q2_flag(dst, sblk):
    return L('s_lshl_b32 s%d, s%d, 4' % (dst, sH), 's_add_u32 s%d, s%d, s%d' % (dst, dst, sblk), 's_lshl_b32 s%d, s%d, 2' % (dst, dst),
             's_add_u32 s%d, s%d, s%d' % (dst, dst, sWave), 's_lshl_b32 s%d, s%d, 2' % (dst, dst), 's_add_u32 s%d, s%d, %d' % (dst, dst, FL_X))


def set_pair():
    return L('s_lshl_b32 s%d, s%d, 3' % (sPair, sH), 's_add_u32 s%d, s%d, s%d' % (sPair, sPair, sQI), 's_sub_u32 s%d, s%d, 9' % (sPair, sPair))


def own_q(quads):
    return [I('v_accvgpr_write_b32 a%d, v%d' % (Qa + 4 * k + r, q + r)) for k, q in enumerate(quads) for r in range(4)]


def run(stflags='', **kw):
    P = L('L_seg:')
    P += segment('a', 63)
    P.append(STAMP(7))
    P += finish('f', stflags, **kw)
    P.append(STAMP(8))
    return P
```

```python
from asmlib import *

MF = 'v_mfma_f32_16x16x32_bf16'
WAVE = 35
T0, T1, T2, T3, U0, U1 = 31, 32, 33, 34, 26, 27


def rng(kind, b, n):
    return '%s[%d:%d]' % (kind, b, b + n - 1) if n > 1 else '%s%d' % (kind, b)


class Reg:
    def __init__(self, kind, base):
        self.kind, self.base = kind, base

    def r(self, i=0, n=1):
        return rng(self.kind, self.base + i, n)


def uni(idx):
    return Reg('v', idx) if idx < 256 else Reg('a', idx - 256)


def log2(x):
    n = x.bit_length() - 1
    assert 1 << n == x
    return n


def flat(G):
    return [i for g in G for i in g]


def L(*lines):
    return [I(x) for x in lines]


def nvm(P):
    return sum(1 for b in P if b.kind in ('vld', 'vst', 'dma'))


class Item:
    def __init__(self, pre, d, post, lds):
        self.pre, self.d, self.post, self.lds = pre, d, post, lds

    def all(self):
        return self.pre + [self.d] + flat(self.post)


class Gemm:
    def __init__(self, name, TX, TW, WX, WW, T, xtype, x_stride, w_stride, swap, nX, nW, s, vbase, acc_regs,
                 frag_regs, BK=64, kperm=False, xbase=0, wbase=None, rdpg=1.0, mode='step',
                 xfl='', wfl='', static=False, x0=0, w0=0, xres=False, wmajor=False, gran=None):
        self.__dict__.update(locals())
        del self.self
        assert WX * WW == 4
        self.nxb = TX // WX // 16
        self.nwb = TW // WW // 16
        self.KS = BK // 32
        self.xrow = BK * 2
        self.xsz = TX * BK * 2
        self.wrow = TW * 2
        self.wsz = BK * TW * 2
        self.ndx = self.xsz // 4096
        assert self.xsz % 4096 == 0 and self.wsz % 4096 == 0
        self.ndw = self.wsz // 4096
        if wbase is None:
            self.wbase = xbase + nX * self.xsz
        self.lds_end = max(self.wbase + nW * self.wsz, xbase + nX * self.xsz)
        assert self.lds_end <= 163840, self.lds_end
        self.nm = self.nxb * self.nwb
        v = vbase
        self.vX = list(range(v, v + (self.ndx if xtype == 'rowk' else self.ndx // self.KS)))
        v += len(self.vX)
        self.vW = list(range(v, v + self.ndw))
        v += self.ndw
        self.ws = 15 if gran else 16
        if gran:
            self.xbase = self.wbase = xbase = 0
        self.xwin = -(-nX * self.xsz // (1 << self.ws)) if static else 1
        self.wwin = -(-nW * self.wsz // (1 << self.ws)) if static else 1
        na = self.KS if xtype == 'rowk' else 1
        self.aX = [list(range(v + k * na, v + (k + 1) * na)) for k in range(self.xwin)]
        v += na * self.xwin
        self.naw = min(self.nwb, 1 << len(self.wswz_bits()))
        self.aW = [list(range(v + k * self.naw, v + (k + 1) * self.naw)) for k in range(self.wwin)]
        v += self.naw * self.wwin
        self.vend = v
        self.FS = self.KS if mode == 'tile' else 1
        it = iter(frag_regs)
        if not xres:
            self.fX = [[[uni(next(it)) for b in range(self.nxb)] for k in range(self.FS)] for st in range(2)]
        self.fW = [[[uni(next(it)) for b in range(self.nwb)] for k in range(self.FS)] for st in range(2)]
        self.set_acc(acc_regs)

    def set_acc(self, acc_regs):
        assert len(acc_regs) >= self.nm
        self.acc = [[uni(acc_regs[x * self.nwb + w]) for w in range(self.nwb)] for x in range(self.nxb)]

    def wx_expr(self, dst):
        return L({1: 's_mov_b32 s%d, 0' % dst, 2: 's_and_b32 s%d, s%d, 1' % (dst, WAVE), 4: 's_mov_b32 s%d, s%d' % (dst, WAVE)}[self.WX])

    def ww_expr(self, dst):
        return L({1: 's_mov_b32 s%d, s%d' % (dst, WAVE), 2: 's_lshr_b32 s%d, s%d, 1' % (dst, WAVE), 4: 's_mov_b32 s%d, 0' % dst}[self.WX])

    def wswz_bits(self):
        lowbits = [0, 1, 2] if self.kperm else [0, 1, 3]
        if self.wrow % 256 == 0:
            return list(zip(lowbits, [0, 1, 2]))
        if self.wrow % 256 == 128:
            return list(zip(lowbits[1:], [0, 1]))
        raise ValueError(self.wrow)

    def fk(self, k):
        f = 0
        for kb, sb in self.wswz_bits():
            f |= ((k >> kb) & 1) << sb
        return f

    def voff_x(self, dst, stride, t=(1, 2), st0=U0):
        P = []
        A = lambda x: P.append(I(x))
        t1, t2 = ['v%d' % i for i in t]
        if self.xtype == 'rowk':
            cpr = self.xrow // 16
            rpi = 64 // cpr
            assert self.BK == 64 and self.ndx % 2 == 0 and stride % 128 == 0
            A('v_lshrrev_b32 %s, %d, v0' % (t1, log2(cpr)))
            A('s_mul_i32 s%d, s%d, %d' % (st0, WAVE, self.ndx * rpi * stride))
            A('v_mul_u32_u24 %s, %d, %s' % (t1, stride, t1))
            A('v_lshrrev_b32 %s, 4, v0' % t2)
            A('v_xor_b32 %s, %s, v0' % (t2, t2))
            A('v_and_b32 %s, %d, %s' % (t2, cpr - 1, t2))
            A('v_lshl_add_u32 %s, %s, 4, %s' % (t1, t2, t1))
            A('v_add_u32 v%d, s%d, %s' % (dst[0], st0, t1))
            A('v_xor_b32 %s, 64, v%d' % (t2, dst[0]))
            assert rpi * stride >= 1024
            A('v_add_u32 v%d, %d, %s' % (dst[1], rpi * stride - 1024, t2))
            for j in range(2, self.ndx):
                A('v_add_u32 v%d, %d, v%d' % (dst[j], (j - j % 2) * rpi * stride - (j % 4 - j % 2) * 1024, dst[j % 2]))
        else:
            assert self.ndx <= 4 and self.ndx % self.KS == 0
            A('s_mul_i32 s%d, s%d, %d' % (st0, WAVE, stride * (self.ndx // self.KS)))
            A('v_lshl_add_u32 v%d, v0, 4, s%d' % (dst[0], st0))
            for b in range(1, self.ndx // self.KS):
                A('v_add_u32 v%d, %d, v%d' % (dst[b], b * (stride - self.KS * 1024), dst[0]))
        return P

    def voff_w(self, dst, stride, t=(1, 2, 3), st0=U0):
        P = []
        A = lambda x: P.append(I(x))
        t1, t2, t3 = ['v%d' % i for i in t]
        cw = self.wrow // 16
        rpi = 64 // cw
        assert cw & (cw - 1) == 0 and rpi * stride >= 1024
        assert all(self.fk(w * self.ndw * rpi) == 0 for w in range(4))
        A('v_lshrrev_b32 %s, %d, v0' % (t1, log2(cw)))
        A('v_and_b32 %s, %d, v0' % (t2, cw - 1))
        for kb, sb in self.wswz_bits():
            if (1 << kb) < rpi:
                A('v_bfe_u32 %s, %s, %d, 1' % (t3, t1, kb))
                A('v_lshlrev_b32 %s, %d, %s' % (t3, sb + 1, t3))
                A('v_xor_b32 %s, %s, %s' % (t2, t2, t3))
        A('v_lshlrev_b32 %s, 4, %s' % (t2, t2))
        A('s_mul_i32 s%d, s%d, %d' % (st0, WAVE, self.ndw * rpi * stride))
        A('v_mul_u32_u24 %s, %d, %s' % (t1, stride, t1))
        A('v_add_u32 %s, s%d, %s' % (t1, st0, t1))
        done = {}
        for j in range(self.ndw):
            f = self.fk(j * rpi)
            if f in done:
                A('v_add_u32 v%d, %d, v%d' % (dst[j], (j - done[f]) * rpi * stride - (j % 4 - done[f] % 4) * 1024, dst[done[f]]))
            else:
                done[f] = j
                if f:
                    A('v_xor_b32 %s, %d, %s' % (t3, f * 32, t2))
                    A('v_add_u32 v%d, %s, %s' % (dst[j], t3, t1))
                else:
                    A('v_add_u32 v%d, %s, %s' % (dst[j], t2, t1))
                if j:
                    A('v_add_u32 v%d, %d, v%d' % (dst[j], j * rpi * stride - (j % 4) * 1024, dst[j]))
        return P

    def setup_x(self):
        s = self.s
        P = self.voff_x(self.vX, self.x_stride)
        P += L('s_mul_i32 s%d, s%d, %d' % (s['xslot'], WAVE, self.ndx * 1024))
        if not self.static:
            assert self.xbase == 0 and self.x0 == 0
        return P

    def setup_w(self):
        s = self.s
        P = self.voff_w(self.vW, self.w_stride)
        P += L('s_mul_i32 s%d, s%d, %d' % (s['wslot'], WAVE, self.ndw * 1024))
        return P

    def setup_read(self, t=(1, 2, 3, 4, 5), st0=U0, st1=U1):
        s = self.s
        P = []
        A = lambda x: P.append(I(x))
        t1, t2, t3, t4, t5 = ['v%d' % i for i in t]
        P += self.wx_expr(st0)
        a0 = self.aX[0]
        if self.xtype == 'rowk':
            A('v_and_b32 %s, 15, v0' % t1)
            A('s_mul_i32 s%d, s%d, %d' % (st0, st0, self.nxb * 16 * self.xrow))
            if self.xbase:
                A('s_add_u32 s%d, s%d, %d' % (st0, st0, self.xbase))
            A('v_lshl_add_u32 %s, %s, %d, s%d' % (t1, t1, log2(self.xrow), st0))
            A('v_lshrrev_b32 %s, 4, v0' % t2)
            A('v_bfe_u32 %s, v0, 1, 3' % t3)
            A('v_xor_b32 %s, %s, %s' % (t2, t2, t3))
            A('v_lshl_add_u32 v%d, %s, 4, %s' % (a0[0], t2, t1))
            for kk in range(1, self.KS):
                A('v_xor_b32 v%d, %d, v%d' % (a0[kk], kk * 64, a0[0]))
        else:
            A('s_mul_i32 s%d, s%d, %d' % (st0, st0, self.nxb * self.KS * 1024))
            if self.xbase:
                A('s_add_u32 s%d, s%d, %d' % (st0, st0, self.xbase))
            A('v_lshl_add_u32 v%d, v0, 4, s%d' % (a0[0], st0))
        for k in range(self.xwin - 1, -1 if self.gran else 0, -1):
            for a, b in zip(self.aX[k], a0):
                A('v_add_u32 v%d, %s, v%d' % (a, 's%d' % self.gran[k] if self.gran else 65536 * k, b))
        A('v_bfe_u32 %s, v0, 2, 2' % t1)
        A('v_lshrrev_b32 %s, 4, v0' % t2)
        A('v_lshl_add_u32 %s, %s, %d, %s' % (t2, t2, 2 if self.kperm else 3, t1))
        for i, (kb, sb) in enumerate(self.wswz_bits()):
            if i == 0:
                A('v_bfe_u32 %s, %s, %d, 1' % (t4, t2, kb))
            else:
                A('v_bfe_u32 %s, %s, %d, 1' % (t5, t2, kb))
                A('v_lshl_or_b32 %s, %s, %d, %s' % (t4, t5, sb, t4))
        A('v_mul_u32_u24 %s, %d, %s' % (t2, self.wrow, t2))
        A('v_and_b32 %s, 3, v0' % t3)
        A('v_lshl_add_u32 %s, %s, 3, %s' % (t2, t3, t2))
        A('v_add_u32 %s, %d, %s' % (t2, self.wbase, t2))
        P += self.ww_expr(st0)
        A('s_mul_i32 s%d, s%d, %d' % (st0, st0, self.nwb))
        A('v_xor_b32 %s, s%d, %s' % (t4, st0, t4))
        assert self.WW == 1 or (self.nwb & (self.nwb - 1)) == 0
        for wb in range(self.naw):
            A('v_xor_b32 %s, %d, %s' % (t3, wb, t4))
            A('v_lshl_add_u32 v%d, %s, 5, %s' % (self.aW[0][wb], t3, t2))
        for k in range(self.wwin - 1, -1 if self.gran else 0, -1):
            for a, b in zip(self.aW[k], self.aW[0]):
                A('v_add_u32 v%d, %s, v%d' % (a, 's%d' % self.gran[self.xwin + k] if self.gran else 65536 * k, b))
        if not self.static:
            P += L('s_mov_b32 s%d, 0' % s['xrd'], 's_mov_b32 s%d, 0' % s['wrd'])
        return P

    def wfrag(self, t):
        return False

    def xslot_of(self, t):
        return (t + self.x0) % self.nX

    def wslot_of(self, t):
        return (t + self.w0) % self.nW

    def tag(self, which, t):
        if self.static:
            return '%s%s%d' % (self.name, which, self.xslot_of(t) if which == 'X' else self.wslot_of(t))
        return self.name + which

    def group(self, which, t, vregs=None, wstep=None, pre=None, tag=None):
        s = self.s
        X = which == 'X'
        srd, off, slot = (s['xsrd'], s['xoff'], s['xslot']) if X else (s['wsrd'], s['woff'], s['wslot'])
        nd, sz, ns, base = (self.ndx, self.xsz, self.nX, self.xbase) if X else (self.ndw, self.wsz, self.nW, self.wbase)
        sl = self.xslot_of(t) if X else self.wslot_of(t)
        step = (self.BK * 2 if self.xtype == 'rowk' else self.KS * 1024) if X else (wstep or self.BK * self.w_stride)
        fl = self.xfl if X else self.wfl
        cst = base + (sl * sz if self.static else 0)
        lds = (base + sl * sz, base + (sl + 1) * sz)
        if self.gran:
            slot = s['xslots' if X else 'wslots'][cst >> 15]
            cst &= 32767
        vv = vregs or (self.vX if X else self.vW)
        items = []
        for j in range(nd):
            m = list(pre or []) if j == 0 else []
            if (X and self.xtype == 'frag') or (not X and self.wfrag(t)):
                if j == 0:
                    m.append(I('s_add_u32 m0, s%d, %d' % (slot, cst)))
                d = I('buffer_load_dwordx4 v%d, s[%d:%d], s%d offen offset:%d %s lds' % (vv[j // self.KS if X else 0], srd, srd + 3, off, j * 1024, fl), tag=tag or self.tag(which, t))
            else:
                if j % 4 == 0:
                    m.append(I('s_add_u32 m0, s%d, %d' % (slot, cst + j * 1024)))
                d = I('buffer_load_dwordx4 v%d, s[%d:%d], s%d offen offset:%d %s lds' % (vv[j], srd, srd + 3, off, (j % 4) * 1024, fl), tag=tag or self.tag(which, t))
            post = []
            if j == nd - 1:
                post = [L('s_add_u32 s%d, s%d, %d' % (off, off, step))]
                if not self.static:
                    post += [L('s_add_u32 s%d, s%d, %d' % (slot, slot, sz)),
                             L('s_sub_u32 s%d, s%d, %d' % (T3, slot, ns * sz), 's_min_u32 s%d, s%d, s%d' % (slot, slot, T3))]
            items.append(Item(m, d, post, lds))
        return items

    def order(self):
        return ['W', 'X'] if self.nX >= self.nW else ['X', 'W']

    def G(self, t):
        R = []
        for wch in self.order():
            tt = t + (self.nX if wch == 'X' else self.nW)
            if tt < self.T and not (wch == 'X' and self.xres):
                R += self.group(wch, tt)
        return R

    def first_groups(self):
        R = []
        for t in range(max(self.nX, self.nW) - 1):
            if t < self.nX - 1 and not self.xres:
                R.append(self.group('X', t, tag=None if (self.static or t) else self.name + 'X0'))
            if t < self.nW - 1:
                R.append(self.group('W', t, tag=None if (self.static or t) else self.name + 'W0'))
        return R

    def live_ranges(self, b):
        R = []
        for t in range(b + 1, min(self.T, b + 1 + max(self.nX, self.nW))):
            if not self.xres and t < b + 1 + self.nX:
                R.append((self.xbase + self.xslot_of(t) * self.xsz, self.xbase + (self.xslot_of(t) + 1) * self.xsz))
            if t < b + 1 + self.nW:
                R.append((self.wbase + self.wslot_of(t) * self.wsz, self.wbase + (self.wslot_of(t) + 1) * self.wsz))
        return R

    def reads(self, t, kks, st):
        out = []
        xo = self.xslot_of(t) * self.xsz if self.static else 0
        wo = self.wslot_of(t) * self.wsz if self.static else 0
        for fi, kk in enumerate(kks):
            rx = []
            if not self.xres:
                for b in range(self.nxb):
                    o = xo + (b * 16 * self.xrow if self.xtype == 'rowk' else (b * self.KS + kk) * 1024)
                    rx.append(I('ds_read_b128 %s, v%d offset:%d' % (self.fX[st][fi][b].r(0, 4),
                                                                    self.aX[o >> self.ws][kk if self.xtype == 'rowk' else 0], o & ((1 << self.ws) - 1))))
            rw = []
            for b in range(self.nwb):
                if self.wfrag(t):
                    o = wo + (kk * self.TW // 16 + b) * 1024
                    rw.append(I('ds_read_b128 %s, v%d offset:%d' % (self.fW[st][fi][b].r(0, 4), self.aWf[o >> 16], o & 65535)))
                    continue
                for h in range(2):
                    o = wo + (32 * kk + (16 if self.kperm else 4) * h) * self.wrow + (b // self.naw) * self.naw * 32
                    rw.append(I('ds_read_b64_tr_b16 %s, v%d offset:%d' % (self.fW[st][fi][b].r(2 * h, 2), self.aW[o >> self.ws][b % self.naw], o & ((1 << self.ws) - 1))))
            out += (rx + rw) if self.wmajor else (rx[:1] + rw + rx[1:])
        return out

    def xfrag(self, t, st, fi, x):
        return self.fX[st][fi][x]

    def mfmas(self, t, st, zero=False):
        R = []
        for fi in range(self.FS):
            for x, w in ([(x, w) for w in range(self.nwb) for x in range(self.nxb)] if self.wmajor else
                         [(x, w) for x in range(self.nxb) for w in range(self.nwb)]):
                if True:
                    xa, wa = self.xfrag(t, st, fi, x).r(0, 4), self.fW[st][fi][w].r(0, 4)
                    a, b = (wa, xa) if self.swap else (xa, wa)
                    c = self.acc[x][w].r(0, 4)
                    R.append(I('%s %s, %s, %s, %s' % (MF, c, a, b, '0' if (zero and fi == 0) else c)))
        return R

    def geom(self):
        tile = self.mode == 'tile'
        nsteps = 1 if tile else self.KS
        nm = self.nm * self.FS
        return tile, nsteps, nm, nsteps * nm, (nsteps - 1) * nm

    def rdgap(self, i, stp=0):
        r = self.rdpg[stp] if isinstance(self.rdpg, (list, tuple)) else self.rdpg
        return int(i / r)

    def positions(self, n):
        tile, nsteps, nm, NG, bar = self.geom()
        nrd = len(self.reads(0, range(self.FS), 0))
        cnt = [0] * NG
        for stp in range(nsteps):
            for i in range(nrd):
                cnt[stp * nm + self.rdgap(i, stp)] += 1
        end = NG + bar - (0 if tile else max(2, nm // 4))
        cand = [g for g in range(bar, end - 1) if cnt[g % NG] == 0]
        if len(cand) < n:
            cand = [g for g in range(bar, end - 1) if cnt[g % NG] <= 1]
        if len(cand) < n:
            cand = list(range(bar, end - 1))
        return [cand[i * len(cand) // n] for i in range(n)]

    def split(self, items):
        NG = self.geom()[3]
        pos = self.positions(len(items))
        n3 = sum(1 for p in pos if p < NG)
        return list(zip(items[:n3], pos[:n3])), [(it, p - NG) for it, p in zip(items[n3:], pos[n3:])]

    def iter(self, t, late, early, extra=(), zero=False, last=False, tailcode=(), extra_mf=(), needs=None, xg=None, cap=2.0):
        s = self.s
        tile, nsteps, nm, NG, bar = self.geom()
        head = [[] for _ in range(NG)]
        gaps = [[] for _ in range(NG)]
        pre_gap = [[] for _ in range(NG)]
        load = [0.0] * NG
        par = t % 2 if tile else 0
        nrd = len(self.reads(0, range(self.FS), 0))
        lastrd = self.rdgap(nrd - 1, max(0, nsteps - 2))
        rds = [[] for _ in range(NG)]
        for stp in range(nsteps):
            cur = (stp + par) % 2
            nxt_tile = tile or stp == nsteps - 1
            if not (last and nxt_tile):
                rl = self.reads(t + 1 if nxt_tile else t, range(self.KS) if tile else [(stp + 1) % self.KS], 1 - cur)
                for i, r in enumerate(rl):
                    g = stp * nm + self.rdgap(i, stp)
                    assert g < (stp + 1) * nm
                    rds[g].append(r)
                    load[g] += 1 if len(rds[g]) == 1 else 2
            if not self.wmajor:
                pre_gap[stp * nm].append(I('s_waitcnt lgkmcnt(0)'))
            else:
                for w in range(0, self.nwb, 4):
                    regs = [self.fW[cur][0][u] for u in range(w, min(self.nwb, w + 4))] + (self.fX[cur][0] if w == 0 else [])
                    pre_gap[stp * nm + w * self.nxb].append(I('', needs=[r.r(k) for r in regs for k in range(4)]))
        if not self.static and not last:
            upd = []
            for rd, sz, n, d in ((s['xrd'], self.xsz, self.nX, T0), (s['wrd'], self.wsz, self.nW, T1)):
                upd += [L('s_add_u32 s%d, s%d, %d' % (d, rd, sz), 's_sub_u32 s%d, s%d, %d' % (T2, d, n * sz)),
                        L('s_min_u32 s%d, s%d, s%d' % (T2, d, T2), 's_sub_u32 s%d, s%d, s%d' % (d, T2, rd)),
                        L('s_mov_b32 s%d, s%d' % (rd, T2))]
            updv = [I('v_add_u32 v%d, s%d, v%d' % (a, T0, a)) for a in self.aX[0]]
            updv += [I('v_add_u32 v%d, s%d, v%d' % (a, T1, a)) for a in self.aW[0]]
            ub = max(0, nsteps - 2) * nm
            for i, u in enumerate(upd):
                gaps[ub + 1 + 2 * i].extend(u)
                load[ub + 1 + 2 * i] += len(u)
            room = nm - 1 - lastrd
            for i, u in enumerate(updv):
                g = ub + lastrd + 1 + (i * room // len(updv))
                gaps[g].append(u)
                load[g] += 1
        if needs is None:
            needs = []
            if not last:
                if self.static:
                    needs = [self.tag('W', t + 1)] + ([] if self.xres else [self.tag('X', t + 1)])
                else:
                    assert self.nW == 2 and self.nX == 3
                    needs = [self.tag('W', t + 1)]
        pre_gap[bar] = ([need(*needs)] if needs else []) + [I('s_waitcnt lgkmcnt(0)'), I('s_barrier')]
        for lst, lo, hi in ((late, 0, bar), (early, bar, NG)):
            prev = -1
            for i, (it, gi) in enumerate(lst):
                assert lo <= gi < hi or (not tile and lo <= gi < NG), (gi, lo, hi)
                if gi > lo and gi > prev:
                    gaps[gi - 1].extend(it.pre)
                    load[gi - 1] += len(it.pre)
                    head[gi].append(it.d)
                else:
                    head[gi].extend(it.pre + [it.d])
                    load[gi] += len(it.pre)
                load[gi] += 2
                prev = gi
                nxt = lst[i + 1][1] if i + 1 < len(lst) else gi + 6
                lim = min(nxt - 1, hi - 1)
                for q, pp in enumerate(it.post):
                    gq = min(gi + 1 + q, lim - 1)
                    if gq <= gi:
                        head[gi].extend(pp)
                        load[gi] += len(pp)
                    else:
                        gaps[gq].extend(pp)
                        load[gq] += len(pp)
        ex = [e if isinstance(e, (list, tuple)) else [e] for e in extra]
        g0, g1 = xg or (0, NG)
        g = g0
        for i, e in enumerate(ex):
            tgt = max(g, g0 + i * (g1 - g0) // len(ex))
            k = tgt
            room = g0 + (i + 1) * (g1 - g0) // len(ex) + 2
            c = sum(2 if x.kind in ('vst', 'vld', 'dma', 'trans') else 1 for x in e)
            while k < min(g1 - 1, room) and load[k] + min(c, cap) > cap:
                k += 1
            gaps[k].extend(e)
            load[k] += c
            g = k
        ms = []
        for stp in range(nsteps):
            ms += self.mfmas(t, (stp + par) % 2, zero=zero and stp == 0)
        out = []
        xm = list(extra_mf)
        for g in range(NG):
            out.extend(pre_gap[g])
            out.append(ms[g])
            fl = rds[g] + head[g] + gaps[g]
            if xm and load[g] > cap and len(fl) >= 2 and not any(f.kind in ('label', 'branch') for f in fl):
                k = len(fl) // 2
                while k < len(fl) and fl[k].op.startswith(('s_cselect', 's_addc')):
                    k += 1
                fl = fl[:k] + [xm.pop(0)] + fl[k:]
            out.extend(fl)
        out += xm + list(tailcode)
        return out

    def zero_acc(self):
        P = []
        for x in range(self.nxb):
            for w in range(self.nwb):
                a = self.acc[x][w]
                for r in range(4):
                    P.append(I(('v_accvgpr_write_b32 %s, 0' if a.kind == 'a' else 'v_mov_b32 %s, 0') % a.r(r)))
        return P

    def start(self, needs=None):
        if needs is None:
            needs = [self.tag('W', 0)] + ([] if self.xres else [self.tag('X', 0)])
            if not self.static:
                needs = [self.name + 'W0', self.name + 'X0']
        return [need(*needs), I('s_barrier')] + self.reads(0, range(self.FS), 0)


def disjoint(r, ranges):
    return all(r[1] <= a or r[0] >= b for a, b in ranges)


def graft(g, b, own, queue, maxn):
    live = g.live_ranges(b)
    R = list(own)
    assert not (own and queue) or any('m0' in x.wr for x in queue[0].pre), 'grafted item would inherit a foreign m0'
    while queue and len(R) < maxn and disjoint(queue[0].lds, live):
        R.append(queue.pop(0))
    return R


def run_static(g, lab, cnt, Gf, opts=None, loop=None, late0=None):
    P = []
    late = late0 if late0 is not None else g.split(Gf(-1))[1]
    t = 0
    while t < g.T:
        if loop and t == loop[0]:
            a, b, per = loop
            assert (b - a) % per == 0
            P += L('s_mov_b32 s%d, %d' % (cnt, (b - a) // per), lab + '_loop:')
            for u in range(a, a + per):
                early, nl = g.split(Gf(u))
                tc = L('s_sub_u32 s%d, s%d, 1' % (cnt, cnt), 's_cmp_lg_u32 s%d, 0' % cnt, 's_cbranch_scc1 %s_loop' % lab) if u == a + per - 1 else []
                kw = dict(opts(u)) if opts else {}
                assert all(x.op == '.stamp' for x in kw.get('tailcode', []))
                kw['tailcode'] = tc
                P += g.iter(u, late, early, **kw)
                late = nl
            t = b
            continue
        early, nl = g.split(Gf(t))
        kw = dict(opts(t)) if opts else {}
        if t == g.T - 1:
            kw['last'] = True
        P += g.iter(t, late, early, **kw)
        late = nl
        t += 1
    return P, [it for it, p in late]
```

```python
from asmlib import *
from engine import *

MB = 1 << 20
WS_K, WS_V, WS_Q, WS_HC, WS_Z2N, WS_G, WS_PART = 0, 16 * MB, 32 * MB, 48 * MB, 68 * MB, 72 * MB, 73 * MB
HC_KS = 156
HC_RB = HC_KS * 1024
HC_SIZE = 128 * HC_RB
P_X, P_CKV, P_WQ, P_WUK, P_WUV, P_WO, P_BX, P_WIN, P_WSP, P_BSP, P_WOUT, P_GATE, P_OUT, P_DBG, P_WS = [40 + 2 * i for i in range(15)]

SA = dict(xsrd=8, wsrd=12, xoff=20, woff=21, xslot=22, wslot=23, xrd=24, wrd=25)
SB = dict(xsrd=88, wsrd=92, xoff=36, woff=37, xslot=38, wslot=39)
OSRD, AUX, CNT = 16, 4, 28
QSRD = 16
E0, E1, E2, E3 = 84, 85, 29, 30
BANK = (8, 38)
MISC = 68
ACC0 = 72
VL16 = 6
VSTAMP = 7
LOG2E = 1.4426950408889634


def f2u(x):
    import struct
    return struct.unpack('<I', struct.pack('<f', x))[0]


def entry(nwg, endlab):
    return L('s_cmp_lt_u32 s2, %d' % nwg, 's_cbranch_scc1 L_go', 's_endpgm', 'L_go:',
             's_load_dwordx16 s[40:55], s[0:1], 0', 's_load_dwordx8 s[56:63], s[0:1], 64',
             's_load_dwordx4 s[64:67], s[0:1], 96', 's_load_dwordx2 s[68:69], s[0:1], 112',
             'v_lshrrev_b32 v1, 6, v0', 'v_readfirstlane_b32 s%d, v1' % WAVE, 'v_and_b32 v0, 63, v0',
             'v_lshlrev_b32 v%d, 4, v0' % VL16)


def srd(dst, ptr, size, off=0):
    if off:
        P = L('s_add_u32 s%d, s%d, %d' % (dst, ptr, off), 's_addc_u32 s%d, s%d, 0' % (dst + 1, ptr + 1))
    else:
        P = L('s_mov_b32 s%d, s%d' % (dst, ptr), 's_mov_b32 s%d, s%d' % (dst + 1, ptr + 1))
    return P + L('s_mov_b32 s%d, %d' % (dst + 2, size), 's_mov_b32 s%d, 0x20000' % (dst + 3))


def store4(src, va, off, flags='', soff=E1, base=E0, srd_=OSRD):
    src = src if isinstance(src, Reg) else Reg('v', src)
    hi, lo = off & ~4095, off & 4095
    P = L('s_add_u32 s%d, s%d, %d' % (soff, base, hi)) if hi else []
    P.append(I('buffer_store_dwordx4 %s, v%d, s[%d:%d], s%d offen offset:%d %s' % (
        src.r(0, 4), va, srd_, srd_ + 3, soff if hi else base, lo, flags)))
    return P


def with_pre(items, pre):
    items[0].pre = list(pre) + items[0].pre
    return items


pr = lambda r: 'v[%d:%d]' % (r, r + 1)


def items_code(items):
    return flat([it.all() for it in items])


class KV:
    NV = 14
    DA = 152

    def __init__(self, sSB, sH, sKV, stflags=''):
        self.__dict__.update(locals())
        frags = [256 + 4 * i for i in range(32)]
        self.g2 = []
        for isK in (True, False):
            pairs = [((x, 2 * p), (x, 2 * p + 1)) for x in range(8) for p in range(4)] if isK else \
                    [((2 * p, w), (2 * p + 1, w)) for p in range(4) for w in range(8)]
            amap = {}
            vlo = list(range(ACC0, 200, 4))
            for k, (a, b) in enumerate(pairs):
                if k < 14:
                    amap[a], amap[b] = 200 + 4 * k, vlo.pop(0)
                elif k < 23:
                    amap[a], amap[b] = vlo.pop(0), vlo.pop(0)
                else:
                    amap[a], amap[b] = 256 + 184 + 8 * (k - 23), 256 + 188 + 8 * (k - 23)
            accs = [amap[x, w] for x in range(8) for w in range(8)]
            g = Gemm('kv', 256, 256, 2, 2, 16, 'rowk', 2048, 8192, isK, 3, 2, SA, BANK[0], accs, frags, rdpg=0.5)
            g.pairs = pairs
            self.g2.append(g)
        self.g = self.g2[0]
        assert self.g.vend <= BANK[0] + 30

    def prologue(self):
        g = self.g
        G = g.first_groups()
        with_pre(G[0], srd(SA['xsrd'], P_CKV, 4 * MB) + L('s_lshl_b32 s%d, s%d, 19' % (SA['xoff'], self.sSB)) + g.setup_x())
        with_pre(G[1], L('s_cmp_eq_u32 s%d, 0' % self.sKV,
                         's_cselect_b32 s%d, s%d, s%d' % (SA['wsrd'], P_WUK, P_WUV),
                         's_cselect_b32 s%d, s%d, s%d' % (SA['wsrd'] + 1, P_WUK + 1, P_WUV + 1),
                         's_mov_b32 s%d, %d' % (SA['wsrd'] + 2, 8 * MB), 's_mov_b32 s%d, 0x20000' % (SA['wsrd'] + 3),
                         's_lshl_b32 s%d, s%d, 9' % (SA['woff'], self.sH)) + g.setup_w())
        return G

    def off(self, isK, k):
        return (k // 4) * 8192 + (k % 4) * 1024 if isK else (k // 8) * 16384 + (k % 8) * 1024

    def pack(self, isK, tmp):
        g = self.g2[0 if isK else 1]
        P = srd(OSRD, P_WS, 32 * MB) + g.wx_expr(E1)
        P += L('s_lshl_b32 s%d, s%d, 1' % (E0, self.sSB), 's_add_u32 s%d, s%d, s%d' % (E0, E0, E1), 's_lshl_b32 s%d, s%d, 16' % (E0, E0))
        P += g.ww_expr(E1)
        P += L('s_lshl_b32 s%d, s%d, %d' % (E1, E1, 12 if isK else 13), 's_add_u32 s%d, s%d, s%d' % (E0, E0, E1),
               's_lshl_b32 s%d, s%d, 20' % (E1, self.sH), 's_add_u32 s%d, s%d, s%d' % (E0, E0, E1))
        if not isK:
            P += L('s_add_u32 s%d, s%d, %d' % (E0, E0, WS_V))
        P += L('s_mov_b32 s%d, %d' % (E2, 8192 - 4096 if isK else 0), 's_mov_b32 s%d, %d' % (E3, 8192 - 4096 if isK else 16384 - 8192))
        order = list(range(23, 32)) + list(range(14, 23)) + list(range(14))
        dslot = 0
        self.qloc = {}
        for n, k in enumerate(order):
            a, b = g.acc[g.pairs[k][0][0]][g.pairs[k][0][1]], g.acc[g.pairs[k][1][0]][g.pairs[k][1][1]]
            t = tmp[n % len(tmp)]
            if a.kind == 'a':
                for u, tl in enumerate((a, b)):
                    for r in range(4):
                        P.append(I('v_accvgpr_read_b32 v%d, %s' % (t + 4 + 4 * u + r, tl.r(r))))
                src = [t + 4 + i for i in range(8)]
                d = t
            else:
                src = [a.base + i for i in range(4)] + [b.base + i for i in range(4)]
                d = a.base
            for r in range(4):
                P.append(I('v_cvt_pk_bf16_f32 v%d, v%d, v%d' % (d + r, src[2 * r], src[2 * r + 1])))
            if k >= 23:
                P += store4(d, VL16, self.off(isK, k), self.stflags)
                P[-1].wr.add('tag:kvst')
            elif k >= 14:
                da = self.DA + 4 * dslot
                dslot += 1
                for r in range(4):
                    P.append(I('v_accvgpr_write_b32 a%d, v%d' % (da + r, d + r)))
                self.qloc[k] = Reg('a', da)
            else:
                self.qloc[k] = Reg('v', d)
        return P

    def stores(self):
        R = []
        for k in range(23):
            grp = []
            if k and k % 4 == 0:
                grp += L('s_add_u32 s%d, s%d, 4096' % (E0, E0), 's_add_u32 s%d, s%d, s%d' % (E0, E0, E3 if k % 8 == 0 else E2))
            grp.append(I('buffer_store_dwordx4 %s, v%d, s[%d:%d], s%d offen offset:%d %s' % (
                self.qloc[k].r(0, 4), VL16, OSRD, OSRD + 3, E0, (k % 4) * 1024, self.stflags), tag='kvst'))
            R.append(grp)
        return R


NOQST = [0]


class QJ:
    QP = 136

    def __init__(self, sQ1, sQ2, sH, stflags=''):
        self.__dict__.update(locals())
        self.maps = []
        hi = list(range(200, 256, 4)) + [72, 76]
        lo = list(range(80, 136, 4)) + [256 + 144, 256 + 148]
        self.QP2 = hi
        for blk in range(2):
            amap = {}
            for x in range(2):
                for p in range(8):
                    k = x * 8 + p
                    amap[x, 2 * p], amap[x, 2 * p + 1] = (self.QP + 4 * k, ACC0 + 4 * k) if blk == 0 else (hi[k], lo[k])
            self.maps.append([amap[x, w] for x in range(2) for w in range(16)])
        frags = [256 + 4 * i for i in range(36)]
        self.g = Gemm('q', 128, 256, 4, 1, 14, 'rowk', 896, 8192, True, 4, 3, SB, BANK[1], self.maps[0], frags, static=True, x0=2,
                      rdpg=(1.25, 1.1), wmajor=True)
        assert self.g.vend <= BANK[1] + 30

    def grp(self, which, t):
        pre = None
        if t == 7:
            pre = L('s_mul_i32 s%d, s%d, %d' % (SB['xoff'], self.sQ2, 128 * 896)) if which == 'X' else L('s_lshl_b32 s%d, s%d, 9' % (SB['woff'], self.sH))
        return self.g.group(which, t, pre=pre)

    def G(self, t):
        return (self.grp('W', t + 3) if t + 3 < 14 else []) + (self.grp('X', t + 4) if t + 4 < 14 else [])

    def prologue(self):
        G = self.g.first_groups()
        return [G[0], G[2], G[1], G[3], G[4]]

    def setup(self):
        g = self.g
        return srd(SB['xsrd'], P_X, 2048 * 896) + L('s_mul_i32 s%d, s%d, %d' % (SB['xoff'], self.sQ1, 128 * 896)) + g.setup_x() + \
            srd(SB['wsrd'], P_WQ, 448 * 8192) + L('s_lshl_b32 s%d, s%d, 9' % (SB['woff'], self.sH)) + g.setup_w()

    def pack(self, blk, stores):
        P = L('v_mov_b32 v4, 0x%x' % f2u(LOG2E / 16))
        m = self.maps[blk]
        for k in range(16):
            a, b = m[2 * k], m[2 * k + 1]
            if b >= 256:
                P += [I('v_accvgpr_read_b32 v%d, a%d' % (8 + r, b - 256 + r)) for r in range(4)]
                b = 8
            for r in (a, a + 2, b, b + 2):
                P.append(I('v_pk_mul_f32 %s, %s, %s op_sel_hi:[1,0]' % (pr(r), pr(r), pr(4))))
            for i, r in enumerate((a, a + 2, b, b + 2)):
                P.append(I('v_cvt_pk_bf16_f32 v%d, v%d, v%d' % (a + i, r, r + 1)))
            P += stores[k]
        return P

    def quads(self, blk):
        return [self.QP + 4 * k for k in range(16)] if blk == 0 else self.QP2

    def store_setup(self, sbase, sblk):
        P = srd(QSRD, P_WS, 0 if NOQST[0] else 16 * MB, off=WS_Q)
        P += L('s_lshl_b32 s%d, s%d, 2' % (sbase, sblk), 's_add_u32 s%d, s%d, s%d' % (sbase, sbase, WAVE), 's_lshl_b32 s%d, s%d, 14' % (sbase, sbase),
               's_lshl_b32 s%d, s%d, 20' % (U0, self.sH), 's_add_u32 s%d, s%d, s%d' % (sbase, sbase, U0))
        return P

    def stores(self, sbase, blk, tag='qst'):
        R = []
        for k, q in enumerate(self.quads(blk)):
            grp = L('s_add_u32 s%d, s%d, 4096' % (sbase, sbase)) if (k and k % 4 == 0) else []
            grp.append(I('buffer_store_dwordx4 v[%d:%d], v%d, s[%d:%d], s%d offen offset:%d %s' % (
                q, q + 3, VL16, QSRD, QSRD + 3, sbase, (k % 4) * 1024, self.stflags), tag=tag))
            R.append(grp)
        return R


GC0 = -2.0 * LOG2E * 0.7978845608028654
GC1 = GC0 * 0.044715


def gelu_regs(regs, vC0, vC1, tmps):
    P = []
    n = len(tmps)
    for i0 in range(0, len(regs), n):
        grp = list(zip(regs[i0:i0 + n], tmps))
        g2 = grp[0::2]
        P += [I('v_pk_mul_f32 %s, %s, %s' % (pr(t), pr(x), pr(x))) for x, t in g2]
        P += [I('v_pk_fma_f32 %s, %s, %s, %s' % (pr(t), pr(t), pr(vC1), pr(vC0))) for x, t in g2]
        P += [I('v_pk_mul_f32 %s, %s, %s' % (pr(t), pr(t), pr(x))) for x, t in g2]
        P += [I('v_exp_f32 v%d, v%d' % (t, t)) for x, t in grp]
        P += [I('v_pk_add_f32 %s, %s, 1.0 op_sel_hi:[1,0]' % (pr(t), pr(t))) for x, t in g2]
        P += [I('v_rcp_f32 v%d, v%d' % (t, t)) for x, t in grp]
        P += [I('v_pk_mul_f32 %s, %s, %s' % (pr(x), pr(x), pr(t))) for x, t in g2]
    return P


def gelu_consts(vC0, vC1):
    return L('v_mov_b32 v%d, 0x%x' % (vC0, f2u(GC0)), 'v_mov_b32 v%d, 0x%x' % (vC0 + 1, f2u(GC0)),
             'v_mov_b32 v%d, 0x%x' % (vC1, f2u(GC1)), 'v_mov_b32 v%d, 0x%x' % (vC1 + 1, f2u(GC1)))


def xlane_reduce(reg, tmp, op):
    return L('v_mov_b32 v%d, v%d' % (tmp, reg), 'v_permlane32_swap_b32 v%d, v%d' % (reg, tmp),
             '%s v%d, v%d, v%d' % (op, reg, reg, tmp),
             'v_mov_b32 v%d, v%d' % (tmp, reg), 'v_permlane16_swap_b32 v%d, v%d' % (reg, tmp),
             '%s v%d, v%d, v%d' % (op, reg, reg, tmp))


class Z2:
    XST = 104 * 1024
    RED = 65536 + 6144

    def __init__(self, sRB, stflags=''):
        self.__dict__.update(locals())
        self.A = [ACC0 + 4 * i for i in range(8)]
        self.TM = list(range(104, 112))
        self.ZP = 112
        self.ST = 224
        self.XF = 256 + 32
        g = self.g = Gemm('z', 64, 128, 1, 4, 49, 'rowk', 896, 3584, False, 7, 10, SB, BANK[1], self.A, [256 + 4 * i for i in range(8)],
                          mode='tile', static=True, xres=True, xbase=self.XST, wbase=0, rdpg=1)
        g.xfrag = lambda t, st, fi, x: uni(self.XF + 4 * (x * 14 + 2 * (t % 7) + fi))
        assert g.vend <= 58
        self.C0, self.C1 = 58, 60

    def wg(self, t):
        return self.g.group('W', t, wstep=(64 * 3584 if t % 7 != 6 else (256 - 6 * 64 * 3584) & 0xffffffff))

    def zq(self, c, p, w):
        return self.ZP + ((c * 2 + p) * 2 + w) * 4

    def post_chunk(self, c):
        P = []
        for x in range(4):
            regs = [self.A[x * 2 + w] + r for w in range(2) for r in range(4)]
            P += gelu_regs(regs, self.C0, self.C1, self.TM)
            for i in range(0, 8, 2):
                s1, s2 = self.ST + 4 * x + (i & 2), self.ST + 16 + 4 * x + (i & 2)
                P.append(I('v_pk_add_f32 %s, %s, %s' % (pr(s1), pr(s1), pr(regs[i]))))
                P.append(I('v_pk_fma_f32 %s, %s, %s, %s' % (pr(s2), pr(regs[i]), pr(regs[i]), pr(s2))))
                P.append(I('v_cvt_pk_bf16_f32 v%d, v%d, v%d' % (self.zq(c, x // 2, i // 4) + 2 * (x % 2) + (i & 2) // 2, regs[i], regs[i] + 1)))
        return P

    def run(self, between, nxt_queue):
        g = self.g
        P = srd(SB['wsrd'], P_WIN, 448 * 3584) + L('s_mov_b32 s%d, 1792' % SB['woff']) + g.setup_w() + items_code(self.wg(0))
        P += srd(SB['xsrd'], P_X, 2048 * 896) + L('s_mul_i32 s%d, s%d, %d' % (SB['xoff'], self.sRB, 64 * 896)) + g.setup_x()
        for t in range(7):
            P += items_code(g.group('X', t, tag='zX'))
        for t in range(1, 6):
            P += items_code(self.wg(t))
        P += between
        P += g.setup_read() + gelu_consts(self.C0, self.C1) + [I('v_mov_b32 v%d, 0' % (self.ST + i)) for i in range(32)]
        P += [need('zX', g.tag('W', 0)), I('s_barrier')]
        P += g.reads(0, range(2), 0)
        for t in range(7):
            for kk in range(2):
                for x in range(4):
                    P.append(I('ds_read_b128 %s, v%d offset:%d' % (g.xfrag(t, 0, kk, x).r(0, 4), g.aX[0][kk], t * 8192 + x * 2048)))
        P.append(STAMP(41))

        def Gf(t):
            own = []
            if t == 0:
                own = flat([self.wg(u) for u in range(6, 11)])
            elif 0 < t and t + 10 < 49:
                own = self.wg(t + 10)
            if t + 10 >= 49:
                own = graft(g, t, own, nxt_queue, 6)
            return own
        for t in range(49):
            c = t // 7
            early, _ = g.split(Gf(t))
            P += g.iter(t, [], early, zero=(t % 7 == 0), last=(t == 48),
                        tailcode=((self.post_chunk(c) if c < 6 else []) + [STAMP(42 + c)]) if t % 7 == 6 else [])
        return P

    def epi(self):
        g = self.g
        P = self.post_chunk(6)
        A = lambda x: P.append(I(x))
        ST = self.ST
        for sh in (8, 4, 2, 1):
            for i in range(32):
                A('v_add_f32_dpp v%d, v%d, v%d row_ror:%d row_mask:0xf bank_mask:0xf' % (ST + i, ST + i, ST + i, sh))
        P += L('v_lshrrev_b32 v2, 4, v0', 'v_lshlrev_b32 v2, 4, v2', 'v_add_u32 v2, %d, v2' % self.RED,
               's_lshl_b32 s%d, s%d, 9' % (U0, WAVE), 'v_add_u32 v3, s%d, v2' % U0)
        for i in range(8):
            A('ds_write_b128 v3, v[%d:%d] offset:%d' % (ST + 4 * i, ST + 4 * i + 3, 64 * i))
        P += L('s_waitcnt lgkmcnt(0)', 's_barrier')
        T = ACC0
        for i in range(8):
            A('ds_read_b128 v[%d:%d], v2 offset:%d' % (ST + 4 * i, ST + 4 * i + 3, 64 * i))
        for w in range(1, 4):
            for i in range(8):
                A('ds_read_b128 v[%d:%d], v2 offset:%d' % (T + 4 * i, T + 4 * i + 3, 512 * w + 64 * i))
            for i in range(0, 32, 2):
                A('v_pk_add_f32 %s, %s, %s' % (pr(ST + i), pr(ST + i), pr(T + i)))
        seqs = []
        for i in range(16):
            m, v = ST + i, ST + 16 + i
            seqs.append(L('v_mul_f32 v%d, 0x%x, v%d' % (m, f2u(1.0 / 896), m), 'v_mul_f32 v%d, 0x%x, v%d' % (v, f2u(1.0 / 896), v),
                          'v_fma_f32 v%d, -v%d, v%d, v%d' % (v, m, m, v), 'v_max_f32 v%d, 0, v%d' % (v, v),
                          'v_add_f32 v%d, 0x%x, v%d' % (v, f2u(1e-5), v), 'v_rsq_f32 v%d, v%d' % (v, v),
                          'v_mul_f32 v%d, -v%d, v%d' % (m, m, v)))
        for k in range(7):
            P += [q_[k] for q_ in seqs]
        P.append(STAMP(49))
        P += srd(OSRD, P_WS, 2048 * 1792, off=WS_Z2N)
        P += L('v_and_b32 v1, 15, v0', 'v_bfe_u32 v2, v0, 5, 1', 'v_bfe_u32 v3, v0, 4, 1', 'v_lshl_add_u32 v2, v3, 1, v2',
               'v_lshl_add_u32 v2, v2, 4, v1', 'v_lshlrev_b32 v5, 4, v2',
               's_mul_i32 s%d, s%d, %d' % (E0, self.sRB, 2 * 57344), 's_lshl_b32 s%d, s%d, 11' % (E1, WAVE),
               's_add_u32 s%d, s%d, s%d' % (E0, E0, E1))
        k = 0
        for c in range(7):
            for p in range(2):
                for w in range(2):
                    z = self.zq(c, p, w)
                    t = ACC0 + 8 * (k % 4)
                    k += 1
                    for r in range(4):
                        A('v_lshlrev_b32 v%d, 16, v%d' % (t + 2 * r, z + r))
                        A('v_and_b32 v%d, 0xffff0000, v%d' % (t + 2 * r + 1, z + r))
                    for r in range(4):
                        A('v_pk_fma_f32 %s, %s, %s, %s' % (pr(t + 2 * r), pr(t + 2 * r), pr(ST + 16 + 8 * p + 2 * r), pr(ST + 8 * p + 2 * r)))
                    for r in range(4):
                        A('v_cvt_pk_bf16_f32 v%d, v%d, v%d' % (z + r, t + 2 * r, t + 2 * r + 1))
                    A('v_permlane16_swap_b32 v%d, v%d' % (z, z + 2))
                    A('v_permlane16_swap_b32 v%d, v%d' % (z + 1, z + 3))
                    P += store4(z, 5, p * 57344 + c * 8192 + w * 1024, self.stflags)
        P.append(STAMP(50))
        return P


class GH:
    def __init__(self, sTB, sFB, stflags='', wfl=''):
        self.__dict__.update(locals())
        accs = [ACC0 + 4 * i for i in range(16)]
        g = self.g = Gemm('g', 128, 128, 2, 2, 39, 'rowk', 896, 3584, True, 5, 5, SB, BANK[1], accs, [256 + 4 * i for i in range(32)],
                          mode='tile', static=True, rdpg=1, wfl=wfl, x0=2)
        v = g.vend
        self.vX2 = list(range(v, v + 4))
        self.vW2 = [v + 4]
        g.aWf = [v + 5, v + 6]
        g.wfrag = lambda t: t >= 7
        assert v + 7 <= BANK[1] + 30, v
        self.Z, self.GA, self.bias, self.C0, self.C1, self.TM = 136, 8, 24, 28, 30, list(range(200, 216))
        self.GF = [128 + 4 * i for i in range(6)] + [188 + 4 * i for i in range(8)]

    rot = None

    def grp(self, which, t, wait_z2=()):
        g = self.g
        X = which == 'X'
        pre = None
        if t == 7:
            pre = srd(SB['xsrd'], P_WSP, 8 * MB) if X else list(wait_z2) + srd(SB['wsrd'], P_WS, 2048 * 1792, off=WS_Z2N)
            if not self.rot:
                pre += L('s_lshl_b32 s%d, s%d, %d' % ((SB['xoff'], self.sTB, 19) if X else (SB['woff'], self.sFB, 13)))
        if self.rot and t >= 7:
            k = self.rot[1 if X else 2]
            off = SB['xoff' if X else 'woff']
            pre = (pre or []) + (L('s_mov_b32 s%d, s%d' % (k, self.rot[0])) if t == 7 else L('s_add_u32 s%d, s%d, 1' % (k, k), 's_and_b32 s%d, s%d, 31' % (k, k)))
            pre += L('s_mul_i32 s%d, s%d, %d' % (off, k, 128 if X else 114688),
                     's_lshl_b32 s%d, s%d, %d' % ((T3, self.sTB, 19) if X else (T3, self.sFB, 13)), 's_add_u32 s%d, s%d, s%d' % (off, off, T3))
        if X:
            R = g.group('X', t, vregs=self.vX2 if t >= 7 else None, pre=pre)
        else:
            R = g.group('W', t, vregs=self.vW2 if t >= 7 else None, wstep=64 * (1792 if t >= 7 else 3584), pre=pre)
        if self.rot and t >= 7:
            R[-1].post = []
        return R

    def prologue(self):
        X = [self.grp('X', t) for t in range(5)]
        W = [self.grp('W', t) for t in range(5)]
        return [X[0], X[1], W[0], W[1], X[2], W[2], X[3], W[3], X[4], W[4]]

    def setup(self):
        g = self.g
        return srd(SB['xsrd'], P_X, 2048 * 896) + L('s_mul_i32 s%d, s%d, %d' % (SB['xoff'], self.sTB, 128 * 896)) + g.setup_x() + \
            srd(SB['wsrd'], P_WIN, 448 * 3584) + L('s_lshl_b32 s%d, s%d, 8' % (SB['woff'], self.sFB)) + g.setup_w()

    def gate_loads(self, ks):
        P = srd(AUX, P_GATE, 896) + L('v_lshrrev_b32 v1, 4, v0', 'v_lshlrev_b32 v1, 4, v1')
        for k in ks:
            P.append(I('buffer_load_dwordx4 a[%d:%d], v1, s[4:7], 0 offen offset:%d' % (self.GF[k], self.GF[k] + 3, 64 * k)))
        return P

    def bias_loads(self):
        P = srd(AUX, P_BSP, 4096) + self.g.wx_expr(U1)
        P += L('v_and_b32 v1, 15, v0', 's_lshl_b32 s%d, s%d, 7' % (U0, self.sTB), 's_lshl_b32 s%d, s%d, 6' % (U1, U1),
               's_add_u32 s%d, s%d, s%d' % (U0, U0, U1), 'v_add_lshl_u32 v1, s%d, v1, 1' % U0)
        for x in range(4):
            P.append(I('buffer_load_ushort v%d, v1, s[4:7], 0 offen offset:%d' % (self.bias + x, x * 32)))
        return P

    def prep(self):
        g = self.g
        W = L('s_lshr_b32 s%d, s%d, 1' % (U0, WAVE), 's_mul_i32 s%d, s%d, 57344' % (U1, U0), 's_lshl_b32 s%d, s%d, 12' % (U0, U0),
              's_add_u32 s%d, s%d, %d' % (U0, U0, g.wbase), 'v_add_u32 v%d, s%d, v%d' % (g.aWf[0], U0, VL16),
              'v_add_u32 v%d, 65536, v%d' % (g.aWf[1], g.aWf[0]),
              's_and_b32 s%d, s%d, 1' % (U0, WAVE), 's_lshl_b32 s%d, s%d, 12' % (U0, U0), 's_add_u32 s%d, s%d, s%d' % (U0, U0, U1),
              'v_add_u32 v%d, s%d, v%d' % (self.vW2[0], U0, VL16))
        return g.setup_read() + g.voff_x(self.vX2, 4096) + W

    def gate_mf(self, t):
        g = self.g
        R = []
        for kk in range(2):
            gf = self.GF[2 * t + kk]
            for x in range(4):
                c = 'v[%d:%d]' % (self.GA + 4 * x, self.GA + 4 * x + 3)
                R.append(I('%s %s, a[%d:%d], %s, %s' % (MF, c, gf, gf + 3, g.fX[t % 2][kk][x].r(0, 4), '0' if (t == 0 and kk == 0) else c)))
        return R

    def switch(self):
        g = self.g
        P = gelu_consts(self.C0, self.C1)
        acc = [ACC0 + i for i in range(64)]
        P += gelu_regs(acc, self.C0, self.C1, self.TM)
        for k in range(5):
            for x in range(4):
                a = self.GA + 4 * x
                P.append(I(['v_mul_f32 v%d, 0x%x, v%d' % (a, f2u(-LOG2E), a), 'v_exp_f32 v%d, v%d' % (a, a), 'v_add_f32 v%d, 1.0, v%d' % (a, a),
                            'v_rcp_f32 v%d, v%d' % (a, a), 'v_sub_f32 v%d, 1.0, v%d' % (a + 2, a)][k]))
        for i in range(0, 64, 2):
            P.append(I('v_pk_mul_f32 %s, %s, %s op_sel_hi:[1,0]' % (pr(self.Z + i), pr(acc[i]), pr(self.GA + 4 * (i // 16) + 2))))
        P += g.ww_expr(U1) + L('s_or_b32 s%d, s%d, s%d' % (U1, U1, self.sFB), 's_cmp_lg_u32 s%d, 0' % U1, 's_cbranch_scc1 gh_ng')
        P += srd(AUX, P_WS, 8192, off=WS_G) + g.wx_expr(U1)
        P += L('s_lshl_b32 s%d, s%d, 1' % (U0, self.sTB), 's_add_u32 s%d, s%d, s%d' % (U0, U0, U1), 's_lshl_b32 s%d, s%d, 8' % (U0, U0),
               'v_and_b32 v1, 15, v0', 'v_lshlrev_b32 v1, 2, v1')
        for x in range(4):
            P.append(I('buffer_store_dword v%d, v1, s[4:7], s%d offen offset:%d %s' % (self.GA + 4 * x, U0, x * 64, self.stflags), tag='gst'))
        P += L('gh_ng:')
        return P

    def epi(self):
        g = self.g
        P = srd(OSRD, P_WS, HC_SIZE, off=WS_HC) + g.wx_expr(E1)
        P += L('s_lshl_b32 s%d, s%d, 1' % (E0, self.sTB), 's_add_u32 s%d, s%d, s%d' % (E0, E0, E1),
               's_mul_i32 s%d, s%d, %d' % (E0, E0, 4 * HC_KS), 's_lshl_b32 s%d, s%d, 2' % (E1, self.sFB),
               's_add_u32 s%d, s%d, s%d' % (E0, E0, E1))
        P += g.ww_expr(E1) + L('s_lshl_b32 s%d, s%d, 1' % (E1, E1), 's_add_u32 s%d, s%d, s%d' % (E0, E0, E1), 's_lshl_b32 s%d, s%d, 10' % (E0, E0))
        for x in range(4):
            P.append(I('v_lshlrev_b32 v%d, 16, v%d' % (self.C0, self.bias + x)))
            for p in range(2):
                a = g.acc[x][2 * p].base
                for r in range(0, 8, 2):
                    P += L('v_pk_add_f32 %s, %s, %s op_sel_hi:[1,0]' % (pr(a + r), pr(a + r), pr(self.C0)),
                           'v_pk_mul_f32 %s, %s, %s' % (pr(a + r), pr(a + r), pr(self.Z + a - ACC0 + r)))
                for r in range(4):
                    P.append(I('v_cvt_pk_bf16_f32 v%d, v%d, v%d' % (a + r, a + 2 * r, a + 2 * r + 1)))
                P += store4(a, VL16, x * HC_RB + p * 1024, self.stflags)
        return P


XSLEEP = [8]
OUTFL = ['']
WS_XP = 84 * MB


class FIN:
    NH = 4

    def __init__(self, sTB, sMB, sS, xfl=''):
        S = dict(xsrd=8, wsrd=12, xoff=20, woff=21, xslot=22, wslot=23, xslots=[22, 24], wslots=[23, 25])
        self.__dict__.update(locals())
        self.AC = 128
        self.GR = [88, 89, 90, 91]
        g = self.g = Gemm('f', 128, 128, 2, 2, 20, 'frag', HC_RB, 896, True, 4, 4, S, 118, [self.AC + 4 * i for i in range(16)],
                          [256 + 4 * i for i in range(32)], BK=64, kperm=True, mode='tile', static=True, rdpg=1, xfl=xfl, gran=self.GR)
        assert g.vW[-1] <= 123
        g.aX = [[84], [85]]
        g.aW = [[86, 87, 88, 89], [90, 91, 92, 93]]

    def grp(self, which, t):
        S = self.S
        pre = None
        if which == 'W' and t == self.NH:
            pre = srd(S['wsrd'], P_WO, 4096 * 896) + L('s_mul_i32 s%d, s%d, %d' % (S['woff'], self.sS, 1024 * 896),
                                                       's_lshl_b32 s%d, s%d, 8' % (T3, self.sMB), 's_add_u32 s%d, s%d, s%d' % (S['woff'], S['woff'], T3))
        if which == 'X' and t == 2:
            pre = L('s_cmp_eq_u32 s%d, 3' % self.sS, 's_cselect_b32 s%d, 0, s%d' % (S['xsrd'] + 2, S['xsrd'] + 2))
        if which == 'X' and t == self.NH:
            pre = L('s_mov_b32 s%d, %d' % (S['xsrd'] + 2, HC_SIZE), 's_mul_i32 s%d, s%d, %d' % (S['xoff'], self.sTB, 8 * HC_RB),
                    's_lshl_b32 s%d, s%d, 15' % (T3, self.sS), 's_add_u32 s%d, s%d, s%d' % (S['xoff'], S['xoff'], T3),
                    's_add_u32 s%d, s%d, %d' % (S['xoff'], S['xoff'], 28 * 1024))
        return self.g.group(which, t, pre=pre)

    def setup_dma(self, vcur):
        g, S, GR = self.g, self.S, self.GR
        P = L('v_readfirstlane_b32 s%d, v%d' % (GR[3], vcur))
        for k in range(4):
            P += L('s_add_u32 s%d, s%d, 32768' % (GR[k], GR[k - 1]), 's_sub_u32 s%d, s%d, 163840' % (T3, GR[k]),
                   's_min_u32 s%d, s%d, s%d' % (GR[k], GR[k], T3))
        P += srd(S['xsrd'], P_WS, HC_SIZE, off=WS_HC) + L('s_mul_i32 s%d, s%d, %d' % (S['xoff'], self.sTB, 8 * HC_RB),
                                                          's_lshl_b32 s%d, s%d, 13' % (T3, self.sS),
                                                          's_add_u32 s%d, s%d, s%d' % (S['xoff'], S['xoff'], T3))
        P += g.voff_x(g.vX, HC_RB, t=(124, 125), st0=T3)
        P += srd(S['wsrd'], P_WOUT, 896 * 896) + L('s_mul_i32 s%d, s%d, %d' % (S['woff'], self.sS, 256 * 896),
                                                   's_lshl_b32 s%d, s%d, 8' % (T3, self.sMB),
                                                   's_add_u32 s%d, s%d, s%d' % (S['woff'], S['woff'], T3))
        P += g.voff_w(g.vW, 896, t=(124, 125, 126), st0=T3)
        P += L('s_lshl_b32 s%d, s%d, 12' % (T3, WAVE))
        for k, r in enumerate(S['xslots'] + S['wslots']):
            P += L('s_add_u32 s%d, s%d, s%d' % (r, GR[k], T3))
        return P

    def loop(self, hooks={}, pre12=()):
        NH = self.NH

        def Gf(t):
            if t < 0 or t + 4 >= 20:
                return []
            R = self.grp('W', t + 4)
            if t + 4 >= NH + 4:
                R += with_pre(self.grp('X', t + 4), pre12 if t + 4 == 12 else [])
            return R

        def opts(t):
            kw = dict(zero=(t == 0))
            kw.update(hooks.get(t, {}))
            if t == NH - 1:
                kw['last'] = True
                kw['tailcode'] = kw.get('tailcode', []) + items_code(flat([self.grp('X', u) for u in range(NH, NH + 4)])) + \
                    [need(self.g.tag('X', NH), self.g.tag('W', NH)), I('s_barrier')] + self.g.reads(NH, range(2), NH % 2)
            return kw
        P, _ = run_static(self.g, 'fin', CNT, Gf, opts=opts)
        return P

    def slot_base(self, dst, tmp):
        return L('s_lshl_b32 s%d, s%d, 2' % (dst, self.sTB), 's_add_u32 s%d, s%d, s%d' % (dst, dst, self.sMB), 's_lshl_b32 s%d, s%d, 2' % (dst, dst),
                 's_add_u32 s%d, s%d, s%d' % (dst, dst, self.sS), 's_lshl_b32 s%d, s%d, 2' % (dst, dst),
                 's_add_u32 s%d, s%d, s%d' % (dst, dst, WAVE), 's_lshl_b32 s%d, s%d, 13' % (dst, dst))

    def clear(self, v):
        R = [srd(AUX, P_WS, 64 * 16 * 8192, off=WS_XP) + self.slot_base(T0, None) + L(*['v_mov_b32 v%d, -1' % (v + i) for i in range(4)])]
        for k in range(8):
            R.append(store4(v, VL16, k * 1024, 'sc1', soff=T1, base=T0, srd_=AUX))
        return R

    def epi(self, end):
        g = self.g
        A = lambda x: P.append(I(x))
        P = srd(OSRD, P_WS, 64 * 16 * 8192, off=WS_XP) + self.slot_base(E0, None)
        for x in range(4):
            for p in range(2):
                a, b = g.acc[x][2 * p].base, g.acc[x][2 * p + 1].base
                for i, r in enumerate((a, a + 2, b, b + 2)):
                    A('v_cvt_pk_bf16_f32 v%d, v%d, v%d' % (a + i, r, r + 1))
                P += store4(a, VL16, (x * 2 + p) * 1024, 'sc1')
        P.append(STAMP(55))
        P += g.ww_expr(T3) + L('s_lshl_b32 s%d, s%d, 1' % (T1, self.sMB), 's_add_u32 s%d, s%d, s%d' % (T1, T1, T3),
                               's_cmp_ge_u32 s%d, 7' % T1, 's_cbranch_scc1 %s' % end)
        P += L('s_lshl_b32 s%d, s%d, 15' % (T3, self.sS), 's_sub_u32 s%d, s%d, s%d' % (E0, E0, T3),
               's_lshl_b32 s%d, s%d, 11' % (T3, self.sS), 's_add_u32 s%d, s%d, s%d' % (E0, E0, T3),
               'v_and_b32 v2, 15, v0', 'v_mul_u32_u24 v2, 896, v2', 'v_bfe_u32 v3, v0, 4, 1', 'v_lshl_add_u32 v2, v3, 5, v2',
               'v_lshrrev_b32 v3, 5, v0', 'v_lshl_add_u32 v5, v3, 4, v2', 's_mov_b32 s%d, 0' % T0, 'fx_again:')
        for sp in range(4):
            if sp:
                A('s_add_u32 s%d, s%d, %d' % (E1, E0, 32768 * sp))
            for p in range(2):
                d = 16 + (sp * 2 + p) * 4
                A('buffer_load_dwordx4 v[%d:%d], v%d, s[%d:%d], s%d offen offset:%d sc1' % (d, d + 3, VL16, OSRD, OSRD + 3, E1 if sp else E0, p * 1024))
        A('v_max3_u32 v8, v16, v17, v18')
        for r in range(19, 47, 2):
            A('v_max3_u32 v8, v8, v%d, v%d' % (r, r + 1))
        P += L('v_max_u32 v8, v8, v47', 'v_cmp_eq_u32 vcc, -1, v8', 's_add_u32 s%d, s%d, 1' % (T0, T0), 's_cmp_ge_u32 s%d, 400000' % T0,
               's_cbranch_scc1 fx_go', 's_cbranch_vccz fx_go', 's_sleep %d' % XSLEEP[0], 's_branch fx_again', 'fx_go:')
        P.append(STAMP(56))
        P += srd(AUX, P_OUT, 2048 * 896) + g.wx_expr(T3)
        P += L('s_lshl_b32 s%d, s%d, 1' % (E0, self.sTB), 's_add_u32 s%d, s%d, s%d' % (E0, E0, T3), 's_lshl_b32 s%d, s%d, 2' % (E0, E0),
               's_add_u32 s%d, s%d, s%d' % (E0, E0, self.sS), 's_mul_i32 s%d, s%d, %d' % (E0, E0, 16 * 896),
               's_lshl_b32 s%d, s%d, 7' % (T1, T1), 's_add_u32 s%d, s%d, s%d' % (E0, E0, T1))
        for p in range(2):
            acc = 64 + 8 * p
            for sp in range(4):
                d = 16 + (sp * 2 + p) * 4
                t = acc if sp == 0 else 48
                for r in range(4):
                    A('v_lshlrev_b32 v%d, 16, v%d' % (t + 2 * r, d + r))
                    A('v_and_b32 v%d, 0xffff0000, v%d' % (t + 2 * r + 1, d + r))
                if sp:
                    for r in range(4):
                        A('v_pk_add_f32 %s, %s, %s' % (pr(acc + 2 * r), pr(acc + 2 * r), pr(t + 2 * r)))
            for r in range(4):
                A('v_cvt_pk_bf16_f32 v%d, v%d, v%d' % (acc + r, acc + 2 * r, acc + 2 * r + 1))
            A('v_permlane16_swap_b32 v%d, v%d' % (acc, acc + 2))
            A('v_permlane16_swap_b32 v%d, v%d' % (acc + 1, acc + 3))
            P += store4(acc, 5, p * 64, OUTFL[0], srd_=AUX)
        return P


WS_FL = 96 * MB
FL_GRP, FL_G, FL_TB, FL_PAIR, FL_H, FL_X, FL_SIZE = 0, 1024, 1152, 2176 + 128, 4352 + 128, 8704, 16384
FSRD = 0


def flag_srd():
    return srd(FSRD, P_WS, FL_SIZE, off=WS_FL)


def z2_signal(lab):
    return L('s_cmp_lg_u32 s%d, 0' % WAVE, 's_cbranch_scc1 %s_ns' % lab, 'v_mov_b32 v1, 0', 'v_mov_b32 v2, 1', 's_mov_b64 exec, 1',
             'global_atomic_add v1, v2, s[%d:%d]' % (P_DBG, P_DBG + 1), 's_mov_b64 exec, -1', lab + '_ns:')


def signal(lab, off_sreg, only_wave0=True, va=1, vb=2):
    P = L('s_cmp_lg_u32 s%d, 0' % WAVE, 's_cbranch_scc1 %s_ns' % lab) if only_wave0 else []
    P += L('v_mov_b32 v%d, 0' % va, 'v_mov_b32 v%d, 1' % vb, 's_mov_b64 exec, 1',
           'buffer_store_dword v%d, v%d, s[%d:%d], s%d offen sc1' % (vb, va, FSRD, FSRD + 3, off_sreg), 's_mov_b64 exec, -1')
    return P + (L(lab + '_ns:') if only_wave0 else [])


def poll_load(vaddr, vdst, dbg=False):
    if dbg:
        return I('global_load_dword v%d, v%d, s[%d:%d] sc1' % (vdst, vaddr, P_DBG, P_DBG + 1))
    return I('buffer_load_dword v%d, v%d, s[%d:%d], 0 offen sc1' % (vdst, vaddr, FSRD, FSRD + 3))


def poll_check(lab, vaddr, vdst, tgt, sc=U1, maxit=400000, dbg=False):
    return L('s_mov_b32 s%d, 0' % sc, lab + '_chk:', 'v_cmp_le_u32 vcc, %d, v%d' % (tgt, vdst),
             's_cmp_eq_u64 vcc, -1', 's_cbranch_scc1 %s_ok' % lab,
             's_add_u32 s%d, s%d, 1' % (sc, sc), 's_cmp_ge_u32 s%d, %d' % (sc, maxit), 's_cbranch_scc1 %s_ok' % lab,
             's_sleep 1') + [poll_load(vaddr, vdst, dbg)] + L('s_waitcnt vmcnt(0)', 's_branch %s_chk' % lab, lab + '_ok:')


def lanes_addr(vaddr, base_s, first, count, tmp):
    return L('v_min_u32 v%d, %s, v0' % (tmp, count - 1 if isinstance(count, int) else count), 'v_lshlrev_b32 v%d, 2, v%d' % (tmp, tmp),
             'v_add_u32 v%d, s%d, v%d' % (vaddr, base_s, tmp)) + (L('v_add_u32 v%d, %d, v%d' % (vaddr, 4 * first, vaddr)) if first else [])
```

```python
import sys, json
from asmlib import *
from engine import *
from jobs import *
import attn

HDR = open('gated_mix__compressed_kv_cla__mixer_gmlp__prompt.s.ref').read().split('; Override')[0]

sPF = 87
sID = 52


def relabel(Q, tag):
    return [I(x.text.replace('@', tag)) if '@' in x.text else x for x in Q]


def retag(Q, tag):
    return [I(x.text.replace('@', tag)) if '@' in x.text else x for x in Q]


def pf_switch(ptr, size, n):
    return srd(AUX, ptr, size) + L('s_lshl_b32 s%d, s%d, 2' % (sPF, sID), 's_add_u32 s%d, s%d, s%d' % (sPF, sPF, WAVE),
                                   's_lshl_b32 s%d, s%d, %d' % (sPF, sPF, 6 + PFS[0]))


def pf_seq(dst, n):
    R = []
    for i in range(n):
        R += [pf_load(dst, sPF, 0, sparse=True)] + L('s_add_u32 s%d, s%d, %d' % (sPF, sPF, 65536 << PFS[0]))
    return R


PFS = [4]
VPS = 37


def pf_load(dst, soff, o, sparse=False):
    if sparse and PFS[0] > 4:
        d = I('buffer_load_dword %s, v%d, s[4:7], s%d offen offset:%d' % (dst[0] + dst[2:].split(':')[0], VPS, soff, o))
    else:
        d = I('buffer_load_dwordx4 %s, v%d, s[4:7], s%d offen offset:%d' % (dst, VL16, soff, o))
    d.wr = {'tag:pf'}
    return d


def mega(name, opt):
    attn.use_table(opt.get('tab', 'f'))
    NOQST[0] = opt.get('noqst', 0)
    XSLEEP[0] = opt.get('xsleep', 2)
    st = opt.get('st', 'sc1')
    ld = opt.get('ld', 'sc1')
    npf = opt.get('npf', 1)
    PFS[0] = opt.get('pfs', 4)
    nld = lambda size: -(-size // (65536 << PFS[0]))
    ALLPF = {c: (p, sz, nld(sz)) for c, p, sz in (('q', P_WQ, 448 * 8192), ('s', P_WSP, 8 * MB), ('o', P_WO, 4096 * 896), ('u', P_WOUT, 896 * 896))}
    UP = [ALLPF[c] for c in opt.get('up', '')]
    PF = [ALLPF[c] for c in opt.get('inl', 'qs')]
    HD = [ALLPF[c] for c in opt.get('hd', 'ou')]
    inloop = npf if PF else 0
    sSB, sH, sKV, sIDX, sTB, sFB, sFl, sQst = 70, 71, 72, 73, 82, 83, 100, 101
    GHMAP = [
        ['s_sub_u32 s6, s%d, 14' % sIDX, 's_lshr_b32 s%d, s6, 1' % sFB, 's_and_b32 s6, s6, 1', 's_lshl_b32 s%d, s3, 1' % sTB,
         's_add_u32 s%d, s%d, s6' % (sTB, sTB)],
        ['s_sub_u32 s6, s%d, 14' % sIDX, 's_and_b32 s%d, s3, 1' % sFB, 's_mul_i32 s%d, s%d, 14' % (sFB, sFB), 's_add_u32 s6, s6, s%d' % sFB,
         's_lshr_b32 s%d, s6, 2' % sFB, 's_and_b32 s6, s6, 3', 's_lshr_b32 s%d, s3, 1' % sTB, 's_lshl_b32 s%d, s%d, 2' % (sTB, sTB),
         's_add_u32 s%d, s%d, s6' % (sTB, sTB)]]
    attn.EXP['ldflags'] = ld
    end = 'L_end_' + name
    P = entry(256, end)
    if opt.get('cpf', 1):
        P += L('s_getpc_b64 s[4:5]', 'L_pc:', 's_lshr_b32 s6, s2, 3', 's_lshl_b32 s6, s6, 2', 's_add_u32 s6, s6, s%d' % WAVE,
               's_lshl_b32 s6, s6, 10', 'v_add_u32 v1, s6, v%d' % VL16, 's_mov_b32 s7, L_codeend-L_pc-16')
        for k in range(2):
            P += L('v_min_u32 v2, s7, v1')
            d = I('global_load_dwordx4 v[%d:%d], v2, s[4:5]' % (MISC, MISC + 3))
            d.wr = {'tag:pf'}
            P += [d] + L('v_add_u32 v1, 131072, v1')
    P += L('s_and_b32 s3, s2, 7', 's_lshr_b32 s%d, s2, 3' % sIDX, 's_lshr_b32 s%d, s%d, 2' % (sSB, sIDX),
           's_and_b32 s%d, s%d, 1' % (sKV, sIDX), 's_bfe_u32 s6, s%d, 0x10001' % sIDX, 's_lshl_b32 s%d, s3, 1' % sH,
           's_add_u32 s%d, s%d, s6' % (sH, sH),
           *GHMAP[opt.get('ghmap', 1)],
           's_lshl_b32 s%d, s3, 7' % sFl, 's_mov_b32 s%d, s2' % 26)
    fTB, fMB, fS = 53, 98, 99
    fin = FIN(fTB, fMB, fS, xfl=ld)
    P += L('v_lshlrev_b32 v%d, %d, v0' % (VPS, PFS[0]))
    sQ1, sQ2 = 97, attn.sOwn
    P += attn.decode(25)
    P += L('s_waitcnt lgkmcnt(0)', 's_mov_b32 s%d, s2' % sID) + flag_srd() + L('s_mov_b32 s%d, s25' % sQ1)
    TLB = []
    if opt.get('tlb', 0):
        sh = opt['tlb']
        dst = 'v%d' % MISC
        def touch(ptr, size):
            n = -(-size // (64 << sh))
            R = srd(AUX, ptr, size)
            for k in range(n):
                d = I('buffer_load_dword %s, v1, s[4:7], s%d offen sc1' % (dst, U0))
                d.wr = {'tag:pf'}
                R += L('s_mov_b32 s%d, %d' % (U0, k * (64 << sh))) + [d]
            return R
        TLB = L('v_lshlrev_b32 v1, %d, v0' % sh) + touch(P_WS, 100 * MB)
        for ptr, size in ((P_WQ, 448 * 8192), (P_WSP, 8 * MB), (P_WO, 4096 * 896), (P_WOUT, 896 * 896), (P_OUT, 2048 * 896), (P_X, 2048 * 896),
                          (P_WUK, 8 * MB), (P_WUV, 8 * MB), (P_CKV, 4 * MB)):
            TLB += touch(ptr, size)
        if opt.get('tlbw0', 1):
            TLB = L('s_cmp_lg_u32 s%d, 3' % WAVE, 's_cbranch_scc1 @_notlb') + TLB + L('@_notlb:')
    FIN_IDS = L('s_lshr_b32 s%d, s%d, 8' % (fS, sFl), 's_bfe_u32 s%d, s%d, 0x10007' % (fTB, sFl), 's_lshl_b32 s%d, s%d, 3' % (fTB, fTB),
                's_lshr_b32 s%d, s%d, 2' % (fMB, sIDX), 's_add_u32 s%d, s%d, s%d' % (fTB, fTB, fMB), 's_and_b32 s%d, s%d, 3' % (fMB, sIDX))
    z2 = Z2(sQst, stflags=st)
    kv = KV(sSB, sH, sKV, stflags=st)
    for g_ in kv.g2:
        g_.wfl = opt.get('kvwfl', '')
    OUTFL[0] = opt.get('outfl', '')
    q = QJ(sQ1, sQ2, attn.sH, stflags=st)
    gh = GH(sTB, sFB, stflags=st, wfl=opt.get('ghld', ld))
    if 'ghrd' in opt:
        gh.g.rdpg = opt['ghrd']
    vPA, vPD, vPZA, vPZ = MISC, MISC + 1, MISC + 2, MISC + 3
    sWG = 29
    addr_k = lanes_addr(vPA, sFl, 0, 28, vPD) + L('v_and_b32 v%d, 15, v0' % vPD, 'v_lshlrev_b32 v%d, 2, v%d' % (vPD, vPD),
                                                   'v_add_u32 v%d, %d, v%d' % (vPD, FL_G, vPD), 'v_cmp_gt_u32 vcc, 32, v0',
                                                   'v_cndmask_b32 v%d, v%d, v%d, vcc' % (vPA, vPD, vPA))
    own_flag = lambda d: L('s_lshl_b32 s%d, s%d, 2' % (d, sIDX), 's_add_u32 s%d, s%d, s%d' % (d, d, sFl))
    a10, a11 = attn.vT[10], attn.vT[11]
    attn.LATE_CHECK[:] = lanes_addr(a10, sFl, 28, 4, a11) + [poll_load(a10, a11)] + poll_check('@_l', a10, a11, 1, sc=attn.t1)

    if npf:
        R = L('s_cmp_eq_u32 s%d, 0' % sPF, 's_cbranch_scc1 @_nopf')
        assert PFS[0] == 4 or not HD
        for ptr, size, n in HD:
            R += pf_switch(ptr, size, n) + pf_seq('a[68:71]', n)
        attn.HEAD_EXTRA[:] = R + L('s_mov_b32 s%d, 0' % sPF, '@_nopf:')

    def win_prefetch(dst):
        if not npf:
            return []
        R = pf_switch(P_WIN, 448 * 3584, 2) + pf_seq(dst, nld(448 * 3584))
        R += srd(AUX, P_CKV, 4 * MB) + L('s_lshl_b32 s%d, s%d, 2' % (U0, sID), 's_add_u32 s%d, s%d, s%d' % (U0, U0, WAVE),
                                         's_lshl_b32 s%d, s%d, 10' % (U0, U0), 's_add_u32 s%d, s%d, %d' % (U0, U0, 7 * 524288))
        R.append(pf_load(dst, U0, 0))
        R += upfront(dst)
        return R

    def upfront(dst, lst=None):
        R = []
        for ptr, size, n in (UP if lst is None else lst):
            R += pf_switch(ptr, size, n) + pf_seq(dst, n)
        return R

    g = kv.g
    pfi = lambda: [Item([], pf_load('v[%d:%d]' % (MISC, MISC + 3), sPF, 0, sparse=True),
                        [L('s_add_u32 s%d, s%d, %d' % (sPF, sPF, 65536 << PFS[0]))], (0, 0)) for i in range(inloop)]
    vWP = BANK[0] + 28
    wpd = opt.get('wpd', 2)

    def wpf(dist):
        d = I('buffer_load_dwordx4 v[%d:%d], v%d, s[%d:%d], s%d offen %s' % (MISC, MISC + 3, vWP, SA['wsrd'], SA['wsrd'] + 3, E1, opt.get('wpfl', '')))
        d.wr = {'tag:pf'}
        return Item(L('s_add_u32 s%d, s%d, %d' % (E1, SA['woff'], dist * 64 * 8192)), d, [], (0, 0))
    wp_setup = L('s_lshl_b32 s%d, s%d, 2' % (U0, sSB), 's_add_u32 s%d, s%d, s%d' % (U0, U0, WAVE), 's_lshl_b32 s%d, s%d, 14' % (U0, U0),
                 'v_lshrrev_b32 v1, 5, v0', 'v_lshlrev_b32 v1, 13, v1', 'v_and_b32 v2, 31, v0', 'v_lshl_add_u32 v1, v2, 4, v1',
                 'v_add_u32 v%d, s%d, v1' % (vWP, U0))
    def clr_item():
        return [Item([], I('buffer_store_dwordx4 v[%d:%d], v%d, s[%d:%d], s%d offen sc1' % (BANK[1], BANK[1] + 3, VL16, OSRD, OSRD + 3, E2)),
                     [L('s_add_u32 s%d, s%d, 1024' % (E2, E2))], (0, 0))]
    clr_setup = FIN_IDS + srd(OSRD, P_WS, 0, off=WS_XP) + fin.slot_base(E2, None) + \
        L('s_add_u32 s%d, s%d, 8192' % (OSRD + 2, E2)) + L(*['v_mov_b32 v%d, -1' % (BANK[1] + i) for i in range(4)])
    kvG = lambda gg, t: (gg.G(t)[:8] + [] + pfi() + ([wpf(wpd)] if wpd else []) + gg.G(t)[8:]) if opt.get('pfe', 1) else (gg.G(t) + pfi() + ([wpf(wpd)] if wpd else []))
    early_m1, late_m1 = g.split(kvG(g, -1))
    assert len([1 for it, p in early_m1 if it.d.kind == 'dma']) <= 14
    early_m1 = [(it, p) for it, p in early_m1 if it.d.kind == 'dma']
    kv_mid = g.setup_read() + kv.g2[0].zero_acc()
    if opt.get('exit') == 0:
        P += L('s_branch %s' % end)
    P += L('s_cmp_ge_u32 s%d, 28' % sIDX, 's_cbranch_scc1 L_roleZ')
    wp0 = (wp_setup + items_code([wpf(k) for k in range(wpd)])) if wpd else []
    P += items_code(flat(kv.prologue())) + items_code([it for it, p in early_m1]) + wp0 + win_prefetch('v[%d:%d]' % (MISC, MISC + 3)) + retag(TLB, 'tg')
    PG = P
    P = L('L_roleZ:', 's_lshr_b32 s%d, s%d, 5' % (sQst, sFl), 's_and_b32 s6, s%d, 3' % sIDX, 's_add_u32 s%d, s%d, s6' % (sQst, sQst))
    P += L('s_cmp_lg_u32 s%d, 224' % sID, 's_cbranch_scc1 L_noclr', 's_lshl_b32 s%d, s%d, 12' % (U0, WAVE))
    P += L(*['v_mov_b32 v%d, 0' % (ACC0 + i) for i in range(4)])
    P += L(*['buffer_store_dwordx4 v[%d:%d], v%d, s[0:3], s%d offen offset:%d sc1' % (ACC0, ACC0 + 3, VL16, U0, o) for o in (0, 1024, 2048, 3072)])
    P += L('L_noclr:')
    kp = kv.prologue()
    queue = kp[0] + kp[2] + kp[1]
    P += z2.run(pf_switch(P_WIN, 448 * 3584, 2) + pf_seq('v[68:71]', nld(448 * 3584)) + upfront('v[68:71]', PF + UP) + retag(TLB, 'tz'), queue) + [STAMP(9)]
    P += items_code(queue) + items_code([it for it, p in g.split(kvG(g, -1))[0] if it.d.kind == 'dma']) + z2.epi() + (wp_setup if wpd else [])
    PZ = P + L('s_waitcnt vmcnt(0)', 's_barrier') + z2_signal('z2') + L('s_branch L_kv')
    P = PG + L('L_kv:') + kv_mid + g.start()
    hooks = {}
    if inloop:
        it = 0
        for k, (ptr, size, n) in enumerate(PF):
            if k:
                hooks[it] = pf_switch(ptr, size, n)
            else:
                P += pf_switch(ptr, size, n)
            it += n // npf
        hooks[it] = L('s_mov_b32 s6, 0')
        assert it <= 13
        P += FIN_IDS
    P += L('s_mov_b32 s%d, 0' % CNT) + [STAMP(0)]
    P += L('s_cmp_eq_u32 s%d, 1' % sKV, 's_cbranch_scc1 L_V')
    ool = []
    qg = q.g
    drains = dict(q=[], g=[])
    for vi, gg in enumerate(kv.g2):
        lab = 'kv%d' % vi
        if vi:
            P += L('L_V:')
        early, late = gg.split(kvG(gg, 0))
        mask = sum(1 << c for c in hooks) | (1 << 13)
        tc = L('s_bitcmp0_b32 s%d, s%d' % (E0, CNT), 's_cbranch_scc1 %s' % lab, 's_branch %s_hk' % lab, '%s_x:' % lab)
        P += L('s_mov_b32 s%d, %d' % (E0, mask), lab + ':')
        P += gg.iter(0, late, early, tailcode=tc, extra=L('s_add_u32 s%d, s%d, 1' % (CNT, CNT)), xg=(40, 60))
        ool += L('%s_hk:' % lab)
        for cval, ins in sorted(hooks.items()):
            ool += L('s_cmp_lg_u32 s%d, %d' % (CNT, cval), 's_cbranch_scc1 %s_n%d' % (lab, cval)) + relabel(ins, lab) + L('s_branch %s' % lab, '%s_n%d:' % (lab, cval))
        ool += L('s_branch %s_x' % lab)
        P += L('s_sub_u32 s%d, s%d, 14' % (U0, sIDX), 's_cmp_lt_u32 s%d, 14' % U0, 's_cbranch_scc1 %s_g' % lab)
        for role in ('q', 'g'):
            R = []
            late = gg.split(kvG(gg, 12))[1]
            if role == 'q':
                queue = flat(q.prologue()) + [it for it, p in qg.split(q.G(-1))[0]]
                exs = {13: q.setup(), 14: qg.setup_read()}
            else:
                R += L('%s_g:' % lab)
                queue = flat(gh.prologue())
                exs = {13: gh.setup(), 14: gh.prep(), 15: [gh.gate_loads(range(6))]}
            for t in range(13, 16):
                early, nl = gg.split(graft(gg, t, gg.G(t), queue, 18))
                R += gg.iter(t, late, early, last=(t == 15), extra=exs.get(t, []), xg=(0, 62) if t == 13 else None)
                late = nl
            R += [STAMP(1)] + items_code([it for it, p in late] + (queue if role == 'q' else []))
            ghleft = len(queue)
            R += kv.pack(vi == 0, [BANK[0], BANK[0] + 12]) + L('s_branch L_%s' % role)
            drains[role] += R
        P += drains['q']
        drains['q'] = []

    def attn_items(S0, loadq):
        sl = attn.seg_loads(True)
        rngs = [((S0 + k) % 5 * 32768, ((S0 + k) % 5 + 1) * 32768) for k in range(5)]
        aq = flat([attn.as_items(sl[j], rngs[k]) for k, j in enumerate((0, 2, 3) if attn.EXP.get('hd2', 1) else (0, 2, 3, 4, 5))])
        with_pre(aq, attn.kernel_setup(S0) + attn.gate_load(attn.sOwn, 36))
        if loadq:
            aq[7].post = aq[7].post + [sl[1][0]]
        return aq
    get_g = L('v_mov_b32 v%d, v36' % attn.Gv[0], 'v_mov_b32 v%d, v37' % attn.Gv[1])
    kst = kv.stores()
    P += L('L_q:', 's_cmp_lt_u32 s%d, 28' % sIDX, 's_cbranch_scc1 L_q2') + flat(kv.stores()) + L('s_mov_b32 s%d, 0' % (OSRD + 2), 'L_q2:')
    P += qg.start() + [STAMP(10)]
    aq = attn_items(4, False)
    q1st = q.stores(sQst, 0, tag='qst')

    def q_opts(t):
        qg.set_acc(q.maps[t // 7])
        kw = dict(zero=(t % 7 == 0), extra=kst[23 * t // 7:23 * (t + 1) // 7] if t < 7 else q1st[16 * (t - 7) // 6:16 * (t - 6) // 6])
        tc = []
        if t == 2:
            tc = L('s_cmp_lt_u32 s%d, 28' % sIDX, 's_cbranch_scc1 L_nz2', 'v_mov_b32 v%d, 0' % vPZA) + [poll_load(vPZA, vPZ, True)] + \
                poll_check('wzz', vPZA, vPZ, 32, dbg=True) + own_flag(U0) + signal('kz', U0) + L('L_nz2:')
        if t == 6:
            tc = q.pack(0, [[]] * 16) + q.store_setup(sQst, sQ1) + L('s_cmp_ge_u32 s%d, 28' % sIDX, 's_cbranch_scc1 L_roleZ2')
        if t == 7:
            tc = L('v_mov_b32 v%d, 0' % vPZA) + [poll_load(vPZA, vPZ, True)]
        if t == 9:
            kw['needs'] = [qg.tag('W', 10), qg.tag('X', 10), 'kvst']
            tc = poll_check('wzq', vPZA, vPZ, 32, dbg=True) + own_flag(U0) + signal('kq', U0)
        if t == 10:
            tc = addr_k + [poll_load(vPA, vPD)]
        if t == 11:
            tc = poll_check('wkq', vPA, vPD, 1)
        kw['tailcode'] = tc + ([STAMP(12 + t)] if t < 7 else [])
        return kw
    C, left = run_static(qg, 'q', CNT, lambda t: graft(qg, t, q.G(t), aq, 16) if t >= 12 else q.G(t), opts=q_opts)
    P += C + [STAMP(2)] + items_code(left + aq)
    P += q.store_setup(sQst, sQ2) + L('s_cmp_eq_u32 s%d, 2' % attn.sMode, 's_cselect_b32 s%d, s%d, 0' % (QSRD + 2, QSRD + 2))
    P += q.pack(1, q.stores(sQst, 1)) + attn.q2_flag(attn.sPend, sQ1)
    if opt.get('exit') == 3:
        P += L('s_waitcnt vmcnt(0)') + signal(None, attn.sPend, only_wave0=False) + L('s_branch L_x3')
    P += attn.own_q(q.quads(1)) + get_g + [need('aK0')] + L('s_branch L_seg')
    P += PZ + ool
    P += drains['g']
    gg = gh.g
    gp_setup_ph = [I('.gp')]
    if opt.get('rot', 0):
        gh.rot = (20, 21, 22)
        P += L('L_g:', 's_lshr_b32 s20, s%d, 7' % sFl, 's_mul_i32 s20, s20, %d' % opt['rot'], 's_and_b32 s20, s20, 31')
    else:
        P += L('L_g:')
    P += gp_setup_ph + gh.gate_loads(range(6, 14)) + gh.bias_loads() + gg.start() + [STAMP(11)]
    aq = attn_items(1, True)
    kst = kv.stores()
    tsig = 11
    ghq = flat(gh.prologue())[40 - ghleft:] if ghleft else []
    assert ghleft <= 16 and ghleft % 4 == 0, ghleft
    print("ghleft", ghleft, file=sys.stderr)

    gpd = opt.get('gpd', 0)
    vGW, vGX = 65, 66
    gp_setup = L('s_and_b32 s%d, s%d, 1' % (U0, sTB), 's_mul_i32 s%d, s%d, 57344' % (U0, U0), 's_lshl_b32 s%d, s%d, 11' % (U1, WAVE),
                 's_add_u32 s%d, s%d, s%d' % (U0, U0, U1), 'v_lshlrev_b32 v1, 7, v0', 'v_add_u32 v1, s%d, v1' % U0,
                 'v_mov_b32 v2, 0x80000000', 'v_cmp_gt_u32 vcc, 16, v0', 'v_cndmask_b32 v%d, v2, v1, vcc' % vGW,
                 's_lshl_b32 s%d, s%d, 2' % (U0, sFB), 's_add_u32 s%d, s%d, s%d' % (U0, U0, WAVE), 's_mul_i32 s%d, s%d, 5' % (U0, U0),
                 'v_add_u32 v1, s%d, v0' % U0, 'v_min_u32 v1, 127, v1', 'v_lshlrev_b32 v1, 12, v1',
                 'v_cmp_gt_u32 vcc, 5, v0', 'v_cndmask_b32 v%d, v2, v1, vcc' % vGX)

    sGX, sGW = 23, 24

    def gpf(which):
        X = which == 'X'
        r = sGX if X else sGW
        d = I('buffer_load_dword v67, v%d, s[%d:%d], s%d offen %s' % (vGX if X else vGW, SB['xsrd' if X else 'wsrd'], SB['xsrd' if X else 'wsrd'] + 3,
                                                                    r, '' if X else ld))
        d.wr = {'tag:pf'}
        return L('s_mov_b64 exec, %d' % (31 if X else 65535)) + [d] + L('s_mov_b64 exec, -1', 's_add_u32 s%d, s%d, %d' % (r, r, 128 if X else 114688))

    def ghG(t):
        if t < 0:
            return []
        if t + 5 < 39:
            R = (ghq if t == 0 else []) + (gh.grp('W', t + 5) if not 7 <= t + 5 <= 11 else []) + gh.grp('X', t + 5)
            return R
        return graft(gg, t, [], aq, 16) if t >= 36 else []

    def gh_opts(t):
        kw = dict(zero=(t in (0, 7)), extra=kst[2 * t:2 * t + 2] if t < 7 else [])
        tc = []
        if gpd and 7 <= t and t + 5 + gpd < 39:
            kw['extra'] = [gpf('X'), gpf('W')]
        if t < 7:
            kw['extra_mf'] = gh.gate_mf(t)
        if t == 6:
            sw = gh.switch()
            kw['last'] = True
            wz = [it.all() for u in range(7, 12) for it in gh.grp('W', u, poll_check('wz', vPZA, vPZ, 32, dbg=True))]
            if gpd:
                wz += [L('s_lshl_b32 s%d, s%d, 19' % (sGX, sTB), 's_add_u32 s%d, s%d, %d' % (sGX, sGX, 5 * 128),
                         's_lshl_b32 s%d, s%d, 13' % (sGW, sFB), 's_add_u32 s%d, s%d, %d' % (sGW, sGW, 5 * 114688))]
                wz += [gpf(w) for k in range(gpd) for w in 'XW']
            tc = [STAMP(41)] + wz[0] + [STAMP(42)] + attn.mix(sw[:300], wz[1:] + kst[14:]) + [STAMP(43)] + sw[300:] + [STAMP(44)] + [need(gg.tag('W', 7), gg.tag('X', 7)), I('s_barrier')] + gg.reads(7, range(2), 1)
        if t == 4:
            tc = L('v_mov_b32 v%d, 0' % vPZA) + [poll_load(vPZA, vPZ, True)]
        if t == tsig:
            kw['needs'] = [gg.tag('W', t + 1), gg.tag('X', t + 1), 'kvst', 'gst']
            tc = own_flag(U0) + signal('ks', U0) + L('s_cmp_lg_u32 s%d, 0' % sFB, 's_cbranch_scc1 gs_n', 's_lshl_b32 s%d, s%d, 2' % (U0, sTB),
                                                     's_add_u32 s%d, s%d, %d' % (U0, U0, FL_G)) + signal('gs', U0) + L('gs_n:')
        if t == 32:
            qtab = sum(x << (4 * i) for i, x in enumerate(attn.QB2[:7] + [attn.QB2[6]]))
            tc = addr_k + L('s_mov_b32 s%d, 0' % U1) + attn.q2_flag(U0, U1) + \
                L('v_and_b32 v1, 7, v0', 'v_lshlrev_b32 v1, 2, v1', 's_mov_b32 s%d, 0x%x' % (U1, qtab), 'v_lshrrev_b32 v1, v1, s%d' % U1,
                  'v_and_b32 v1, 15, v1', 'v_lshl_add_u32 v1, v1, 4, s%d' % U0, 'v_cmp_gt_u32 vcc, 48, v0',
                  'v_cndmask_b32 v%d, v1, v%d, vcc' % (vPA, vPA)) + [poll_load(vPA, vPD)]
        if t == 35:
            tc = [STAMP(57)] + poll_check('wk', vPA, vPD, 1) + [STAMP(58)]
        if t < 14 or t % 4 == 1:
            tc = tc + [STAMP(20 + (t if t < 14 else 14 + (t - 14) // 4))]
        kw['tailcode'] = tc
        return kw
    C, left = run_static(gg, 'gh', CNT, ghG, opts=gh_opts, loop=None if '--stamp' in sys.argv else (12, 32, 10))
    P += C + [STAMP(3)] + items_code(left + aq)
    if opt.get('exit') in (3, 4):
        P += L('L_x3:', 's_branch %s' % end)
    k_ = [i for i, x in enumerate(P) if x.op == '.gp'][0]
    P[k_:k_ + 1] = gp_setup
    P += gh.epi() + get_g
    P += L('s_lshl_b32 s%d, s%d, 4' % (U0, sTB), 's_add_u32 s%d, s%d, s%d' % (U0, U0, sFB), 's_lshl_b32 s%d, s%d, 2' % (U0, U0),
           's_add_u32 s%d, s%d, s%d' % (U0, U0, WAVE), 's_lshl_b32 s%d, s%d, 2' % (U0, U0), 's_add_u32 s%d, s%d, %d' % (attn.sPend, U0, FL_H))
    P += [need('aK0')] + [I('', needs=['a%d' % (attn.Qa + i) for i in range(64)])] + L('s_branch L_seg')
    P += L('L_roleZ2:', 's_waitcnt vmcnt(0)', 's_barrier')
    if opt.get('exit') == 3:
        P += L('s_branch %s' % end)
    P += addr_k + [poll_load(vPA, vPD)] + poll_check('wkz', vPA, vPD, 1)
    sl = attn.seg_loads(None)
    P += attn.kernel_setup() + attn.gate_load(attn.sOwn, attn.Gv[0]) + flat(flat(sl[:4] if attn.EXP.get('hd2', 1) else sl))
    P += attn.own_q(q.quads(0)) + [need('aK0')]
    vFA, vFD = 114, 115
    t0_, t1_ = attn.t0, attn.t1
    ctx_flag = L('s_lshl_b32 s%d, s%d, 4' % (U0, attn.sOwn), 's_add_u32 s%d, s%d, s%d' % (U0, U0, attn.sH), 's_lshl_b32 s%d, s%d, 2' % (U0, U0),
                 's_add_u32 s%d, s%d, %d' % (U0, U0, FL_TB))
    attn.PRE_FIN[:] = L('s_lshl_b32 s%d, s%d, 8' % (t0_, fTB), 's_lshl_b32 s%d, s%d, 5' % (t1_, fS), 's_add_u32 s%d, s%d, s%d' % (t0_, t0_, t1_),
                        's_add_u32 s%d, s%d, %d' % (t0_, t0_, FL_H), 's_cmp_eq_u32 s%d, 3' % fS, 's_cselect_b32 s%d, 3, 7' % t1_) + \
        lanes_addr(vFA, t0_, 0, 's%d' % t1_, vFD) + [poll_load(vFA, vFD)] + flat(fin.clear(124))
    attn.PRE_FIN2[:] = poll_check('@_h', vFA, vFD, 1, sc=t1_)
    attn.FIN_TAIL['setup'] = fin.setup_dma(attn.aV)
    attn.FIN_TAIL['groups'] = lambda: [it.all() for it in fin.grp('W', 0) + fin.grp('X', 0) + fin.grp('W', 1) + fin.grp('X', 1)]
    P += attn.run(stflags=st)
    fg = fin.g
    cbase = L('s_lshl_b32 s%d, s%d, 6' % (U0, fTB), 's_lshl_b32 s%d, s%d, 4' % (U1, fS), 's_add_u32 s%d, s%d, s%d' % (U0, U0, U1),
              's_add_u32 s%d, s%d, %d' % (U0, U0, FL_TB))
    hk = {1: dict(needs=[fg.tag('W', 2), fg.tag('X', 2), 'ctxst'], tailcode=ctx_flag + signal('cs', U0)),
          2: dict(tailcode=cbase + lanes_addr(vFA, U0, 0, 2, vFD) + [poll_load(vFA, vFD)]),
          3: dict(tailcode=[STAMP(52)] + poll_check('wc', vFA, vFD, 1) + [STAMP(53)]),
          6: dict(tailcode=L('v_add_u32 v%d, 8, v%d' % (vFA, vFA), 's_lshl_b32 s%d, s%d, 4' % (U0, attn.sOwn), 's_and_b32 s%d, s%d, 3' % (U1, attn.sH),
                             's_add_u32 s%d, s%d, s%d' % (U0, U0, U1), 's_lshl_b32 s%d, s%d, 2' % (U0, U0), 's_add_u32 s%d, s%d, %d' % (U0, U0, FL_TB),
                             'v_and_b32 v116, 3, v0', 'v_lshlrev_b32 v116, 4, v116', 'v_add_u32 v116, s%d, v116' % U0,
                             'v_cmp_gt_u32 vcc, 32, v0', 'v_cndmask_b32 v%d, v116, v%d, vcc' % (vFA, vFA)) + [poll_load(vFA, 116)])}
    if opt.get('exit') == 2:
        P += L('s_branch %s' % end)
    P += items_code(fin.grp('X', 2) + fin.grp('W', 2) + fin.grp('X', 3) + fin.grp('W', 3)) + fg.setup_read() + fg.start()
    P += [STAMP(51)] + fin.loop(hk, pre12=poll_check('wd', vFA, 116, 1)) + [STAMP(54)] + fin.epi(end) + L('s_branch %s' % end)
    P += L(end + ':', 's_endpgm', 'L_codeend:')
    return P, 163840


RT = '--rt' in sys.argv


def add_stamps(P, idx):
    out = L('s_memrealtime s[98:99]', 's_memtime s[52:53]')
    K = 0
    for i, p in enumerate(P):
        if p.kind == 'smem' and K == 0:
            out = out[:-0] if False else out
        if p.kind == 'dir' and p.op == '.stamp' and '--span' in sys.argv:
            continue
        if p.kind == 'dir' and p.op == '.stamp':
            out += L('s_memrealtime vcc' if RT else 's_memtime vcc', 's_waitcnt lgkmcnt(0)', 'v_writelane_b32 v%d, vcc_lo, %d' % (VSTAMP, 3 + p.ops[0]))
            continue
        if p.kind == 'branch' and p.target.startswith('L_end_') and i > 2:
            p = I(p.text.replace('L_end_', 'L_stamp_'))
        if p.kind == 'label' and p.op.startswith('L_end_'):
            out += L(p.op.replace('L_end_', 'L_stamp_') + ':',
                     's_waitcnt vmcnt(0)', 's_memrealtime s[98:99]', 's_memtime s[0:1]', 's_waitcnt lgkmcnt(0)',
                     'v_writelane_b32 v%d, s98, 1' % VSTAMP, 'v_writelane_b32 v%d, s0, 2' % VSTAMP,
                     's_lshl_b32 s3, s%d, 10' % sID, 's_lshl_b32 s4, s35, 8', 's_add_u32 s3, s3, s4', 's_add_u32 s3, s3, %d' % (100 * MB + idx * 262144),
                     'v_lshlrev_b32 v2, 2, v0', 'v_add_u32 v2, s3, v2', 'global_store_dword v2, v%d, s[68:69]' % VSTAMP)
        out.append(p)
        if p.kind == 'smem' and p.text.startswith('s_load_dwordx16'):
            pass
        if K == 0 and p.kind == 'wait' and p.lgkm == 0:
            K = 1
            out += L('v_mov_b32 v%d, 0' % VSTAMP, 'v_writelane_b32 v%d, s98, 0' % VSTAMP, 'v_writelane_b32 v%d, s96, 63' % VSTAMP)
    out[1] = I('s_memrealtime s[96:97]' if RT else 's_memtime s[96:97]')
    return out


def build(kernels, stamp=False):
    txt = HDR
    body = ''
    kds = ''
    for idx, (name, grid, fn) in enumerate(kernels):
        P, lds = fn(name)
        if stamp:
            P = add_stamps(P, idx)
        else:
            P = [p for p in P if not (p.kind == 'dir' and p.op == '.stamp')]
        prog = finalize(P)
        txt += '; @launch %sgrid=(%d,1,1) block=(256,1,1) lds=%d\n' % ('kernel=%s ' % name if len(kernels) > 1 else '', grid, lds)
        body += kernel_text(name, prog, 512)
        kds += kd_text(name, 512, 256)
    return txt + '.amdgcn_target "amdgcn-amd-amdhsa--gfx950"\n' + MACROS + body + kds


if __name__ == '__main__':
    opt = {}
    for a_ in sys.argv:
        if a_.startswith('--exp='):
            attn.EXP.update(json.loads(a_[6:]))
        if a_.startswith('--opt='):
            opt = json.loads(a_[6:])
    ks = [('gated_mix__compressed_kv_cla__mixer_gmlp__prompt_kernel', 256, lambda n: mega(n, opt))]
    open(sys.argv[1], 'w').write(build(ks, stamp='--stamp' in sys.argv or '--span' in sys.argv))
```
